```python
import torch

def _softmax(x, axis=-1):
    return torch.softmax(x, dim=axis)
def _gelu(x):
    return torch.nn.functional.gelu(x, approximate="tanh")
def _silu(x):
    return torch.nn.functional.silu(x)
def _sigmoid(x):
    return torch.sigmoid(x)
def _layernorm(x, axis=-1, eps=1e-5):
    m = x.mean(dim=axis, keepdim=True)
    v = x.var(dim=axis, keepdim=True, unbiased=False)
    return (x - m) / torch.sqrt(v + eps)
def _scatter_add(tgt, idx, src, axis=0):
    return tgt.clone().index_add_(axis, idx, src)
def _segment_sum(src, seg, n):
    out = torch.zeros((n,) + src.shape[1:], dtype=src.dtype)
    return out.index_add_(0, seg, src)
def _pad(x, pw):
    flat = tuple(v for pair in reversed(pw) for v in pair)
    return torch.nn.functional.pad(x, flat)

kernel_name = 'standalone__gqa_block_cached__near_ridge'

def setup_inputs():

    _w = (lambda a: (lambda t: t.to(torch.bfloat16) if t.is_floating_point() else t)(torch.as_tensor(a)))
    B, Sq, D = 8, 128, 640
    Hq, Hkv, Sk, Dh = 32, 32, 512, 128
    assert Hq % Hkv == 0, (Hq, Hkv)
    return {
        "x": _w((lambda *s: torch.randn(*s, dtype=torch.bfloat16) * 0.8)(B, Sq, D)),
        "k_cache": _w((lambda *s: torch.randn(*s, dtype=torch.bfloat16) * 0.8)(B, Hkv, Sk, Dh)),
        "v_cache": _w((lambda *s: torch.randn(*s, dtype=torch.bfloat16) * 0.05)(B, Hkv, Sk, Dh)),
        "wq": _w((lambda *s: torch.randn(*s, dtype=torch.bfloat16) * 0.8)(D, Hq * Dh) * (D ** -0.5)),
        "wo": _w((lambda *s: torch.randn(*s, dtype=torch.bfloat16) * 0.05)(Hq * Dh, D) * ((Hq * Dh) ** -0.5)),
    }

def reference(x, k_cache, v_cache, wq, wo):
    B, Sq, D = x.shape
    Hq, Dh = 32, 128
    Hkv = k_cache.shape[1]
    rep = Hq // Hkv
    q = (lambda x, *d: x.permute(*d))((x @ wq).reshape(B, Sq, Hq, Dh), 0, 2, 1, 3)
    k = (lambda x, n, axis: torch.repeat_interleave(x, n, dim=axis))(k_cache, rep, axis=1)
    v = (lambda x, n, axis: torch.repeat_interleave(x, n, dim=axis))(v_cache, rep, axis=1)
    scores = torch.einsum("bhqd,bhkd->bhqk", q, k) * (Dh ** -0.5)
    p = _softmax(scores, axis=-1)
    o = torch.einsum("bhqk,bhkd->bhqd", p, v)
    return (lambda x, *d: x.permute(*d))(o, 0, 2, 1, 3).reshape(B, Sq, Hq * Dh) @ wo
```

```python
import sys, math
NAME = "standalone__gqa_block_cached__near_ridge"

class Asm:
    def __init__(self):
        self.L = []
    def __call__(self, s):
        self.L.append("  " + s)
    def label(self, s):
        self.L.append(s + ":")
    def raw(self, s):
        self.L.append(s)
    def text(self):
        return "\n".join(self.L) + "\n"

def vr(b, n=1, p="v"):
    return f"{p}{b}" if n == 1 else f"{p}[{b}:{b+n-1}]"
def ar(b, n=1):
    return vr(b, n, "a")
def sr(b, n=1):
    return vr(b, n, "s")

def kernel_header(e, kname):
    e.raw(f".globl {kname}")
    e.raw(".p2align 8")
    e.raw(f".type {kname},@function")
    e.label(kname)

def kernel_desc(e, kname, nfv, acc, nsg=102):
    e.raw(".p2align 6")
    e.raw(f".amdhsa_kernel {kname}")
    e.raw(f"  .amdhsa_next_free_vgpr {nfv}")
    e.raw(f"  .amdhsa_next_free_sgpr {nsg}")
    e.raw(f"  .amdhsa_accum_offset {acc}")
    e.raw("  .amdhsa_group_segment_fixed_size 0")
    e.raw("  .amdhsa_kernarg_size 64")
    e.raw("  .amdhsa_user_sgpr_count 2")
    e.raw("  .amdhsa_user_sgpr_kernarg_segment_ptr 1")
    e.raw("  .amdhsa_system_sgpr_workgroup_id_x 1")
    e.raw(".end_amdhsa_kernel")

WS_O = 0
WS_P = 16 << 20
WS_DIAG = 32 << 20
SCALE = math.log2(math.e) / math.sqrt(128.0)
import struct
def f32bits(x):
    return struct.unpack("<I", struct.pack("<f", x))[0]

def decode_wg(e, s_b, s_hg, s_r2):
    e("s_and_b32 s90, s2, 1")
    e("s_lshl_b32 s90, s90, 2")
    e("s_bfe_u32 s91, s2, 0x20003")
    e(f"s_add_u32 s{s_b}, s90, s91")
    e(f"s_bfe_u32 s{s_hg}, s2, 0x20001")
    e(f"s_lshr_b32 s{s_r2}, s2, 5")

def srd(e, d, lo, hi, off_s, nrec):
    if off_s is None:
        e(f"s_mov_b32 s{d}, s{lo}"); e(f"s_mov_b32 s{d+1}, s{hi}")
    else:
        e(f"s_add_u32 s{d}, s{lo}, s{off_s}"); e(f"s_addc_u32 s{d+1}, s{hi}, 0")
    e(f"s_mov_b32 s{d+2}, {nrec}")
    e(f"s_mov_b32 s{d+3}, 0x20000")

def gen_attn(e, opt):
    kname = "attn_kernel"
    LA = opt.get("LA", 5)
    KVF = opt.get("kvflag", " nt")
    XWF = opt.get("xwflag", "")
    diag = opt.get("diag", False)
    kernel_header(e, kname)
    e("s_cmp_ge_u32 s2, 256")
    e("s_cbranch_scc1 L_attn_done")
    nstamp = [0]
    def stamp():
        if not diag: return
        k = nstamp[0]; nstamp[0] += 1
        assert k < 24
        e(f"s_memtime s[{92}:{93}]")
        e("s_waitcnt lgkmcnt(0)")
        e(f"s_mov_b32 s{40+k}, s92")
    if diag:
        e("s_memrealtime s[94:95]")
    e("s_load_dwordx8 s[64:71], s[0:1], 0")
    e("s_load_dwordx2 s[72:73], s[0:1], 56")
    V_L, V_T0, V_T1, V_T2, V_T3 = 24, 25, 26, 27, 28
    e("v_lshrrev_b32 v1, 6, v0")
    e(f"v_and_b32 v{V_L}, 63, v0")
    e("v_readfirstlane_b32 s3, v1")
    decode_wg(e, 4, 5, 6)
    e("s_lshl_b32 s7, s5, 3")
    e("s_add_u32 s7, s7, s6")
    e("s_lshl_b32 s28, s3, 12")
    VK, VV, VAX, VBW, VAK, VBV, VOS = 2, 6, 7, 8, 9, 10, 11
    RA = 12
    VM, VLS, VMC, VAL = 20, 21, 22, 23
    VX, VW = 128, 132
    Oacc, Sreg = 64, 128
    e(f"v_lshrrev_b32 v{V_T0}, 4, v{V_L}")
    e(f"v_and_b32 v{V_T1}, 15, v{V_L}")
    e(f"v_lshlrev_b32 v{V_T2}, 2, v{V_T0}")
    e(f"v_xor_b32 v{V_T2}, v{V_T2}, v{V_T1}")
    e(f"v_lshlrev_b32 v{V_T2}, 4, v{V_T2}")
    e(f"v_lshl_add_u32 v{V_T3}, v{V_T0}, 8, s28")
    e(f"v_add_u32 v{VV}, v{V_T2}, v{V_T3}")
    e("s_lshl_b32 s29, s3, 17")
    e(f"v_lshl_add_u32 v{VW}, v{V_T0}, 13, s29")
    e(f"v_add_u32 v{VW}, v{VW}, v{V_T2}")
    for jj in range(1, 4):
        e(f"v_add_u32 v{VW+jj}, {jj*(32768-1024)}, v{VW}")
    for jj in range(4):
        e(f"v_add_u32 v{V_T2}, {4*jj}, v{V_T0}")
        e(f"v_xor_b32 v{V_T2}, v{V_T2}, v{V_T1}")
        e(f"v_lshl_add_u32 v{VK+jj}, v{V_T2}, 4, v{V_T3}")
    e(f"v_lshrrev_b32 v{V_T2}, 3, v{V_L}")
    e("s_lshl_b32 s29, s3, 5")
    e(f"v_add_u32 v{V_T2}, s29, v{V_T2}")
    e(f"v_mul_u32_u24 v{V_T2}, 1280, v{V_T2}")
    e(f"v_and_b32 v{V_T3}, 7, v{V_L}")
    for jj in range(4):
        e(f"v_add_u32 v29, {4*jj}, v{V_T0}")
        e(f"v_and_b32 v29, 7, v29")
        e(f"v_xor_b32 v29, v29, v{V_T3}")
        e(f"v_lshl_add_u32 v29, v29, 4, v{V_T2}")
        e(f"v_add_u32 v{VX+jj}, {jj*(8*1280-1024)}, v29")
    e("s_waitcnt lgkmcnt(0)")
    SX, SW, SK, SV, SO = 8, 12, 16, 20, 24
    e("s_mul_i32 s29, s4, 163840")
    srd(e, SX, 64, 65, 29, 163840)
    e("s_lshl_b32 s29, s7, 8")
    e(f"s_sub_u32 s30, {640*8192}, s29")
    srd(e, SW, 70, 71, 29, "s30")
    e("s_lshl_b32 s30, s4, 5")
    e("s_add_u32 s30, s30, s7")
    e("s_lshl_b32 s29, s30, 17")
    srd(e, SK, 66, 67, 29, 131072)
    srd(e, SV, 68, 69, 29, 131072)
    e("s_lshl_b32 s29, s30, 15")
    srd(e, SO, 72, 73, 29, 32768)
    tiles = []
    for j in range(10):
        tiles.append(("x", j)); tiles.append(("w", j))
    for hh in range(2):
        for j in range(4): tiles.append(("k", hh*4+j))
        for j in range(4): tiles.append(("v", hh*4+j))
    vm = []
    def issue_tile(n):
        kind, j = tiles[n]
        slot = n % 10
        e(f"s_add_u32 m0, s28, {slot*16384}")
        if kind == "x":
            e(f"s_movk_i32 s31, {128*j}")
            for jj in range(4):
                e(f"buffer_load_dwordx4 v{VX+jj}, s[{SX}:{SX+3}], s31 offen offset:{1024*jj}{XWF} lds"); vm.append(n)
        elif kind == "w":
            e(f"s_mov_b32 s31, {524288*j}")
            for jj in range(4):
                e(f"buffer_load_dwordx4 v{VW+jj}, s[{SW}:{SW+3}], s31 offen offset:{1024*jj}{XWF} lds"); vm.append(n)
        elif kind == "k":
            e(f"s_mov_b32 s31, {16384*j}")
            for jj in range(4):
                e(f"buffer_load_dwordx4 v{VK+jj}, s[{SK}:{SK+3}], s31 offen offset:{1024*jj}{KVF} lds"); vm.append(n)
        else:
            e(f"s_mov_b32 s31, {16384*j}")
            for jj in range(4):
                e(f"buffer_load_dwordx4 v{VV}, s[{SV}:{SV+3}], s31 offen offset:{1024*jj}{KVF} lds"); vm.append(n)
    stamp()
    for n in range(10): issue_tile(n)
    e(f"v_and_b32 v{V_T0}, 31, v{V_L}")
    e(f"v_lshrrev_b32 v{V_T1}, 5, v{V_L}")
    e(f"v_bfe_u32 v{V_T2}, v{V_L}, 1, 3")
    e(f"v_xor_b32 v{V_T2}, v{V_T2}, v{V_T1}")
    e(f"v_lshlrev_b32 v{V_T2}, 4, v{V_T2}")
    e(f"v_lshl_add_u32 v{V_T3}, v{V_T0}, 7, s28")
    e(f"v_add_u32 v{VAX}, v{V_T2}, v{V_T3}")
    e(f"v_and_b32 v{V_T2}, 19, v{V_T0}")
    e(f"v_bfe_u32 v{V_T3}, v{V_T0}, 2, 1")
    e(f"v_lshl_or_b32 v{V_T2}, v{V_T3}, 3, v{V_T2}")
    e(f"v_bfe_u32 v{V_T3}, v{V_T0}, 3, 1")
    e(f"v_lshl_or_b32 v{V_T2}, v{V_T3}, 2, v{V_T2}")
    e(f"v_and_b32 v{V_T3}, 15, v{V_T2}")
    e(f"v_xor_b32 v{V_T3}, v{V_T3}, v{V_T1}")
    e(f"v_lshlrev_b32 v{V_T3}, 4, v{V_T3}")
    e(f"v_lshl_add_u32 v{VAK}, v{V_T2}, 8, v{V_T3}")
    e(f"v_bfe_u32 v{V_T2}, v{V_L}, 2, 2")
    e(f"v_mul_u32_u24 v{V_T2}, 320, v{V_T2}")
    e(f"v_lshl_add_u32 v{V_T2}, v{V_T1}, 11, v{V_T2}")
    e(f"v_bfe_u32 v{V_T3}, v{V_L}, 4, 1")
    e(f"v_lshl_add_u32 v{V_T2}, v{V_T3}, 5, v{V_T2}")
    e(f"v_and_b32 v{V_T3}, 3, v{V_L}")
    e(f"v_lshl_add_u32 v{VBV}, v{V_T3}, 3, v{V_T2}")
    e(f"v_and_b32 v{V_T3}, 1, v{V_L}")
    e(f"v_lshl_add_u32 v{V_T2}, v{V_T3}, 4, v{V_T2}")
    e(f"v_bfe_u32 v{V_T3}, v{V_L}, 1, 1")
    e(f"v_lshl_add_u32 v{VBW}, v{V_T3}, 3, v{V_T2}")
    e(f"v_and_b32 v{V_T2}, 15, v{V_L}")
    e(f"v_lshlrev_b32 v{V_T2}, 4, v{V_T2}")
    e(f"v_lshl_add_u32 v{V_T2}, v{V_T1}, 8, v{V_T2}")
    e(f"v_bfe_u32 v{V_T3}, v{V_L}, 4, 1")
    e(f"v_lshl_add_u32 v{V_T2}, v{V_T3}, 10, v{V_T2}")
    e("s_lshl_b32 s29, s3, 13")
    e(f"v_add_u32 v{VOS}, s29, v{V_T2}")
    e(f"s_mov_b32 s32, {f32bits(SCALE)}")

    R = LA + 2
    AF = 0
    XF = 4 * R
    XR = 3
    QF = 64
    assert XF + 4 * XR <= QF
    slots = []
    cnt = [0, 0]
    def add_slot(unit, reads, mf, gap=None):
        slots.append(dict(unit=unit, reads=reads, mf=mf, gap=gap))
    for j in range(10):
        for s in range(4):
            xi = (j * 4 + s) % XR
            for t in range(4):
                k = len(slots); ab = AF + 4 * (k % R)
                rd = []
                if t == 0:
                    rd.append(f"ds_read_b128 {ar(XF+4*xi,4)}, v{RA+4+s}")
                rd.append(f"ds_read_b64_tr_b16 {ar(ab,2)}, v{RA+t} offset:{s*4096}")
                rd.append(f"ds_read_b64_tr_b16 {ar(ab+2,2)}, v{RA+t} offset:{s*4096+1024}")
                c = "0" if (j == 0 and s == 0) else vr(Oacc+16*t, 16)
                add_slot(j, rd, f"v_mfma_f32_32x32x16_bf16 {vr(Oacc+16*t,16)}, {ar(ab,4)}, {ar(XF+4*xi,4)}, {c}")
    def gap_qcvt():
        e("s_nop 7"); e("s_nop 3")
        for i in range(32):
            e(f"v_cvt_pk_bf16_f32 v{32+i}, v{Oacc+2*i}, v{Oacc+2*i+1}")
        for i in range(32):
            e(f"v_accvgpr_write_b32 a{QF+i}, v{32+i}")
    def gap_softmax(hh):
        def f():
            e("s_nop 7"); e("s_nop 3")
            T = 24
            for c in range(4):
                b = Sreg + 32 * c
                e(f"v_max3_f32 v{T+c}, v{b}, v{b+1}, v{b+2}")
            for i in range(14):
                for c in range(4):
                    b = Sreg + 32 * c + 3 + 2 * i
                    e(f"v_max3_f32 v{T+c}, v{T+c}, v{b}, v{b+1}")
            for c in range(4):
                e(f"v_max_f32 v{T+c}, v{T+c}, v{Sreg+32*c+31}")
            e(f"v_max3_f32 v{T}, v{T}, v{T+1}, v{T+2}")
            e(f"v_max_f32 v{T}, v{T}, v{T+3}")
            e(f"v_mov_b32 v{T+1}, v{T}")
            e("s_nop 1")
            e(f"v_permlane32_swap_b32 v{T}, v{T+1}")
            if hh == 0:
                e(f"v_max_f32 v{VM}, v{T}, v{T+1}")
                e(f"v_mul_f32 v{VMC}, s32, v{VM}")
            else:
                e(f"v_max3_f32 v{T}, v{T}, v{T+1}, v{VM}")
                e(f"v_mul_f32 v{T+1}, s32, v{T}")
                e(f"v_sub_f32 v{VAL}, v{VMC}, v{T+1}")
                e(f"v_exp_f32 v{VAL}, v{VAL}")
                e(f"v_mov_b32 v{VMC}, v{T+1}")
                e(f"v_mov_b32 v{VM}, v{T}")
                e(f"v_mul_f32 v{VLS}, v{VLS}, v{VAL}")
                for i in range(64):
                    e(f"v_mul_f32 v{Oacc+i}, v{Oacc+i}, v{VAL}")
            for g8 in range(16):
                b = Sreg + 8 * g8
                for i in range(8):
                    e(f"v_fma_f32 v{b+i}, v{b+i}, s32, -v{VMC}")
                for i in range(8):
                    e(f"v_exp_f32 v{b+i}, v{b+i}")
                if g8 == 0:
                    for i in range(4):
                        e(f"v_add_f32 v{T+i}, v{b+i}, v{b+4+i}")
                else:
                    for i in range(8):
                        e(f"v_add_f32 v{T+(i&3)}, v{T+(i&3)}, v{b+i}")
                for i in range(4):
                    e(f"v_cvt_pk_bf16_f32 v{b+i}, v{b+2*i}, v{b+2*i+1}")
            e(f"v_add_f32 v{T}, v{T}, v{T+1}")
            e(f"v_add_f32 v{T+2}, v{T+2}, v{T+3}")
            if hh == 0:
                e(f"v_add_f32 v{VLS}, v{T}, v{T+2}")
            else:
                e(f"v_add_f32 v{T}, v{T}, v{T+2}")
                e(f"v_add_f32 v{VLS}, v{VLS}, v{T}")
        return f
    for hh in range(2):
        for j in range(4):
            unit = 10 + hh * 8 + j
            for u in range(2):
                for m in range(8):
                    k = len(slots); ab = AF + 4 * (k % R)
                    sb = Sreg + 32 * j + 16 * u
                    rd = [f"ds_read_b128 {ar(ab,4)}, v{RA+m} offset:{u*8192}"]
                    c = "0" if m == 0 else vr(sb, 16)
                    gap = gap_qcvt if (hh == 0 and j == 0 and u == 0 and m == 0) else None
                    add_slot(unit, rd, f"v_mfma_f32_32x32x16_bf16 {vr(sb,16)}, {ar(ab,4)}, {ar(QF+4*m,4)}, {c}", gap)
        for j in range(4):
            unit = 10 + hh * 8 + 4 + j
            for m in range(4):
                for t in range(4):
                    k = len(slots); ab = AF + 4 * (k % R)
                    pb = Sreg + 32 * j + 8 * m
                    rd = [f"ds_read_b64_tr_b16 {ar(ab,2)}, v{RA+t} offset:{m*4096}",
                          f"ds_read_b64_tr_b16 {ar(ab+2,2)}, v{RA+t} offset:{m*4096+1024}"]
                    c = "0" if (hh == 0 and j == 0 and m == 0) else vr(Oacc+16*t, 16)
                    gap = gap_softmax(hh) if (j == 0 and m == 0 and t == 0) else None
                    add_slot(unit, rd, f"v_mfma_f32_32x32x16_bf16 {vr(Oacc+16*t,16)}, {ar(ab,4)}, {vr(pb,4)}, {c}", gap)
    def unit_tiles(u):
        return [2*u, 2*u+1] if u < 10 else [u + 10]
    issued = [10]
    def enter_unit(u):
        last = unit_tiles(u)[-1]
        idx = max(i for i, t in enumerate(vm) if t == last)
        n_after = len(vm) - 1 - idx
        e(f"s_waitcnt vmcnt({n_after})")
        e("s_barrier")
        if u >= 2:
            for t in unit_tiles(u - 2):
                n = t + 10
                if n < len(tiles):
                    assert n == issued[0]; issued[0] += 1
                    issue_tile(n)
        if u < 10:
            sx = (2*u % 10) * 16384; sw = ((2*u+1) % 10) * 16384
            e(f"v_add_u32 v{RA}, {sw}, v{VBW}")
            e(f"v_add_u32 v{RA+4}, {sx}, v{VAX}")
            for t in range(1, 4):
                e(f"v_xor_b32 v{RA+t}, {t<<6}, v{RA}")
                e(f"v_xor_b32 v{RA+4+t}, {t<<5}, v{RA+4}")
        else:
            n = u + 10
            so = (n % 10) * 16384
            if tiles[n][0] == "k":
                e(f"v_add_u32 v{RA}, {so}, v{VAK}")
                for m in range(1, 8):
                    e(f"v_xor_b32 v{RA+m}, {m<<5}, v{RA}")
            else:
                e(f"v_add_u32 v{RA}, {so}, v{VBV}")
                for t in range(1, 4):
                    e(f"v_xor_b32 v{RA+t}, {t<<6}, v{RA}")
    N = len(slots)
    rd_issued = 0
    lg = []
    cur_unit = -1
    def issue_reads(upto):
        nonlocal rd_issued, cur_unit
        while rd_issued <= upto and rd_issued < N:
            s = slots[rd_issued]
            if s["unit"] != cur_unit:
                cur_unit = s["unit"]
                enter_unit(cur_unit)
            for r in s["reads"]:
                e(r); lg.append(rd_issued)
            rd_issued += 1
    def next_gap(k):
        for i in range(k + 1, N):
            if slots[i]["gap"]: return i
        return N
    for k in range(N):
        s = slots[k]
        if s["gap"]:
            stamp()
            s["gap"]()
            stamp()
            issue_reads(k + LA - 1)
        elif k == 0:
            issue_reads(LA - 1)
            stamp()
        idx = max(i for i, t in enumerate(lg) if t == k)
        n_after = len(lg) - 1 - idx
        assert n_after <= 15
        e(f"s_waitcnt lgkmcnt({n_after})")
        e(s["mf"])
        issue_reads(min(k + LA, next_gap(k) - 1))
    stamp()
    T = 24
    e(f"v_mov_b32 v{T}, v{VLS}")
    e("s_nop 1")
    e(f"v_permlane32_swap_b32 v{T}, v{VLS}")
    e(f"v_add_f32 v{T}, v{T}, v{VLS}")
    e(f"v_rcp_f32 v{T}, v{T}")
    e("s_nop 7")
    e("s_movk_i32 s31, 4096")
    OSF = opt.get("ostflag", "")
    for t in range(4):
        for i in range(16):
            e(f"v_mul_f32 v{Oacc+16*t+i}, v{Oacc+16*t+i}, v{T}")
        for u in range(2):
            d = 32 + 8 * t + 4 * u
            b = Oacc + 16 * t + 4 * u
            e(f"v_cvt_pk_bf16_f32 v{d}, v{b}, v{b+1}")
            e(f"v_cvt_pk_bf16_f32 v{d+1}, v{b+2}, v{b+3}")
            e(f"v_cvt_pk_bf16_f32 v{d+2}, v{b+8}, v{b+9}")
            e(f"v_cvt_pk_bf16_f32 v{d+3}, v{b+10}, v{b+11}")
            off = t * 2048 + u * 512
            so = "s31" if off >= 4096 else "0"
            e(f"buffer_store_dwordx4 {vr(d,4)}, v{VOS}, s[{SO}:{SO+3}], {so} offen offset:{off & 4095}{OSF}")
    if diag:
        e("s_waitcnt vmcnt(0)")
        stamp()
        e("s_memrealtime s[96:97]")
        e("s_waitcnt lgkmcnt(0)")
        e(f"s_mov_b32 s29, {WS_DIAG}")
        srd(e, 8, 72, 73, 29, 1 << 20)
        e("s_lshl_b32 s29, s2, 2"); e("s_add_u32 s29, s29, s3"); e("s_lshl_b32 s29, s29, 7")
        e("v_mov_b32 v1, s29")
        vals = [f"s{40+k}" for k in range(nstamp[0])] + ["0"] * (24 - nstamp[0]) + ["s94", "s95", "s96", "s97"]
        e("s_getreg_b32 s98, hwreg(HW_REG_XCC_ID)")
        vals += ["s98", "0", "0", "0"]
        for q in range(8):
            for i in range(4): e(f"v_mov_b32 v{4+i}, {vals[4*q+i]}")
            e(f"buffer_store_dwordx4 v[4:7], v1, s[8:11], 0 offen offset:{16*q}")
            e("s_nop 1")
    e.label("L_attn_done")
    e("s_endpgm")
    return kname, 256 + 96, 256

def gen_p4(e, opt):
    kname = "proj_kernel"
    kernel_header(e, kname)
    e("s_cmp_ge_u32 s2, 256")
    e("s_cbranch_scc1 L_p4_done")
    e("s_load_dwordx2 s[64:65], s[0:1], 32")
    e("s_load_dwordx2 s[72:73], s[0:1], 56")
    e("v_lshrrev_b32 v1, 6, v0")
    e("v_and_b32 v24, 63, v0")
    e("v_readfirstlane_b32 s3, v1")
    decode_wg(e, 4, 5, 6)
    VWO = 2
    for ee in range(5):
        e(f"v_add_u32 v25, {64*ee}, v24")
        e(f"v_mul_u32_u24 v26, 6554, v25")
        e(f"v_lshrrev_b32 v26, 16, v26")
        e(f"v_mul_u32_u24 v27, 10, v26")
        e(f"v_sub_u32 v27, v25, v27")
        e(f"v_mul_u32_u24 v26, 1280, v26")
        e(f"v_lshl_add_u32 v26, v27, 4, v26")
        comp = 1024 * ee if ee < 4 else 0
        e(f"v_subrev_u32 v{VWO+ee}, {comp}, v26")
    VOL = 7
    e("s_lshl_b32 s29, s3, 13")
    e(f"v_lshl_add_u32 v{VOL}, v24, 4, s29")
    VB = 8
    e("v_lshrrev_b32 v25, 2, v24")
    e("v_mul_u32_u24 v25, 160, v25")
    e("v_and_b32 v26, 3, v24")
    e(f"v_lshl_add_u32 v{VB}, v26, 3, v25")
    e(f"v_add_u32 v{VB+1}, {12*5120}, v{VB}")
    e(f"v_add_u32 v{VB+2}, {24*5120}, v{VB}")
    e("s_waitcnt lgkmcnt(0)")
    SWO, SO, SP = 8, 12, 16
    e(f"s_mul_i32 s29, s5, {1024*1280}")
    e("s_mul_i32 s30, s6, 160")
    e("s_add_u32 s29, s29, s30")
    e(f"s_sub_u32 s30, {4096*1280}, s29")
    srd(e, SWO, 64, 65, 29, "s30")
    e("s_lshl_b32 s29, s4, 2"); e("s_add_u32 s29, s29, s5"); e("s_lshl_b32 s29, s29, 18")
    srd(e, SO, 72, 73, 29, 8 * 32768)
    e("s_lshl_b32 s29, s4, 3"); e("s_add_u32 s29, s29, s6"); e("s_lshl_b32 s29, s29, 2"); e("s_add_u32 s29, s29, s5")
    e("s_lshl_b32 s29, s29, 2"); e("s_add_u32 s29, s29, s3"); e("s_mul_i32 s29, s29, 10240")
    e(f"s_add_u32 s29, s29, {WS_P}")
    srd(e, SP, 72, 73, 29, 10240)
    e("s_mul_i32 s33, s3, 5120")
    e(f"s_mul_i32 s34, s3, {32*1280}")
    vm = []
    for hh in range(8):
        e(f"s_add_u32 m0, s33, {hh*4*5120}")
        e(f"s_add_u32 s31, s34, {hh*4*32*1280}")
        for ee in range(4):
            e(f"buffer_load_dwordx4 v{VWO+ee}, s[{SWO}:{SWO+3}], s31 offen offset:{1024*ee} lds"); vm.append(hh)
        e(f"s_add_u32 m0, s33, {hh*4*5120+4096}")
        e(f"s_mov_b32 s35, {hh*32768}")
        e(f"buffer_load_dwordx4 v{VWO+4}, s[{SWO}:{SWO+3}], s31 offen lds"); vm.append(hh)
        e(f"s_mov_b32 s36, {hh*32768+4096}")
        for f in range(8):
            so = "s35" if f < 4 else "s36"
            e(f"buffer_load_dwordx4 {ar((hh*8+f)*4,4)}, v{VOL}, s[{SO}:{SO+3}], {so} offen offset:{(f&3)*1024}"); vm.append(hh)
    ACC = 64
    FR = 128
    LA = 6; R = 8
    slots = []
    for a in range(32):
        for tn in range(5):
            k = len(slots); fb = FR + 4 * (k % R)
            base = VB + a // 12; off = (a % 12) * 5120 + tn * 32
            rd = [f"ds_read_b64_tr_b16 {vr(fb,2)}, v{base} offset:{off}", f"ds_read_b64_tr_b16 {vr(fb+2,2)}, v{base} offset:{off+2560}"]
            mf = []
            for z in range(2):
                d = ACC + 4 * (z * 5 + tn)
                c = "0" if a == 0 else vr(d, 4)
                mf.append(f"v_mfma_f32_16x16x32_bf16 {vr(d,4)}, {vr(fb,4)}, {ar((a*2+z)*4,4)}, {c}")
            slots.append(dict(unit=a // 4, reads=rd, mf=mf))
    N = len(slots); lg = []; rd_issued = 0; cur = -1
    def issue_reads(upto):
        nonlocal rd_issued, cur
        while rd_issued <= upto and rd_issued < N:
            s = slots[rd_issued]
            if s["unit"] != cur:
                cur = s["unit"]
                idx = max(i for i, t in enumerate(vm) if t == cur)
                e(f"s_waitcnt vmcnt({min(63, len(vm)-1-idx)})")
                e("s_barrier")
            for r in s["reads"]:
                e(r); lg.append(rd_issued)
            rd_issued += 1
    issue_reads(LA - 1)
    for k in range(N):
        idx = max(i for i, t in enumerate(lg) if t == k)
        e(f"s_waitcnt lgkmcnt({len(lg)-1-idx})")
        for m in slots[k]["mf"]: e(m)
        issue_reads(k + LA)
    e("s_nop 7")
    e("v_lshlrev_b32 v1, 4, v24")
    e("s_movk_i32 s31, 4096"); e("s_movk_i32 s35, 8192")
    for tau in range(10):
        so = ["0", "s31", "s35"][tau // 4]
        e(f"buffer_store_dwordx4 {vr(ACC+4*tau,4)}, v1, s[{SP}:{SP+3}], {so} offen offset:{(tau&3)*1024}")
    e.label("L_p4_done")
    e("s_endpgm")
    return kname, 512, 256

def gen_red(e, opt):
    kname = "red_kernel"
    kernel_header(e, kname)
    e("s_cmp_ge_u32 s2, 256")
    e("s_cbranch_scc1 L_red_done")
    e("s_load_dwordx2 s[64:65], s[0:1], 40")
    e("s_load_dwordx2 s[72:73], s[0:1], 56")
    e("v_lshrrev_b32 v1, 6, v0")
    e("v_and_b32 v24, 63, v0")
    e("v_readfirstlane_b32 s3, v1")
    decode_wg(e, 4, 5, 6)
    e("v_lshlrev_b32 v1, 4, v24")
    e("v_and_b32 v2, 15, v24"); e("v_mul_u32_u24 v2, 1280, v2")
    e("v_lshrrev_b32 v3, 4, v24"); e("v_lshl_add_u32 v2, v3, 3, v2")
    e("s_waitcnt lgkmcnt(0)")
    SP, SOUT = 8, 12
    e("s_lshl_b32 s29, s4, 3"); e("s_add_u32 s29, s29, s6"); e("s_lshl_b32 s29, s29, 4"); e("s_add_u32 s29, s29, s5")
    e("s_mul_i32 s29, s29, 10240"); e(f"s_add_u32 s29, s29, {WS_P}")
    srd(e, SP, 72, 73, 29, 3 * 40960 + 10240)
    e("s_lshl_b32 s29, s4, 2"); e("s_add_u32 s29, s29, s5"); e(f"s_mul_i32 s29, s29, {32*1280}")
    e("s_mul_i32 s30, s6, 160"); e("s_add_u32 s29, s29, s30")
    e(f"s_sub_u32 s30, {1024*1280}, s29")
    srd(e, SOUT, 64, 65, 29, "s30")
    for q in range(3):
        if q == 2:
            e("s_cmp_ge_u32 s3, 2"); e("s_cbranch_scc1 L_red_skipld")
        e(f"s_lshl_b32 s31, s3, 10"); e(f"s_add_u32 s31, s31, {q*4096}")
        for hg in range(4):
            e(f"buffer_load_dwordx4 {vr(32+16*q+4*hg,4)}, v1, s[{SP}:{SP+3}], s31 offen")
            if hg < 3: e(f"s_add_u32 s31, s31, 40960")
    e.label("L_red_skipld")
    e("s_waitcnt vmcnt(0)")
    for q in range(3):
        if q == 2:
            e("s_cmp_ge_u32 s3, 2"); e("s_cbranch_scc1 L_red_done")
        b = 32 + 16 * q
        for i in range(4):
            e(f"v_add_f32 v{b+i}, v{b+i}, v{b+4+i}")
            e(f"v_add_f32 v{b+8+i}, v{b+8+i}, v{b+12+i}")
        for i in range(4):
            e(f"v_add_f32 v{b+i}, v{b+i}, v{b+8+i}")
        e(f"v_cvt_pk_bf16_f32 v{b+4}, v{b}, v{b+1}")
        e(f"v_cvt_pk_bf16_f32 v{b+5}, v{b+2}, v{b+3}")
        e(f"s_add_u32 s31, s3, {4*q}")
        e("s_cmp_ge_u32 s31, 5")
        e(f"s_cselect_b32 s33, {16*1280 - 5*32}, 0")
        e("s_lshl_b32 s31, s31, 5")
        e("s_add_u32 s31, s31, s33")
        e(f"buffer_store_dwordx2 {vr(b+4,2)}, v2, s[{SOUT}:{SOUT+3}], s31 offen")
    e.label("L_red_done")
    e("s_endpgm")
    return kname, 96, 96

def gen(opt):
    e = Asm()
    e.raw("; @launch kernel=attn_kernel grid=(256,1,1) block=(256,1,1) lds=163840")
    if not opt.get("only1"):
        e.raw("; @launch kernel=proj_kernel grid=(256,1,1) block=(256,1,1) lds=163840")
        e.raw("; @launch kernel=red_kernel grid=(256,1,1) block=(256,1,1) lds=0")
    e.raw('.amdgcn_target "amdgcn-amd-amdhsa--gfx950"')
    e.raw(".text")
    ks = [gen_attn(e, opt), gen_p4(e, opt), gen_red(e, opt)]
    e.raw('.section .rodata,"a"')
    for k, nfv, acc in ks:
        kernel_desc(e, k, nfv, acc)
    return e.text()

if __name__ == "__main__":
    out = sys.argv[1]
    opt = {}
    for a in sys.argv[2:]:
        k, v = a.split("=")
        try: v = int(v)
        except: pass
        if k.endswith("flag"): v = (" " + v.replace("+", " ")) if v not in ("none", 0) else ""
        opt[k] = v
    open(out, "w").write(gen(opt))
```

```python
import re, struct, math

def f32bits(x):
    return struct.unpack("<I", struct.pack("<f", x))[0]

def vr(b, n=1, p="v"):
    return f"{p}{b}" if n == 1 else f"{p}[{b}:{b+n-1}]"
def ar(b, n=1):
    return vr(b, n, "a")
def sr(b, n=1):
    return vr(b, n, "s")

_REG = re.compile(r"(?<![\w.])(-?)(?:abs\()?([vas])(?:(\d+)|\[(\d+):(\d+)\])")
def regs_of(op):
    out = []
    for m in _REG.finditer(op):
        p = m.group(2)
        if m.group(3) is not None:
            out.append((p, int(m.group(3))))
        else:
            out += [(p, i) for i in range(int(m.group(4)), int(m.group(5)) + 1)]
    if re.search(r"\bvcc\b", op): out.append(("s", "vcc"))
    if re.search(r"\bm0\b", op): out.append(("s", "m0"))
    if re.search(r"\bexec\b", op): out.append(("s", "exec"))
    return out

TRANS = ("v_exp_f32", "v_rcp_f32", "v_log_f32", "v_rsq_f32", "v_sqrt_f32")

class Ins:
    __slots__ = ("text", "op", "kind", "dst", "src", "srcC", "passes", "states")
    def __init__(self, text):
        self.text = text
        t = text.split(";")[0].strip()
        parts = t.split(None, 1)
        self.op = op = parts[0]
        ops = [x.strip() for x in parts[1].split(",")] if len(parts) > 1 else []
        self.dst = []; self.src = []; self.srcC = []; self.passes = 0; self.states = 1
        if op == "s_nop":
            self.kind = "nop"; self.states = int(ops[0], 0) + 1
        elif op.startswith("v_mfma"):
            self.kind = "mfma"
            self.dst = regs_of(ops[0]); self.src = regs_of(ops[1]) + regs_of(ops[2]); self.srcC = regs_of(ops[3])
            self.passes = 8 if "32x32x16" in op else 4
        elif op.startswith("v_"):
            self.kind = "valu"
            self.dst = regs_of(ops[0])
            for o in ops[1:]: self.src += regs_of(o)
            if op.startswith("v_permlane") and "swap" in op:
                self.dst = regs_of(ops[0]) + regs_of(ops[1]); self.src = list(self.dst)
            if op.startswith("v_fmac") or op.startswith("v_writelane"): self.src += self.dst
            if op.startswith("v_cndmask") and len(ops) == 3: self.src.append(("s", "vcc"))
        elif op.startswith("ds_read"):
            self.kind = "ds"; self.dst = regs_of(ops[0]); self.src = regs_of(ops[1])
        elif op.startswith("ds_write"):
            self.kind = "ds"
            for o in ops: self.src += regs_of(o)
        elif op.startswith("buffer_load") or op.startswith("global_load"):
            self.kind = "vmem"
            if " lds" in t:
                for o in ops: self.src += regs_of(o)
                self.src.append(("s", "m0"))
            else:
                self.dst = regs_of(ops[0])
                for o in ops[1:]: self.src += regs_of(o)
        elif op.startswith("buffer_store") or op.startswith("global_store") or op.startswith("buffer_atomic"):
            self.kind = "vmemst"
            for o in ops: self.src += regs_of(o)
            self.srcC = regs_of(ops[0])
        elif op.startswith("s_"):
            self.kind = "salu"
            if op.startswith("s_cmp") or op.startswith("s_cbranch") or op in ("s_branch", "s_barrier", "s_waitcnt", "s_endpgm", "s_sleep", "s_setprio"):
                for o in ops: self.src += regs_of(o)
            else:
                if ops: self.dst = regs_of(ops[0])
                for o in ops[1:]: self.src += regs_of(o)
        else:
            self.kind = "other"

def required(p, c):
    need = 0
    pd = set(p.dst)
    if p.kind == "mfma":
        tab_rw = {4: 8, 8: 12}[p.passes]
        if c.kind == "mfma":
            if pd & set(c.src): need = max(need, tab_rw)
            if pd & set(c.srcC):
                if not (c.srcC == p.dst and c.passes == p.passes): need = max(need, {4: 6, 8: 10}[p.passes])
        elif c.kind in ("valu", "ds", "vmem", "vmemst"):
            if pd & (set(c.src) | set(c.dst)): need = max(need, tab_rw)
        if c.kind == "valu" and set(p.srcC) & set(c.dst): need = max(need, {4: 3, 8: 7}[p.passes])
    elif p.kind == "valu":
        vd = {r for r in pd if r[0] in "va"}
        sd = {r for r in pd if r[0] == "s"}
        if c.kind == "mfma" and vd & (set(c.src) | set(c.srcC)): need = max(need, 2)
        if c.kind == "valu":
            if c.op.startswith("v_permlane") and vd & set(c.src): need = max(need, 2)
            if (c.op.startswith("v_readfirstlane") or c.op.startswith("v_readlane")) and vd & set(c.src): need = max(need, 1)
            if p.op in TRANS and c.op not in TRANS and vd & set(c.src): need = max(need, 1)
            if "dpp" in c.text and vd & set(c.src): need = max(need, 2)
            if sd & set(c.src): need = max(need, 2)
        if c.kind in ("vmem", "vmemst") and sd & set(c.src): need = max(need, 5)
        if c.kind == "salu" and sd & set(c.src): need = max(need, 1)
        if c.kind == "mfma" and ("s", "exec") in sd: need = max(need, 4)
    elif p.kind == "salu":
        if ("s", "m0") in pd and c.kind == "vmem" and ("s", "m0") in c.src: need = max(need, 1)
    elif p.kind == "vmemst":
        if len(p.srcC) >= 3 and c.kind == "valu" and set(p.srcC) & set(c.dst): need = max(need, 2)
        elif len(p.srcC) >= 3 and set(p.srcC) & set(c.dst): need = max(need, 1)
    return need

class Asm:
    def __init__(self):
        self.L = []
        self.nnop = 0
    def __call__(self, s):
        ins = Ins(s)
        dist = 0
        need_pad = 0
        for it in reversed(self.L):
            if not it[0]: continue
            p = it[2]
            r = required(p, ins)
            if r > dist: need_pad = max(need_pad, r - dist)
            dist += p.states
            if dist >= 20: break
        while need_pad > 0:
            n = min(need_pad, 16)
            t = f"s_nop {n-1}"
            self.L.append((True, "  " + t, Ins(t))); self.nnop += 1
            need_pad -= n
        self.L.append((True, "  " + s, ins))
    def label(self, s):
        self.L.append((False, s + ":", None))
    def raw(self, s):
        self.L.append((False, s, None))
    def text(self):
        return "\n".join(x[1] for x in self.L) + "\n"

def kernel_header(e, kname):
    e.raw(f".globl {kname}")
    e.raw(".p2align 8")
    e.raw(f".type {kname},@function")
    e.label(kname)

def kernel_desc(e, kname, nfv, acc, nsg=102):
    e.raw(".p2align 6")
    e.raw(f".amdhsa_kernel {kname}")
    e.raw(f"  .amdhsa_next_free_vgpr {nfv}")
    e.raw(f"  .amdhsa_next_free_sgpr {nsg}")
    e.raw(f"  .amdhsa_accum_offset {acc}")
    e.raw("  .amdhsa_group_segment_fixed_size 0")
    e.raw("  .amdhsa_kernarg_size 64")
    e.raw("  .amdhsa_user_sgpr_count 2")
    e.raw("  .amdhsa_user_sgpr_kernarg_segment_ptr 1")
    e.raw("  .amdhsa_system_sgpr_workgroup_id_x 1")
    e.raw(".end_amdhsa_kernel")

def srd(e, d, lo, hi, off_s, nrec):
    if off_s is None:
        e(f"s_mov_b32 s{d}, s{lo}"); e(f"s_mov_b32 s{d+1}, s{hi}")
    else:
        e(f"s_add_u32 s{d}, s{lo}, s{off_s}"); e(f"s_addc_u32 s{d+1}, s{hi}, 0")
    e(f"s_mov_b32 s{d+2}, {nrec}")
    e(f"s_mov_b32 s{d+3}, 0x20000")
```

```python
import sys, math
sys.path.insert(0, "gen")
from asmlib import *
NAME = "standalone__gqa_block_cached__near_ridge"
WS_O = 0
WS_P = 16 << 20
WS_F = 28 << 20
WS_DIAG = 32 << 20
SCALE = math.log2(math.e) / math.sqrt(128.0)

def gen(opt):
    e = Asm()
    kname = NAME + "_kernel"
    e.raw("; @launch grid=(256,1,1) block=(256,1,1) lds=163840")
    e.raw('.amdgcn_target "amdgcn-amd-amdhsa--gfx950"')
    e.raw(".text")
    kernel_header(e, kname)
    LA = opt.get("LA", 5)
    D = opt.get("d", 3)
    KVF = opt.get("kvflag", " nt")
    XWF = opt.get("xwflag", "")
    WOF = opt.get("woflag", "")
    diag = opt.get("diag", 0)
    ROLES = opt.get("roles", 1)
    ROT = opt.get("rot", 1)
    FORCE_SLOW = opt.get("slow", 0)
    STOP = opt.get("stop", 0)
    lab = [0]
    def newlab(p):
        lab[0] += 1
        return f"L_{p}{lab[0]}"
    nstamp = [0]
    def stamp():
        if not diag: return
        k = nstamp[0]; nstamp[0] += 1
        assert k < 24
        e("s_memtime s[92:93]")
        e("s_waitcnt lgkmcnt(0)")
        e(f"s_mov_b32 s{40+k}, s92")
    S_W, S_B, S_HG, S_HI, S_H = 3, 4, 5, 6, 7
    SX, SW, SK, SV, SO = 8, 12, 16, 20, 24
    S_W4K, S_T0, S_T1, S_SO, S_C = 28, 29, 30, 31, 32
    S_ROLE, S_KT, S_FAST, S_SX, S_SW2 = 33, 34, 35, 36, 37
    S_WL, S_WG = 38, 39
    SWO, SOG, SF, SP = 80, 84, 88, 96
    VK, VV, VAX, VBW, VAK = 2, 6, 7, 8, 9
    VL16 = 10
    VDB = 11
    RA = 12
    VM, VMC, VAL = 20, 21, 22
    V_L, T0, T1, T2, T3, T4 = 24, 25, 26, 27, 28, 29
    VZ = 30
    VPO = 31
    QF = 32
    Oacc, Sreg = 64, 128
    VX, VW = 128, 132
    VWO = 23
    R = LA + 2
    AF = 0; XF = 4 * R; XR = 3
    ONES = 44; LACC = 48
    assert XF + 4 * XR <= ONES
    AWO = 64

    e("s_cmp_ge_u32 s2, 256")
    e("s_cbranch_scc1 L_done")
    if diag: e("s_memrealtime s[94:95]")
    e("s_load_dwordx16 s[64:79], s[0:1], 0")
    e("v_lshrrev_b32 v1, 6, v0")
    e(f"v_and_b32 v{V_L}, 63, v0")
    e(f"v_readfirstlane_b32 s{S_W}, v1")
    e("s_and_b32 s100, s2, 1")
    e("s_lshl_b32 s100, s100, 2")
    e("s_bfe_u32 s101, s2, 0x20003")
    e(f"s_add_u32 s{S_B}, s100, s101")
    e(f"s_bfe_u32 s{S_HG}, s2, 0x20001")
    e(f"s_lshr_b32 s{S_HI}, s2, 5")
    e(f"s_lshl_b32 s{S_H}, s{S_HG}, 3")
    e(f"s_add_u32 s{S_H}, s{S_H}, s{S_HI}")
    e(f"s_add_u32 s{S_ROLE}, s101, s{S_HI}")
    e(f"s_and_b32 s{S_ROLE}, s{S_ROLE}, {1 if ROLES else 0}")
    if ROT:
        if ROLES:
            e(f"s_lshr_b32 s100, s{S_HI}, 1")
            e("s_lshl_b32 s100, s100, 2")
            e(f"s_lshr_b32 s{S_KT}, 0x8530, s100")
            e(f"s_and_b32 s{S_KT}, s{S_KT}, 15")
            e("s_lshr_b32 s100, s101, 1")
            e("s_mul_i32 s100, s100, 5")
            e(f"s_add_u32 s{S_KT}, s{S_KT}, s100")
        else:
            e("s_lshl_b32 s100, s101, 2")
            e(f"s_lshr_b32 s{S_KT}, 0x8530, s100")
            e(f"s_and_b32 s{S_KT}, s{S_KT}, 15")
            e(f"s_add_u32 s{S_KT}, s{S_KT}, s{S_HI}")
        e(f"s_cmp_ge_u32 s{S_KT}, 10")
        e("s_cselect_b32 s100, 10, 0")
        e(f"s_sub_u32 s{S_KT}, s{S_KT}, s100")
    else:
        e(f"s_mov_b32 s{S_KT}, 0")
    e(f"s_lshl_b32 s{S_W4K}, s{S_W}, 12")
    e(f"v_lshrrev_b32 v{T0}, 4, v{V_L}")
    e(f"v_and_b32 v{T1}, 15, v{V_L}")
    e(f"v_lshlrev_b32 v{T2}, 2, v{T0}")
    e(f"v_xor_b32 v{T2}, v{T2}, v{T1}")
    e(f"v_lshlrev_b32 v{T2}, 4, v{T2}")
    e(f"v_lshl_add_u32 v{T3}, v{T0}, 8, s{S_W4K}")
    e(f"v_add_u32 v{VV}, v{T2}, v{T3}")
    e(f"s_lshl_b32 s{S_T0}, s{S_W}, 17")
    e(f"v_lshl_add_u32 v{VW}, v{T0}, 13, s{S_T0}")
    e(f"v_add_u32 v{VW}, v{VW}, v{T2}")
    for jj in range(1, 4):
        e(f"v_add_u32 v{VW+jj}, {jj*(32768-1024)}, v{VW}")
    for jj in range(4):
        e(f"v_add_u32 v{T2}, {4*jj}, v{T0}")
        e(f"v_xor_b32 v{T2}, v{T2}, v{T1}")
        e(f"v_lshl_add_u32 v{VK+jj}, v{T2}, 4, v{T3}")
    e(f"v_lshrrev_b32 v{T2}, 3, v{V_L}")
    e(f"s_lshl_b32 s{S_T0}, s{S_W}, 5")
    e(f"v_add_u32 v{T2}, s{S_T0}, v{T2}")
    e(f"v_mul_u32_u24 v{T2}, 1280, v{T2}")
    e(f"v_and_b32 v{T3}, 7, v{V_L}")
    for jj in range(2):
        e(f"v_add_u32 v{T4}, {4*jj}, v{T0}")
        e(f"v_xor_b32 v{T4}, v{T4}, v{T3}")
        e(f"v_lshl_add_u32 v{T4}, v{T4}, 4, v{T2}")
        if jj == 0:
            e(f"v_mov_b32 v{VX}, v{T4}")
        else:
            e(f"v_add_u32 v{VX+1}, {8*1280-1024}, v{T4}")
        e(f"v_add_u32 v{VX+2+jj}, {(2+jj)*(8*1280-1024)}, v{T4}")
    e(f"v_lshlrev_b32 v{VZ}, 7, v0")
    e(f"s_lshl_b32 s{S_T0}, s2, 10")
    e(f"v_add_u32 v{VZ}, s{S_T0}, v{VZ}")
    e("v_cmp_gt_u32 vcc, 8, v0")
    e("v_mov_b32 v1, 0x7fffffff")
    e(f"v_cndmask_b32 v{VZ}, v1, v{VZ}, vcc")
    e(f"v_mov_b32 v{T4}, 0")
    e("s_waitcnt lgkmcnt(0)")
    e(f"s_mul_i32 s{S_T0}, s{S_B}, 163840")
    srd(e, SX, 64, 65, S_T0, 163840)
    e(f"s_lshl_b32 s{S_T0}, s{S_H}, 8")
    e(f"s_sub_u32 s{S_T1}, {640*8192}, s{S_T0}")
    srd(e, SW, 70, 71, S_T0, f"s{S_T1}")
    e(f"s_lshl_b32 s{S_T1}, s{S_B}, 5")
    e(f"s_add_u32 s{S_T1}, s{S_T1}, s{S_H}")
    e(f"s_lshl_b32 s{S_T0}, s{S_T1}, 17")
    srd(e, SK, 66, 67, S_T0, 131072)
    srd(e, SV, 68, 69, S_T0, 131072)
    e(f"s_mov_b32 s{S_T0}, {WS_F}")
    srd(e, SF, 78, 79, S_T0, 256 * 1024)
    stamp()
    vmA, vmB = [], []
    def vm_add(tag, roles="AB"):
        if "A" in roles: vmA.append(tag)
        if "B" in roles: vmB.append(tag)
    def cnt_after(vm, tags):
        idx = -1
        for i, t in enumerate(vm):
            if t in tags: idx = i
        assert idx >= 0, tags
        return min(63, len(vm) - 1 - idx)
    def wait_vm(tags, done_ok_B=False):
        na = cnt_after(vmA, tags)
        nb = cnt_after(vmB, tags) if ROLES else na
        if nb >= na or not ROLES:
            e(f"s_waitcnt vmcnt({na})")
        else:
            l1 = newlab("w")
            e(f"s_waitcnt vmcnt({na})")
            e(f"s_cmp_eq_u32 s{S_ROLE}, 0")
            e(f"s_cbranch_scc1 {l1}")
            e(f"s_waitcnt vmcnt({nb})")
            e.label(l1)
    slot_of = {}
    for j in range(10):
        slot_of[("x", j)] = j % 3
        slot_of[("w", j)] = 3 + j % 3
    kvt = []
    for hh in range(2):
        kvt += [("k", hh*4+j) for j in range(4)] + [("v", hh*4+j) for j in range(4)]
    for i, t in enumerate(kvt):
        slot_of[t] = (6 + i) % 10
    def dma_ops(t):
        kind, j = t
        so = slot_of[t] * 16384
        out = []
        for jj in range(4):
            g = []
            if jj == 0:
                if kind == "x":
                    g.append(f"s_lshl_b32 s{S_SX}, s{S_KT}, 7")
                    g.append(f"s_lshl_b32 s{S_SW2}, s{S_KT}, 19")
                    g.append(f"s_add_u32 s{S_KT}, s{S_KT}, 1")
                    g.append(f"s_cmp_ge_u32 s{S_KT}, 10")
                    g.append(f"s_cselect_b32 s{S_KT}, 0, s{S_KT}")
                elif kind in "kv":
                    g.append(f"s_mov_b32 s{S_SO}, {16384*j}")
            g.append(f"s_add_u32 m0, s{S_W4K}, {so}") if jj == 0 else None
            if kind == "x":
                g.append(f"buffer_load_dwordx4 v{VX+jj}, s[{SX}:{SX+3}], s{S_SX} offen offset:{1024*jj}{XWF} lds")
            elif kind == "w":
                g.append(f"buffer_load_dwordx4 v{VW+jj}, s[{SW}:{SW+3}], s{S_SW2} offen offset:{1024*jj}{XWF} lds")
            elif kind == "k":
                g.append(f"buffer_load_dwordx4 v{VK+jj}, s[{SK}:{SK+3}], s{S_SO} offen offset:{1024*jj}{KVF} lds")
            else:
                g.append(f"buffer_load_dwordx4 v{VV}, s[{SV}:{SV+3}], s{S_SO} offen offset:{1024*jj}{KVF} lds")
            out.append(g)
        return out
    def emit_group(g, tag, roles="AB"):
        for s in g: e(s)
        vm_add(tag, roles)
    e(f"buffer_store_dword v{T4}, v{VZ}, s[{SF}:{SF+3}], 0 offen sc1"); vm_add("zero")
    NPRE = 4
    if ROLES:
        e(f"s_cmp_eq_u32 s{S_ROLE}, 0")
        e("s_cbranch_scc1 L_noB")
        for i in range(NPRE):
            for g in dma_ops(kvt[i]): emit_group(g, kvt[i], "B")
        e.label("L_noB")
    for j in range(2):
        for t in (("x", j), ("w", j)):
            for g in dma_ops(t): emit_group(g, t)
    stamp()
    e(f"v_and_b32 v{T0}, 31, v{V_L}")
    e(f"v_lshrrev_b32 v{T1}, 5, v{V_L}")
    e(f"v_bfe_u32 v{T2}, v{V_L}, 1, 3")
    e(f"v_xor_b32 v{T2}, v{T2}, v{T1}")
    e(f"v_lshlrev_b32 v{T2}, 4, v{T2}")
    e(f"v_lshl_add_u32 v{T3}, v{T0}, 7, s{S_W4K}")
    e(f"v_add_u32 v{VAX}, v{T2}, v{T3}")
    e(f"v_and_b32 v{T2}, 19, v{T0}")
    e(f"v_bfe_u32 v{T3}, v{T0}, 2, 1")
    e(f"v_lshl_or_b32 v{T2}, v{T3}, 3, v{T2}")
    e(f"v_bfe_u32 v{T3}, v{T0}, 3, 1")
    e(f"v_lshl_or_b32 v{T2}, v{T3}, 2, v{T2}")
    e(f"v_and_b32 v{T3}, 15, v{T2}")
    e(f"v_xor_b32 v{T3}, v{T3}, v{T1}")
    e(f"v_lshlrev_b32 v{T3}, 4, v{T3}")
    e(f"v_lshl_add_u32 v{VAK}, v{T2}, 8, v{T3}")
    e(f"v_bfe_u32 v{T2}, v{V_L}, 2, 2")
    e(f"v_mul_u32_u24 v{T2}, 320, v{T2}")
    e(f"v_lshl_add_u32 v{T2}, v{T1}, 11, v{T2}")
    e(f"v_bfe_u32 v{T3}, v{V_L}, 4, 1")
    e(f"v_lshl_add_u32 v{T2}, v{T3}, 5, v{T2}")
    e(f"v_and_b32 v{T3}, 1, v{V_L}")
    e(f"v_lshl_add_u32 v{T2}, v{T3}, 4, v{T2}")
    e(f"v_bfe_u32 v{T3}, v{V_L}, 1, 1")
    e(f"v_lshl_add_u32 v{VBW}, v{T3}, 3, v{T2}")
    e(f"v_lshlrev_b32 v{VL16}, 4, v{V_L}")
    e(f"s_mov_b32 s{S_C}, {f32bits(SCALE)}")
    e("v_mov_b32 v1, 0x3f803f80")
    for i in range(4): e(f"v_accvgpr_write_b32 a{ONES+i}, v1")
    for ee in range(5):
        e(f"v_add_u32 v{T0}, {64*ee}, v{V_L}")
        e(f"v_mul_u32_u24 v{T1}, 6554, v{T0}")
        e(f"v_lshrrev_b32 v{T1}, 16, v{T1}")
        e(f"v_mul_u32_u24 v{T2}, 10, v{T1}")
        e(f"v_sub_u32 v{T2}, v{T0}, v{T2}")
        e(f"v_mul_u32_u24 v{T1}, 1280, v{T1}")
        e(f"v_lshl_add_u32 v{T1}, v{T2}, 4, v{T1}")
        if 0 < ee < 4: e(f"v_subrev_u32 v{T1}, {1024*ee}, v{T1}")
        e(f"v_accvgpr_write_b32 a{AWO+ee}, v{T1}")
    e(f"s_lshl_b32 s{S_T0}, s{S_T1}, 15")
    e(f"s_lshl_b32 s100, s{S_W}, 13")
    e(f"s_add_u32 s{S_T0}, s{S_T0}, s100")
    srd(e, SO, 78, 79, S_T0, 8192)
    e(f"s_lshl_b32 s{S_T0}, s{S_B}, 2"); e(f"s_add_u32 s{S_T0}, s{S_T0}, s{S_HG}"); e(f"s_lshl_b32 s{S_T0}, s{S_T0}, 18")
    e(f"s_add_u32 s{S_T0}, s{S_T0}, s100")
    srd(e, SOG, 78, 79, S_T0, 7 * 32768 + 8192)
    e(f"s_mul_i32 s{S_T0}, s{S_HG}, {1024*1280}")
    e(f"s_mul_i32 s{S_T1}, s{S_HI}, 160")
    e(f"s_add_u32 s{S_T0}, s{S_T0}, s{S_T1}")
    e(f"s_sub_u32 s{S_T1}, {4096*1280}, s{S_T0}")
    srd(e, SWO, 72, 73, S_T0, f"s{S_T1}")
    e("s_getreg_b32 s100, hwreg(HW_REG_XCC_ID)")
    e("s_and_b32 s100, s100, 15")
    e("s_or_b32 s100, s100, 0x80")
    e(f"v_mov_b32 v{VDB}, s100")
    e("v_mov_b32 v1, 0x7fffffff")
    e("v_cmp_eq_u32 vcc, 0, v0")
    e(f"v_mov_b32 v{VZ}, s2")
    e(f"v_cndmask_b32 v{VZ}, v1, v{VZ}, vcc")
    e("s_and_b32 s100, s2, 31")
    e(f"v_lshl_add_u32 v{T0}, v{V_L}, 5, s100")
    e("s_and_b32 s100, s2, 0xf9")
    e("s_sub_u32 s100, s100, 16")
    e(f"v_lshl_add_u32 v{T1}, v{V_L}, 1, s100")
    e(f"v_mov_b32 v{VPO}, s2")
    e(f"v_cmp_gt_u32 vcc, 12, v{V_L}")
    e(f"v_cndmask_b32 v{VPO}, v{VPO}, v{T1}, vcc")
    e(f"v_cmp_gt_u32 vcc, 8, v{V_L}")
    e(f"v_cndmask_b32 v{VPO}, v{VPO}, v{T0}, vcc")
    SD = SP
    srd(e, SD, 76, 77, None, 256)

    slots = []
    def add_slot(unit, reads, mf, pre=None, fill=None):
        slots.append(dict(unit=unit, reads=reads, mf=mf, pre=pre, fill=fill or [], dma=[], post=[]))
    ring = [0]
    def newbuf():
        b = AF + 4 * (ring[0] % R); ring[0] += 1
        return b
    for j in range(10):
        for s in range(4):
            xi = (j * 4 + s) % XR
            for t in range(4):
                ab = newbuf()
                rd = []
                if t == 0: rd.append(f"ds_read_b128 {ar(XF+4*xi,4)}, v{RA+4+s}")
                rd.append(f"ds_read_b64_tr_b16 {ar(ab,2)}, v{RA+t} offset:{s*4096}")
                rd.append(f"ds_read_b64_tr_b16 {ar(ab+2,2)}, v{RA+t} offset:{s*4096+1024}")
                c = "0" if (j == 0 and s == 0) else vr(Oacc+16*t, 16)
                add_slot(("s", j), rd, f"v_mfma_f32_32x32x16_bf16 {vr(Oacc+16*t,16)}, {ar(ab,4)}, {ar(XF+4*xi,4)}, {c}")
    def frag_ops(f):
        b = Sreg + 8 * f
        return ([f"v_fma_f32 v{b+i}, v{b+i}, s{S_C}, -v{VMC}" for i in range(8)] +
                [f"v_exp_f32 v{b+i}, v{b+i}" for i in range(8)] +
                [f"v_cvt_pk_bf16_f32 v{b+i}, v{b+2*i}, v{b+2*i+1}" for i in range(4)])
    def max_ops(hh, sg):
        b = Sreg + 16 * sg
        ops = []
        for i in range(8):
            if hh == 0 and sg == 0 and i == 0:
                ops.append(f"v_max_f32 v{VM}, v{b}, v{b+1}")
            else:
                ops.append(f"v_max3_f32 v{VM}, v{VM}, v{b+2*i}, v{b+2*i+1}")
        return ops
    unit_first = {}
    for hh in range(2):
        for j in range(4):
            unit = ("k", hh*4+j)
            for u in range(2):
                sg = 2 * j + u
                mo = max_ops(hh, sg - 1) if sg > 0 else []
                for m in range(8):
                    ab = newbuf()
                    sb = Sreg + 16 * sg
                    rd = [f"ds_read_b128 {ar(ab,4)}, v{RA+m} offset:{u*8192}"]
                    c = "0" if m == 0 else vr(sb, 16)
                    fill = mo[2*(m-4):2*(m-4)+2] if m >= 4 else []
                    add_slot(unit, rd, f"v_mfma_f32_32x32x16_bf16 {vr(sb,16)}, {ar(ab,4)}, {vr(QF+4*m,4)}, {c}", fill=fill)
        for j in range(4):
            unit = ("v", hh*4+j)
            for m in range(4):
                f = 4 * j + m
                pb = Sreg + 8 * f
                nxt = frag_ops(f + 1) if f < 15 else []
                c = "0" if (hh == 0 and f == 0) else ar(LACC, 16)
                add_slot(unit, [], f"v_mfma_f32_32x32x16_bf16 {ar(LACC,16)}, {ar(ONES,4)}, {vr(pb,4)}, {c}", fill=nxt[0:5])
                for t in range(4):
                    ab = newbuf()
                    rd = [f"ds_read_b64_tr_b16 {ar(ab,2)}, v{RA+t} offset:{m*4096}",
                          f"ds_read_b64_tr_b16 {ar(ab+2,2)}, v{RA+t} offset:{m*4096+1024}"]
                    c = "0" if (hh == 0 and f == 0) else vr(Oacc+16*t, 16)
                    fl = [nxt[5:9], nxt[9:13], nxt[13:16], nxt[16:20]][t]
                    add_slot(unit, rd, f"v_mfma_f32_32x32x16_bf16 {vr(Oacc+16*t,16)}, {ar(ab,4)}, {vr(pb,4)}, {c}", fill=fl)
    N = len(slots)
    for k, s in enumerate(slots):
        unit_first.setdefault(s["unit"], k)
    def unit_range(u):
        ks = [k for k, s in enumerate(slots) if s["unit"] == u]
        return ks[0], ks[-1] + 1
    for j in range(8):
        k0 = unit_first[("s", j)]
        slots[k0]["post"].append("barrier2") if j >= 1 else None
        ops = [(g, ("x", j+2)) for g in dma_ops(("x", j+2))] + [(g, ("w", j+2)) for g in dma_ops(("w", j+2))]
        for i, (g, t) in enumerate(ops):
            slots[k0 + i]["dma"].append((g, t, "AB"))
    k0 = unit_first[("s", 8)]
    i = 0
    for n in range(NPRE):
        for g in dma_ops(kvt[n]):
            slots[k0 + 2 * i]["dma"].append((g, kvt[n], "A" if ROLES else "AB")); i += 1
    for n in range(NPRE, 16):
        a, b = unit_range(kvt[n - D])
        L = b - a
        for i, g in enumerate(dma_ops(kvt[n])):
            slots[a + (2 * i + 1) * L // 8]["dma"].append((g, kvt[n], "AB"))
    VWOr = 1
    def w_ops(g):
        out = []
        pre = [f"s_add_u32 s100, s{S_W}, {4*g+7}", "s_and_b32 s100, s100, 31", f"s_mul_i32 s{S_WL}, s100, 5120",
               f"s_lshl_b32 s100, s{S_HI}, 2", f"s_add_u32 s100, s100, s{S_W}", f"s_add_u32 s100, s100, {4*g}", "s_and_b32 s100, s100, 31",
               f"s_mul_i32 s{S_WG}, s100, {32*1280}", f"s_mov_b32 m0, s{S_WL}"]
        regs = [VK, VK+1, VK+2, VK+3, 1]
        for ee in range(4):
            out.append((pre if ee == 0 else []) + [f"buffer_load_dwordx4 v{regs[ee]}, s[{SWO}:{SWO+3}], s{S_WG} offen offset:{1024*ee}{WOF} lds"])
        out.append([f"s_add_u32 m0, s{S_WL}, 4096", f"buffer_load_dwordx4 v{regs[4]}, s[{SWO}:{SWO+3}], s{S_WG} offen{WOF} lds"])
        return out
    NWE = opt.get("nwe", 3)
    if not STOP:
        for g in range(NWE):
            a, b = unit_range(kvt[16 - D + g]) if 16 - D + g <= 15 else unit_range(kvt[15])
            L = b - a
            for i, gg in enumerate(w_ops(g)):
                slots[a + (2 * i + 1) * L // 10]["dma"].append((gg, ("W", g), "AB"))
    def gap_q_pre(): pass
    def gap_q_post():
        for i in range(32):
            e(f"v_cvt_pk_bf16_f32 v{QF+i}, v{Oacc+2*i}, v{Oacc+2*i+1}")
    def gap_sm_pre(hh):
        for o in max_ops(hh, 7): e(o)
        e(f"v_mov_b32 v{T0}, v{VM}")
        e(f"v_permlane32_swap_b32 v{T0}, v{VM}")
        e(f"v_max_f32 v{VM}, v{T0}, v{VM}")
        if hh == 0:
            e(f"v_mul_f32 v{VMC}, s{S_C}, v{VM}")
            wait_vm(["dbgld"])
            l1, l2 = newlab("dc"), newlab("dc")
            e("s_mov_b32 s101, 0")
            e.label(l1)
            e(f"v_cmp_le_u32 vcc, 0x80, v{T3}")
            e("s_cmp_eq_u64 vcc, -1")
            e(f"s_cbranch_scc1 {l2}")
            e("s_add_u32 s101, s101, 1")
            e("s_cmp_ge_u32 s101, 0x100000")
            e(f"s_cbranch_scc1 {l2}")
            e("s_sleep 8")
            e(f"buffer_load_ubyte v{T3}, v{VPO}, s[{SD}:{SD+3}], 0 offen sc1")
            e("s_waitcnt vmcnt(0)")
            e(f"s_branch {l1}")
            e.label(l2)
            e(f"v_cmp_eq_u32 vcc, v{T3}, v{VDB}")
            e("s_and_b32 s100, vcc_lo, 0xff")
            e("s_cmp_eq_u32 s100, 0xff")
            e(f"s_cselect_b32 s{S_FAST}, {0 if FORCE_SLOW else 1}, 0")
        else:
            e(f"v_mul_f32 v{T1}, s{S_C}, v{VM}")
            e(f"v_sub_f32 v{VAL}, v{VMC}, v{T1}")
            e(f"v_exp_f32 v{VAL}, v{VAL}")
            e(f"v_mov_b32 v{VMC}, v{T1}")
            e(f"v_accvgpr_read_b32 v{T0}, a{LACC}")
            for i in range(64):
                e(f"v_mul_f32 v{Oacc+i}, v{Oacc+i}, v{VAL}")
            e(f"v_mul_f32 v{T0}, v{T0}, v{VAL}")
            e(f"v_accvgpr_write_b32 a{LACC}, v{T0}")
            if not STOP:
                for ee in range(4): e(f"v_accvgpr_read_b32 v{VK+ee}, a{AWO+ee}")
                e(f"v_accvgpr_read_b32 v1, a{AWO+4}")
    def gap_sm_post(hh):
        for o in frag_ops(0): e(o)
    assert D <= 4
    gaps = {unit_first[("k", 0)]: (gap_q_pre, gap_q_post),
            unit_first[("v", 0)]: (lambda: gap_sm_pre(0), lambda: gap_sm_post(0)),
            unit_first[("v", 4)]: (lambda: gap_sm_pre(1), lambda: gap_sm_post(1))}
    def enter_unit(u):
        if u[0] == "s":
            j = u[1]
            wait_vm([("x", j), ("w", j)])
            e("s_barrier")
            if j == 0:
                e(f"buffer_store_byte v{VDB}, v{VZ}, s[{SD}:{SD+3}], 0 offen sc1"); vm_add("dbgst")
            e(f"v_add_u32 v{RA}, {slot_of[('w',j)]*16384}, v{VBW}")
            e(f"v_add_u32 v{RA+4}, {slot_of[('x',j)]*16384}, v{VAX}")
            for t in range(1, 4):
                e(f"v_xor_b32 v{RA+t}, {t<<6}, v{RA}")
                e(f"v_xor_b32 v{RA+4+t}, {t<<5}, v{RA+4}")
        else:
            wait_vm([u])
            e("s_barrier")
            if u == ("k", 2):
                e(f"buffer_load_ubyte v{T3}, v{VPO}, s[{SD}:{SD+3}], 0 offen sc1"); vm_add("dbgld")
            so = slot_of[u] * 16384
            if u[0] == "k":
                e(f"v_add_u32 v{RA}, {so}, v{VAK}")
                for m in range(1, 8): e(f"v_xor_b32 v{RA+m}, {m<<5}, v{RA}")
            else:
                e(f"v_add_u32 v{RA}, {so}, v{VBW}")
                for t in range(1, 4): e(f"v_xor_b32 v{RA+t}, {t<<6}, v{RA}")
    st = dict(rd=0, cur=None)
    lg = []
    def issue_reads(upto):
        while st["rd"] <= upto and st["rd"] < N:
            s = slots[st["rd"]]
            if s["unit"] != st["cur"]:
                st["cur"] = s["unit"]
                enter_unit(st["cur"])
                if diag >= 2 and st["cur"][0] == "s": stamp()
            for r in s["reads"]:
                e(r); lg.append(st["rd"])
            st["rd"] += 1
    def next_gap(k):
        c = [g for g in gaps if g > k]
        return min(c) if c else N
    inA = [False]
    for k in range(N):
        s = slots[k]
        if k in gaps:
            stamp()
            gaps[k][0]()
            issue_reads(k + LA - 1)
            gaps[k][1]()
            stamp()
        elif k == 0:
            issue_reads(LA - 1)
            stamp()
        if s["reads"]:
            idx = max(i for i, t in enumerate(lg) if t == k)
            n_after = len(lg) - 1 - idx
            assert n_after <= 15
            e(f"s_waitcnt lgkmcnt({n_after})")
        e(s["mf"])
        for p in s["post"]:
            if p == "barrier2": e("s_barrier")
        issue_reads(min(k + LA, next_gap(k) - 1))
        for g, t, roles in s["dma"]:
            if roles == "A":
                l1 = newlab("a")
                e(f"s_cmp_eq_u32 s{S_ROLE}, 0")
                e(f"s_cbranch_scc0 {l1}")
                emit_group(g, t, roles)
                e.label(l1)
            else:
                emit_group(g, t, roles)
        for f in s["fill"]: e(f)
    stamp()
    if not STOP:
        wait_vm([("W", 0)] if NWE < 2 else [("W", 1)])
        e("s_barrier")
    e(f"v_accvgpr_read_b32 v{T0}, a{LACC}")
    e(f"s_movk_i32 s{S_SO}, 4096")
    e(f"v_rcp_f32 v{T0}, v{T0}")
    e(f"s_cmp_eq_u32 s{S_FAST}, 0")
    for t in range(4):
        for i in range(16):
            e(f"v_mul_f32 v{Oacc+16*t+i}, v{Oacc+16*t+i}, v{T0}")
        d = QF + 8 * t
        for u in range(2):
            b = Oacc + 16 * t + 4 * u
            e(f"v_cvt_pk_bf16_f32 v{d+4*u}, v{b}, v{b+1}")
            e(f"v_cvt_pk_bf16_f32 v{d+4*u+1}, v{b+2}, v{b+3}")
            e(f"v_cvt_pk_bf16_f32 v{d+4*u+2}, v{b+8}, v{b+9}")
            e(f"v_cvt_pk_bf16_f32 v{d+4*u+3}, v{b+10}, v{b+11}")
        for i in range(4):
            e(f"v_permlane16_swap_b32 v{d+i}, v{d+4+i}")
        l1, l2 = newlab("o"), newlab("o")
        so = f"s{S_SO}" if t >= 2 else "0"
        e(f"s_cbranch_scc1 {l1}")
        for z in range(2):
            e(f"buffer_store_dwordx4 {vr(d+4*z,4)}, v{VL16}, s[{SO}:{SO+3}], {so} offen offset:{((2*t+z)&3)*1024}")
        e(f"s_branch {l2}")
        e.label(l1)
        for z in range(2):
            e(f"buffer_store_dwordx4 {vr(d+4*z,4)}, v{VL16}, s[{SO}:{SO+3}], {so} offen offset:{((2*t+z)&3)*1024} sc1")
        e.label(l2)
        vm_add("Ost"); vm_add("Ost")
    stamp()
    if not STOP:
        tail(e, opt, locals())
    if diag:
        e("s_waitcnt vmcnt(0)")
        stamp()
        e("s_memrealtime s[100:101]")
        e("s_waitcnt lgkmcnt(0)")
        e(f"s_mov_b32 s29, {WS_DIAG}")
        srd(e, 8, 78, 79, 29, 1 << 20)
        e("s_lshl_b32 s29, s2, 2"); e("s_add_u32 s29, s29, s3"); e("s_lshl_b32 s29, s29, 7")
        e("v_mov_b32 v1, s29")
        vals = [f"s{40+k}" for k in range(nstamp[0])] + ["0"] * (24 - nstamp[0]) + ["s94", "s95", "s100", "s101"]
        e("s_getreg_b32 s30, hwreg(HW_REG_XCC_ID)")
        vals += ["s30", f"s{S_ROLE}", f"s{S_FAST}", "0"]
        for q in range(8):
            for i in range(4): e(f"v_mov_b32 v{4+i}, {vals[4*q+i]}")
            e(f"buffer_store_dwordx4 v[4:7], v1, s[8:11], 0 offen offset:{16*q}")
    e.label("L_done")
    e("s_endpgm")
    e.raw('.section .rodata,"a"')
    kernel_desc(e, kname, 512, 256)
    sys.stderr.write(f"nops inserted: {e.nnop}, instrs: {sum(1 for x in e.L if x[0])}\n")
    return e.text()

def tail(e, opt, L):
    g = L
    S_W, S_B, S_HG, S_HI, S_T0, S_T1, S_SO, S_FAST = [g[k] for k in "S_W S_B S_HG S_HI S_T0 S_T1 S_SO S_FAST".split()]
    SOG, SF, SP, QF, V_L, VL16, VPO, VZ, T0, T1, T2, T3 = [g[k] for k in "SOG SF SP QF V_L VL16 VPO VZ T0 T1 T2 T3".split()]
    vm_add, wait_vm, emit_group, w_ops, newlab, stamp, NWE = [g[k] for k in "vm_add wait_vm emit_group w_ops newlab stamp NWE".split()]
    LA = opt.get("LA4", 6); R = LA + 2
    ACC = 128; FR = 168; VB = 12
    S_PM = 34
    e(f"v_lshrrev_b32 v{T1}, 2, v{V_L}")
    e(f"v_mul_u32_u24 v{T1}, 160, v{T1}")
    e(f"v_and_b32 v{T2}, 3, v{V_L}")
    e(f"v_lshl_add_u32 v{VB}, v{T2}, 3, v{T1}")
    e(f"v_add_u32 v{VB+1}, {12*5120}, v{VB}")
    e(f"v_add_u32 v{VB+2}, {24*5120}, v{VB}")
    e(f"s_lshl_b32 s{S_T0}, s2, 3"); e(f"s_add_u32 s{S_T0}, s{S_T0}, s{S_W}"); e(f"s_lshl_b32 s{S_T0}, s{S_T0}, 7")
    e(f"v_mov_b32 v{VZ}, s{S_T0}")
    e(f"v_mov_b32 v{T1}, 0x7fffffff")
    e(f"v_cmp_eq_u32 vcc, 0, v{V_L}")
    e(f"v_cndmask_b32 v{VZ}, v{T1}, v{VZ}, vcc")
    e(f"v_add_u32 v{T1}, s{S_HI}, v{V_L}")
    e(f"v_and_b32 v{T1}, 7, v{T1}")
    e(f"s_and_b32 s{S_T0}, s2, 31"); e(f"s_lshl_b32 s{S_T0}, s{S_T0}, 3"); e(f"s_add_u32 s{S_T0}, s{S_T0}, s{S_W}"); e(f"s_lshl_b32 s{S_T0}, s{S_T0}, 7")
    e(f"v_lshl_add_u32 v{VPO}, v{T1}, 15, s{S_T0}")
    e(f"v_mov_b32 v{T2}, 1")
    slots = []
    for c in range(32):
        p = (c + 7) & 31
        for tn in range(5):
            k = len(slots); fb = FR + 4 * (k % R)
            base = VB + p // 12; off = (p % 12) * 5120 + tn * 32
            rd = [f"ds_read_b64_tr_b16 {vr(fb,2)}, v{base} offset:{off}", f"ds_read_b64_tr_b16 {vr(fb+2,2)}, v{base} offset:{off+2560}"]
            mf = []
            for z in range(2):
                d = ACC + 4 * (z * 5 + tn)
                cc = "0" if c == 0 else vr(d, 4)
                b = vr(QF + 8 * c + 4 * z, 4) if c < 4 else ar(((c - 4) * 2 + z) * 4, 4)
                mf.append(f"v_mfma_f32_16x16x32_bf16 {vr(d,4)}, {vr(fb,4)}, {b}, {cc}")
            slots.append(dict(unit=c // 4, reads=rd, mf=mf, act=[]))
    N = len(slots)
    def o_ops(h):
        out = []
        pre = [f"s_add_u32 s100, s{S_HI}, {h}", "s_and_b32 s100, s100, 7", f"s_lshl_b32 s{S_T0}, s100, 15", f"s_add_u32 s{S_T1}, s{S_T0}, 4096"]
        for f in range(8):
            so = S_T0 if f < 4 else S_T1
            out.append((pre if f == 0 else []) + [f"buffer_load_dwordx4 {ar(((h-1)*8+f)*4,4)}, v{VL16}, s[{SOG}:{SOG+3}], s{so} offen offset:{(f&3)*1024} sc1"])
        return out
    def check_flag(h):
        l1, l2 = newlab("p"), newlab("p")
        e("s_mov_b32 s101, 0")
        e.label(l1)
        e(f"s_bitcmp1_b32 s{S_PM}, {h}")
        e(f"s_cbranch_scc1 {l2}")
        e("s_add_u32 s101, s101, 1")
        e("s_cmp_ge_u32 s101, 0x100000")
        e(f"s_cbranch_scc1 {l2}")
        e(f"buffer_load_dword v{T3}, v{VPO}, s[{SF}:{SF+3}], 0 offen sc1")
        e("s_waitcnt vmcnt(0)")
        e(f"v_cmp_eq_u32 vcc, 1, v{T3}")
        e(f"s_mov_b32 s{S_PM}, vcc_lo")
        e(f"s_branch {l1}")
        e.label(l2)
    def flag_store():
        wait_vm(["Ost"])
        l1, l2 = newlab("f"), newlab("f")
        e(f"s_cmp_eq_u32 s{S_FAST}, 0")
        e(f"s_cbranch_scc1 {l1}")
        e(f"buffer_store_dword v{T2}, v{VZ}, s[{SF}:{SF+3}], 0 offen")
        e(f"s_branch {l2}")
        e.label(l1)
        e(f"buffer_store_dword v{T2}, v{VZ}, s[{SF}:{SF+3}], 0 offen sc1")
        e.label(l2)
        vm_add("flag")
        stamp()
    def grp(gg, tag):
        return lambda: emit_group(gg, tag)
    wq = [(gg, ("W", gi)) for gi in range(NWE, 8) for gg in w_ops(gi)]
    FS = opt.get("fs", 8)
    PS = opt.get("ps", 14)
    nw0 = opt.get("nw0", 5)
    nw1 = opt.get("nw1", 5)
    for i in range(nw0):
        gg, tag = wq.pop(0); slots[i]["act"].append(grp(gg, tag))
    slots[FS]["act"].append(flag_store)
    for i in range(nw1):
        gg, tag = wq.pop(0); slots[FS + 1 + i]["act"].append(grp(gg, tag))
    def poll_issue():
        e(f"buffer_load_dword v{T3}, v{VPO}, s[{SF}:{SF+3}], 0 offen sc1"); vm_add("poll")
    slots[PS]["act"].append(poll_issue)
    def poll_take():
        wait_vm(["poll"])
        e(f"v_cmp_eq_u32 vcc, 1, v{T3}")
        e(f"s_mov_b32 s{S_PM}, vcc_lo")
        stamp()
        for h in (1, 2):
            check_flag(h)
            for gg in o_ops(h): emit_group(gg, ("O", h))
        stamp()
    for h in range(1, 6):
        a = 20 * h
        q = []
        if h + 2 <= 7:
            oo = o_ops(h + 2)
            q.append(lambda hh=h + 2: check_flag(hh))
            q += [grp(gg, ("O", h + 2)) for gg in oo]
        for i in range(5):
            if wq:
                gg, tag = wq.pop(0); q.append(grp(gg, tag))
        for i, fn in enumerate(q):
            slots[a + i]["act"].append(fn)
    assert not wq
    lg = []; st = dict(rd=0, cur=-1)
    def issue_reads(upto):
        while st["rd"] <= upto and st["rd"] < N:
            s = slots[st["rd"]]
            if s["unit"] != st["cur"]:
                st["cur"] = s["unit"]
                h = st["cur"]
                if h >= 2 or (h == 1 and NWE < 2):
                    wait_vm([("W", h)])
                    e("s_barrier")
            for r in s["reads"]:
                e(r); lg.append(st["rd"])
            st["rd"] += 1
    issue_reads(LA - 1)
    for k in range(N):
        if k == 20: poll_take()
        if k % 20 == 0 and k > 0: wait_vm([("O", k // 20)])
        idx = max(i for i, t in enumerate(lg) if t == k)
        e(f"s_waitcnt lgkmcnt({len(lg)-1-idx})")
        for m in slots[k]["mf"]: e(m)
        issue_reads(k + LA)
        for fn in slots[k]["act"]: fn()
    stamp()
    e(f"s_lshl_b32 s{S_T0}, s{S_B}, 3"); e(f"s_add_u32 s{S_T0}, s{S_T0}, s{S_HI}"); e(f"s_lshl_b32 s{S_T0}, s{S_T0}, 4")
    e(f"s_mul_i32 s{S_T0}, s{S_T0}, 10240"); e(f"s_add_u32 s{S_T0}, s{S_T0}, {WS_P}")
    srd(e, SP, 78, 79, S_T0, 16 * 10240)
    e(f"s_lshl_b32 s100, s{S_HG}, 2"); e(f"s_add_u32 s100, s100, s{S_W}"); e("s_mul_i32 s100, s100, 10240")
    e("s_add_u32 s101, s100, 4096"); e("s_add_u32 s36, s100, 8192")
    for tau in range(10):
        so = ["s100", "s101", "s36"][tau // 4]
        e(f"buffer_store_dwordx4 {vr(ACC+4*tau,4)}, v{VL16}, s[{SP}:{SP+3}], {so} offen offset:{(tau&3)*1024} sc1")
    e(f"v_add_u32 v{VZ}, 512, v{VZ}")
    e(f"v_and_b32 v{T1}, 3, v{V_L}")
    e(f"s_and_b32 s{S_T0}, s2, 0xf9"); e(f"s_lshl_b32 s{S_T0}, s{S_T0}, 3"); e(f"s_add_u32 s{S_T0}, s{S_T0}, s{S_HG}"); e(f"s_add_u32 s{S_T0}, s{S_T0}, 4")
    e(f"s_lshl_b32 s{S_T0}, s{S_T0}, 7")
    e(f"v_lshl_add_u32 v{VPO}, v{T1}, 11, s{S_T0}")
    SOUT = 8
    e(f"s_lshl_b32 s{S_T0}, s{S_B}, 2"); e(f"s_add_u32 s{S_T0}, s{S_T0}, s{S_HG}"); e(f"s_mul_i32 s{S_T0}, s{S_T0}, {32*1280}")
    e(f"s_mul_i32 s{S_T1}, s{S_HI}, 160"); e(f"s_add_u32 s{S_T0}, s{S_T0}, s{S_T1}")
    e(f"s_sub_u32 s{S_T1}, {1024*1280}, s{S_T0}")
    srd(e, SOUT, 74, 75, S_T0, f"s{S_T1}")
    e(f"v_and_b32 v2, 15, v{V_L}"); e("v_mul_u32_u24 v2, 1280, v2")
    e(f"v_lshrrev_b32 v3, 4, v{V_L}"); e("v_lshl_add_u32 v2, v3, 3, v2")
    e("s_waitcnt vmcnt(0)")
    e(f"buffer_store_dword v{T2}, v{VZ}, s[{SF}:{SF+3}], 0 offen sc1")
    stamp()
    l1, l2 = newlab("q"), newlab("q")
    e("s_mov_b32 s101, 0")
    e.label(l1)
    e(f"buffer_load_dword v{T3}, v{VPO}, s[{SF}:{SF+3}], 0 offen sc1")
    e("s_waitcnt vmcnt(0)")
    e(f"v_cmp_eq_u32 vcc, 1, v{T3}")
    e("s_cmp_eq_u64 vcc, -1")
    e(f"s_cbranch_scc1 {l2}")
    e("s_add_u32 s101, s101, 1")
    e("s_cmp_lt_u32 s101, 0x100000")
    e(f"s_cbranch_scc1 {l1}")
    e.label(l2)
    stamp()
    lsk, ldone = newlab("r"), newlab("r")
    e(f"s_mul_i32 s36, s{S_HG}, 10240")
    e(f"s_lshl_b32 s100, s{S_W}, 10"); e("s_add_u32 s36, s36, s100")
    for q in range(3):
        if q == 2:
            e(f"s_cmp_ge_u32 s{S_W}, 2"); e(f"s_cbranch_scc1 {lsk}")
        e(f"s_add_u32 s100, s36, {q*4096}")
        for hg in range(4):
            e(f"buffer_load_dwordx4 {vr(32+16*q+4*hg,4)}, v{VL16}, s[{SP}:{SP+3}], s100 offen sc1")
            if hg < 3: e("s_add_u32 s100, s100, 40960")
    e.label(lsk)
    e("s_waitcnt vmcnt(0)")
    for q in range(3):
        if q == 2:
            e(f"s_cmp_ge_u32 s{S_W}, 2"); e(f"s_cbranch_scc1 {ldone}")
        b = 32 + 16 * q
        for i in range(4):
            e(f"v_add_f32 v{b+i}, v{b+i}, v{b+4+i}")
            e(f"v_add_f32 v{b+8+i}, v{b+8+i}, v{b+12+i}")
        for i in range(4):
            e(f"v_add_f32 v{b+i}, v{b+i}, v{b+8+i}")
        e(f"v_cvt_pk_bf16_f32 v{b+4}, v{b}, v{b+1}")
        e(f"v_cvt_pk_bf16_f32 v{b+5}, v{b+2}, v{b+3}")
        e(f"s_add_u32 s100, s{S_W}, {4*q}")
        e("s_cmp_ge_u32 s100, 5")
        e(f"s_cselect_b32 s101, {16*1280 - 5*32}, 0")
        e("s_lshl_b32 s100, s100, 5")
        e("s_add_u32 s100, s100, s101")
        e(f"buffer_store_dwordx2 {vr(b+4,2)}, v2, s[{SOUT}:{SOUT+3}], s100 offen")
    e.label(ldone)

if __name__ == "__main__":
    out = sys.argv[1]
    opt = {}
    for a in sys.argv[2:]:
        k, v = a.split("=")
        try: v = int(v)
        except: pass
        if k.endswith("flag"): v = (" " + v.replace("+", " ")) if v not in ("none", 0) else ""
        opt[k] = v
    open(out, "w").write(gen(opt))
```

```python
import sys, math
sys.path.insert(0, "gen")
from asmlib import *
NAME = "standalone__gqa_block_cached__near_ridge"
WS_O = 0
WS_P = 16 << 20
WS_F = 28 << 20
WS_DIAG = 32 << 20
SCALE = math.log2(math.e) / math.sqrt(128.0)

def gen(opt):
    e = Asm()
    kname = NAME + "_kernel"
    e.raw("; @launch grid=(256,1,1) block=(256,1,1) lds=163840")
    e.raw('.amdgcn_target "amdgcn-amd-amdhsa--gfx950"')
    e.raw(".text")
    kernel_header(e, kname)
    LA = opt.get("LA", 5)
    D = opt.get("d", 3)
    KVF = opt.get("kvflag", " nt")
    XWF = opt.get("xwflag", "")
    WOF = opt.get("woflag", "")
    diag = opt.get("diag", 0)
    ROLES = opt.get("roles", 1)
    ROT = opt.get("rot", 1)
    FORCE_SLOW = opt.get("slow", 0)
    STOP = opt.get("stop", 0)
    lab = [0]
    def newlab(p):
        lab[0] += 1
        return f"L_{p}{lab[0]}"
    nstamp = [0]
    def stamp():
        if not diag: return
        k = nstamp[0]; nstamp[0] += 1
        assert k < 24
        e("s_memtime s[92:93]")
        e("s_waitcnt lgkmcnt(0)")
        e(f"s_mov_b32 s{40+k}, s92")
    S_W, S_B, S_HG, S_HI, S_H = 3, 4, 5, 6, 7
    SX, SW, SK, SV, SO = 8, 12, 16, 20, 24
    S_W4K, S_T0, S_T1, S_SO, S_C = 28, 29, 30, 31, 32
    S_ROLE, S_KT, S_FAST, S_SX, S_SW2 = 33, 34, 35, 36, 37
    S_WL, S_WG = 38, 39
    SWO, SOG, SF, SP = 80, 84, 88, 96
    VK, VV, VAX, VBW, VAK = 2, 6, 7, 8, 9
    VL16 = 10
    VDB = 11
    RA = 12
    VM, VMC, VAL = 20, 21, 22
    V_L, T0, T1, T2, T3, T4 = 24, 25, 26, 27, 28, 29
    VZ = 30
    VPO = 31
    QF = 32
    Oacc, Sreg = 64, 128
    VX, VW = 128, 132
    VWO = 23
    R = LA + 2
    AF = 0; XF = 4 * R; XR = 3
    ONES = 44; LACC = 48
    assert XF + 4 * XR <= ONES
    AWO = 64

    e("s_cmp_ge_u32 s2, 256")
    e("s_cbranch_scc1 L_done")
    if diag: e("s_memrealtime s[94:95]")
    e("s_load_dwordx16 s[64:79], s[0:1], 0")
    PF = opt.get("pf", 0)
    if PF:
        e("s_getpc_b64 s[100:101]")
        e("s_and_b32 s100, s100, 0xffffff00")
        e("s_lshr_b32 s99, s2, 3")
        e("s_lshl_b32 s99, s99, 10")
        e("v_and_b32 v3, 63, v0")
        e("v_lshlrev_b32 v3, 4, v3")
        e("v_lshrrev_b32 v4, 6, v0")
        e("v_lshl_add_u32 v3, v4, 15, v3")
        e("v_add_u32 v3, s99, v3")
        e(f"v_min_u32 v3, (L_done-{kname}-16)&0xfffffff0, v3")
        e("v_mov_b32 v5, s101")
        e("v_add_co_u32 v4, vcc, s100, v3")
        e("v_addc_co_u32 v5, vcc, 0, v5, vcc")
        e("global_load_dwordx4 a[252:255], v[4:5], off")
    e("v_lshrrev_b32 v1, 6, v0")
    e(f"v_and_b32 v{V_L}, 63, v0")
    e(f"v_readfirstlane_b32 s{S_W}, v1")
    e("s_and_b32 s100, s2, 1")
    e("s_lshl_b32 s100, s100, 2")
    e("s_bfe_u32 s101, s2, 0x20003")
    e(f"s_add_u32 s{S_B}, s100, s101")
    e(f"s_bfe_u32 s{S_HG}, s2, 0x20001")
    e(f"s_lshr_b32 s{S_HI}, s2, 5")
    e(f"s_lshl_b32 s{S_H}, s{S_HG}, 3")
    e(f"s_add_u32 s{S_H}, s{S_H}, s{S_HI}")
    e(f"s_add_u32 s{S_ROLE}, s101, s{S_HI}")
    e(f"s_and_b32 s{S_ROLE}, s{S_ROLE}, {1 if ROLES else 0}")
    if ROT:
        if ROLES:
            e(f"s_lshr_b32 s100, s{S_HI}, 1")
            e("s_lshl_b32 s100, s100, 2")
            e(f"s_lshr_b32 s{S_KT}, 0x8530, s100")
            e(f"s_and_b32 s{S_KT}, s{S_KT}, 15")
            e("s_lshr_b32 s100, s101, 1")
            e("s_mul_i32 s100, s100, 5")
            e(f"s_add_u32 s{S_KT}, s{S_KT}, s100")
        else:
            e("s_lshl_b32 s100, s101, 2")
            e(f"s_lshr_b32 s{S_KT}, 0x8530, s100")
            e(f"s_and_b32 s{S_KT}, s{S_KT}, 15")
            e(f"s_add_u32 s{S_KT}, s{S_KT}, s{S_HI}")
        e(f"s_cmp_ge_u32 s{S_KT}, 10")
        e("s_cselect_b32 s100, 10, 0")
        e(f"s_sub_u32 s{S_KT}, s{S_KT}, s100")
    else:
        e(f"s_mov_b32 s{S_KT}, 0")
    e(f"s_lshl_b32 s{S_W4K}, s{S_W}, 12")
    e(f"v_lshrrev_b32 v{T0}, 4, v{V_L}")
    e(f"v_and_b32 v{T1}, 15, v{V_L}")
    e(f"v_lshlrev_b32 v{T2}, 2, v{T0}")
    e(f"v_xor_b32 v{T2}, v{T2}, v{T1}")
    e(f"v_lshlrev_b32 v{T2}, 4, v{T2}")
    e(f"v_lshl_add_u32 v{T3}, v{T0}, 8, s{S_W4K}")
    e(f"v_add_u32 v{VV}, v{T2}, v{T3}")
    e(f"s_lshl_b32 s{S_T0}, s{S_W}, 17")
    e(f"v_lshl_add_u32 v{VW}, v{T0}, 13, s{S_T0}")
    e(f"v_add_u32 v{VW}, v{VW}, v{T2}")
    for jj in range(1, 4):
        e(f"v_add_u32 v{VW+jj}, {jj*(32768-1024)}, v{VW}")
    for jj in range(4):
        e(f"v_add_u32 v{T2}, {4*jj}, v{T0}")
        e(f"v_xor_b32 v{T2}, v{T2}, v{T1}")
        e(f"v_lshl_add_u32 v{VK+jj}, v{T2}, 4, v{T3}")
    e(f"v_lshrrev_b32 v{T2}, 3, v{V_L}")
    e(f"s_lshl_b32 s{S_T0}, s{S_W}, 5")
    e(f"v_add_u32 v{T2}, s{S_T0}, v{T2}")
    e(f"v_mul_u32_u24 v{T2}, 1280, v{T2}")
    e(f"v_and_b32 v{T3}, 7, v{V_L}")
    for jj in range(2):
        e(f"v_add_u32 v{T4}, {4*jj}, v{T0}")
        e(f"v_xor_b32 v{T4}, v{T4}, v{T3}")
        e(f"v_lshl_add_u32 v{T4}, v{T4}, 4, v{T2}")
        if jj == 0:
            e(f"v_mov_b32 v{VX}, v{T4}")
        else:
            e(f"v_add_u32 v{VX+1}, {8*1280-1024}, v{T4}")
        e(f"v_add_u32 v{VX+2+jj}, {(2+jj)*(8*1280-1024)}, v{T4}")
    e(f"v_lshlrev_b32 v{VZ}, 7, v0")
    e(f"s_lshl_b32 s{S_T0}, s2, 10")
    e(f"v_add_u32 v{VZ}, s{S_T0}, v{VZ}")
    e("v_cmp_gt_u32 vcc, 8, v0")
    e("v_mov_b32 v1, 0x7fffffff")
    e(f"v_cndmask_b32 v{VZ}, v1, v{VZ}, vcc")
    e(f"v_mov_b32 v{T4}, 0")
    e("s_waitcnt lgkmcnt(0)")
    e(f"s_mul_i32 s{S_T0}, s{S_B}, 163840")
    srd(e, SX, 64, 65, S_T0, 163840)
    e(f"s_lshl_b32 s{S_T0}, s{S_H}, 8")
    e(f"s_sub_u32 s{S_T1}, {640*8192}, s{S_T0}")
    srd(e, SW, 70, 71, S_T0, f"s{S_T1}")
    e(f"s_lshl_b32 s{S_T1}, s{S_B}, 5")
    e(f"s_add_u32 s{S_T1}, s{S_T1}, s{S_H}")
    e(f"s_lshl_b32 s{S_T0}, s{S_T1}, 17")
    srd(e, SK, 66, 67, S_T0, 131072)
    srd(e, SV, 68, 69, S_T0, 131072)
    e(f"s_mov_b32 s{S_T0}, {WS_F}")
    srd(e, SF, 78, 79, S_T0, 256 * 1024)
    stamp()
    vmA, vmB = [], []
    def vm_add(tag, roles="AB"):
        if "A" in roles: vmA.append(tag)
        if "B" in roles: vmB.append(tag)
    def cnt_after(vm, tags):
        idx = -1
        for i, t in enumerate(vm):
            if t in tags: idx = i
        assert idx >= 0, tags
        return min(63, len(vm) - 1 - idx)
    def wait_vm(tags, done_ok_B=False):
        na = cnt_after(vmA, tags)
        nb = cnt_after(vmB, tags) if ROLES else na
        if nb >= na or not ROLES:
            e(f"s_waitcnt vmcnt({na})")
        else:
            l1 = newlab("w")
            e(f"s_waitcnt vmcnt({na})")
            e(f"s_cmp_eq_u32 s{S_ROLE}, 0")
            e(f"s_cbranch_scc1 {l1}")
            e(f"s_waitcnt vmcnt({nb})")
            e.label(l1)
    slot_of = {}
    for j in range(10):
        slot_of[("x", j)] = j % 3
        slot_of[("w", j)] = 3 + j % 3
    kvt = []
    for hh in range(2):
        kvt += [("k", hh*4+j) for j in range(4)] + [("v", hh*4+j) for j in range(4)]
    for i, t in enumerate(kvt):
        slot_of[t] = (6 + i) % 10
    def dma_ops(t):
        kind, j = t
        so = slot_of[t] * 16384
        out = []
        for jj in range(4):
            g = []
            if jj == 0:
                if kind == "x":
                    g.append(f"s_lshl_b32 s{S_SX}, s{S_KT}, 7")
                    g.append(f"s_lshl_b32 s{S_SW2}, s{S_KT}, 19")
                    g.append(f"s_add_u32 s{S_KT}, s{S_KT}, 1")
                    g.append(f"s_cmp_ge_u32 s{S_KT}, 10")
                    g.append(f"s_cselect_b32 s{S_KT}, 0, s{S_KT}")
                elif kind in "kv":
                    g.append(f"s_mov_b32 s{S_SO}, {16384*j}")
            g.append(f"s_add_u32 m0, s{S_W4K}, {so}") if jj == 0 else None
            if kind == "x":
                g.append(f"buffer_load_dwordx4 v{VX+jj}, s[{SX}:{SX+3}], s{S_SX} offen offset:{1024*jj}{XWF} lds")
            elif kind == "w":
                g.append(f"buffer_load_dwordx4 v{VW+jj}, s[{SW}:{SW+3}], s{S_SW2} offen offset:{1024*jj}{XWF} lds")
            elif kind == "k":
                g.append(f"buffer_load_dwordx4 v{VK+jj}, s[{SK}:{SK+3}], s{S_SO} offen offset:{1024*jj}{KVF} lds")
            else:
                g.append(f"buffer_load_dwordx4 v{VV}, s[{SV}:{SV+3}], s{S_SO} offen offset:{1024*jj}{KVF} lds")
            out.append(g)
        return out
    def emit_group(g, tag, roles="AB"):
        for s in g: e(s)
        vm_add(tag, roles)
    e(f"buffer_store_dword v{T4}, v{VZ}, s[{SF}:{SF+3}], 0 offen sc1"); vm_add("zero")
    NPRE = 4
    if ROLES:
        e(f"s_cmp_eq_u32 s{S_ROLE}, 0")
        e("s_cbranch_scc1 L_noB")
        for i in range(NPRE):
            for g in dma_ops(kvt[i]): emit_group(g, kvt[i], "B")
        e.label("L_noB")
    for j in range(2):
        for t in (("x", j), ("w", j)):
            for g in dma_ops(t): emit_group(g, t)
    stamp()
    e(f"v_and_b32 v{T0}, 31, v{V_L}")
    e(f"v_lshrrev_b32 v{T1}, 5, v{V_L}")
    e(f"v_bfe_u32 v{T2}, v{V_L}, 1, 3")
    e(f"v_xor_b32 v{T2}, v{T2}, v{T1}")
    e(f"v_lshlrev_b32 v{T2}, 4, v{T2}")
    e(f"v_lshl_add_u32 v{T3}, v{T0}, 7, s{S_W4K}")
    e(f"v_add_u32 v{VAX}, v{T2}, v{T3}")
    e(f"v_and_b32 v{T2}, 19, v{T0}")
    e(f"v_bfe_u32 v{T3}, v{T0}, 2, 1")
    e(f"v_lshl_or_b32 v{T2}, v{T3}, 3, v{T2}")
    e(f"v_bfe_u32 v{T3}, v{T0}, 3, 1")
    e(f"v_lshl_or_b32 v{T2}, v{T3}, 2, v{T2}")
    e(f"v_and_b32 v{T3}, 15, v{T2}")
    e(f"v_xor_b32 v{T3}, v{T3}, v{T1}")
    e(f"v_lshlrev_b32 v{T3}, 4, v{T3}")
    e(f"v_lshl_add_u32 v{VAK}, v{T2}, 8, v{T3}")
    e(f"v_bfe_u32 v{T2}, v{V_L}, 2, 2")
    e(f"v_mul_u32_u24 v{T2}, 320, v{T2}")
    e(f"v_lshl_add_u32 v{T2}, v{T1}, 11, v{T2}")
    e(f"v_bfe_u32 v{T3}, v{V_L}, 4, 1")
    e(f"v_lshl_add_u32 v{T2}, v{T3}, 5, v{T2}")
    e(f"v_and_b32 v{T3}, 1, v{V_L}")
    e(f"v_lshl_add_u32 v{T2}, v{T3}, 4, v{T2}")
    e(f"v_bfe_u32 v{T3}, v{V_L}, 1, 1")
    e(f"v_lshl_add_u32 v{VBW}, v{T3}, 3, v{T2}")
    e(f"v_lshlrev_b32 v{VL16}, 4, v{V_L}")
    e(f"s_mov_b32 s{S_C}, {f32bits(SCALE)}")
    e("v_mov_b32 v1, 0x3f803f80")
    for i in range(4): e(f"v_accvgpr_write_b32 a{ONES+i}, v1")
    for ee in range(5):
        e(f"v_add_u32 v{T0}, {64*ee}, v{V_L}")
        e(f"v_mul_u32_u24 v{T1}, 6554, v{T0}")
        e(f"v_lshrrev_b32 v{T1}, 16, v{T1}")
        e(f"v_mul_u32_u24 v{T2}, 10, v{T1}")
        e(f"v_sub_u32 v{T2}, v{T0}, v{T2}")
        e(f"v_mul_u32_u24 v{T1}, 1280, v{T1}")
        e(f"v_lshl_add_u32 v{T1}, v{T2}, 4, v{T1}")
        if 0 < ee < 4: e(f"v_subrev_u32 v{T1}, {1024*ee}, v{T1}")
        e(f"v_accvgpr_write_b32 a{AWO+ee}, v{T1}")
    e(f"s_lshl_b32 s{S_T0}, s{S_T1}, 15")
    e(f"s_lshl_b32 s100, s{S_W}, 13")
    e(f"s_add_u32 s{S_T0}, s{S_T0}, s100")
    srd(e, SO, 78, 79, S_T0, 8192)
    e(f"s_lshl_b32 s{S_T0}, s{S_B}, 2"); e(f"s_add_u32 s{S_T0}, s{S_T0}, s{S_HG}"); e(f"s_lshl_b32 s{S_T0}, s{S_T0}, 18")
    e(f"s_add_u32 s{S_T0}, s{S_T0}, s100")
    srd(e, SOG, 78, 79, S_T0, 7 * 32768 + 8192)
    e(f"s_mul_i32 s{S_T0}, s{S_HG}, {1024*1280}")
    e(f"s_mul_i32 s{S_T1}, s{S_HI}, 160")
    e(f"s_add_u32 s{S_T0}, s{S_T0}, s{S_T1}")
    e(f"s_sub_u32 s{S_T1}, {4096*1280}, s{S_T0}")
    srd(e, SWO, 72, 73, S_T0, f"s{S_T1}")
    e("s_getreg_b32 s100, hwreg(HW_REG_XCC_ID)")
    e("s_and_b32 s100, s100, 15")
    e("s_or_b32 s100, s100, 0x80")
    e(f"v_mov_b32 v{VDB}, s100")
    e("v_mov_b32 v1, 0x7fffffff")
    e("v_cmp_eq_u32 vcc, 0, v0")
    e(f"v_mov_b32 v{VZ}, s2")
    e(f"v_cndmask_b32 v{VZ}, v1, v{VZ}, vcc")
    e("s_and_b32 s100, s2, 31")
    e(f"v_lshl_add_u32 v{T0}, v{V_L}, 5, s100")
    e("s_and_b32 s100, s2, 0xf9")
    e("s_sub_u32 s100, s100, 16")
    e(f"v_lshl_add_u32 v{T1}, v{V_L}, 1, s100")
    e(f"v_mov_b32 v{VPO}, s2")
    e(f"v_cmp_gt_u32 vcc, 12, v{V_L}")
    e(f"v_cndmask_b32 v{VPO}, v{VPO}, v{T1}, vcc")
    e(f"v_cmp_gt_u32 vcc, 8, v{V_L}")
    e(f"v_cndmask_b32 v{VPO}, v{VPO}, v{T0}, vcc")
    SD = SP
    srd(e, SD, 76, 77, None, 256)

    slots = []
    def add_slot(unit, reads, mf, pre=None, fill=None):
        slots.append(dict(unit=unit, reads=reads, mf=mf, pre=pre, fill=fill or [], dma=[], post=[]))
    ring = [0]
    def newbuf():
        b = AF + 4 * (ring[0] % R); ring[0] += 1
        return b
    for j in range(10):
        for s in range(4):
            xi = (j * 4 + s) % XR
            for t in range(4):
                ab = newbuf()
                rd = []
                if t == 0: rd.append(f"ds_read_b128 {ar(XF+4*xi,4)}, v{RA+4+s}")
                rd.append(f"ds_read_b64_tr_b16 {ar(ab,2)}, v{RA+t} offset:{s*4096}")
                rd.append(f"ds_read_b64_tr_b16 {ar(ab+2,2)}, v{RA+t} offset:{s*4096+1024}")
                if opt.get("abl", 0) & 2: rd = rd[:1] if t == 0 else []
                if opt.get("abl", 0) & 4: rd = rd[-2:]
                c = "0" if (j == 0 and s == 0) else vr(Oacc+16*t, 16)
                add_slot(("s", j), rd, f"v_mfma_f32_32x32x16_bf16 {vr(Oacc+16*t,16)}, {ar(ab,4)}, {ar(XF+4*xi,4)}, {c}")
    def frag_ops(f):
        b = Sreg + 8 * f
        return ([f"v_fma_f32 v{b+i}, v{b+i}, s{S_C}, -v{VMC}" for i in range(8)] +
                [f"v_exp_f32 v{b+i}, v{b+i}" for i in range(8)] +
                [f"v_cvt_pk_bf16_f32 v{b+i}, v{b+2*i}, v{b+2*i+1}" for i in range(4)])
    def max_ops(hh, sg):
        b = Sreg + 16 * sg
        ops = []
        for i in range(8):
            if hh == 0 and sg == 0 and i == 0:
                ops.append(f"v_max_f32 v{VM}, v{b}, v{b+1}")
            else:
                ops.append(f"v_max3_f32 v{VM}, v{VM}, v{b+2*i}, v{b+2*i+1}")
        return ops
    unit_first = {}
    for hh in range(2):
        for j in range(4):
            unit = ("k", hh*4+j)
            for u in range(2):
                sg = 2 * j + u
                mo = max_ops(hh, sg - 1) if sg > 0 else []
                for m in range(8):
                    ab = newbuf()
                    sb = Sreg + 16 * sg
                    rd = [f"ds_read_b128 {ar(ab,4)}, v{RA+m} offset:{u*8192}"]
                    c = "0" if m == 0 else vr(sb, 16)
                    fill = mo[2*(m-4):2*(m-4)+2] if m >= 4 else []
                    add_slot(unit, rd, f"v_mfma_f32_32x32x16_bf16 {vr(sb,16)}, {ar(ab,4)}, {vr(QF+4*m,4)}, {c}", fill=fill)
        for j in range(4):
            unit = ("v", hh*4+j)
            for m in range(4):
                f = 4 * j + m
                pb = Sreg + 8 * f
                nxt = frag_ops(f + 1) if f < 15 else []
                c = "0" if (hh == 0 and f == 0) else ar(LACC, 16)
                add_slot(unit, [], f"v_mfma_f32_32x32x16_bf16 {ar(LACC,16)}, {ar(ONES,4)}, {vr(pb,4)}, {c}", fill=nxt[0:5])
                for t in range(4):
                    ab = newbuf()
                    rd = [f"ds_read_b64_tr_b16 {ar(ab,2)}, v{RA+t} offset:{m*4096}",
                          f"ds_read_b64_tr_b16 {ar(ab+2,2)}, v{RA+t} offset:{m*4096+1024}"]
                    c = "0" if (hh == 0 and f == 0) else vr(Oacc+16*t, 16)
                    fl = [nxt[5:9], nxt[9:13], nxt[13:16], nxt[16:20]][t]
                    add_slot(unit, rd, f"v_mfma_f32_32x32x16_bf16 {vr(Oacc+16*t,16)}, {ar(ab,4)}, {vr(pb,4)}, {c}", fill=fl)
    N = len(slots)
    for k, s in enumerate(slots):
        unit_first.setdefault(s["unit"], k)
    def unit_range(u):
        ks = [k for k, s in enumerate(slots) if s["unit"] == u]
        return ks[0], ks[-1] + 1
    for j in range(8):
        k0 = unit_first[("s", j)]
        slots[k0]["post"].append("barrier2") if j >= 1 else None
        ops = [(g, ("x", j+2)) for g in dma_ops(("x", j+2))] + [(g, ("w", j+2)) for g in dma_ops(("w", j+2))]
        for i, (g, t) in enumerate(ops):
            if opt.get("abl", 0) & 1: g = ["s_nop 0"]
            slots[k0 + i * opt.get("p1sp", 2)]["dma"].append((g, t, "AB"))
    k0 = unit_first[("s", 8)]
    i = 0
    for n in range(NPRE):
        for g in dma_ops(kvt[n]):
            slots[k0 + 2 * i]["dma"].append((g, kvt[n], "A" if ROLES else "AB")); i += 1
    for n in range(NPRE, 16):
        a, b = unit_range(kvt[n - D])
        L = b - a
        for i, g in enumerate(dma_ops(kvt[n])):
            slots[a + (2 * i + 1) * L // 8]["dma"].append((g, kvt[n], "AB"))
    VWOr = 1
    def w_ops(g):
        out = []
        pre = [f"s_add_u32 s100, s{S_W}, {4*g+7}", "s_and_b32 s100, s100, 31", f"s_mul_i32 s{S_WL}, s100, 5120",
               f"s_lshl_b32 s100, s{S_HI}, 2", f"s_add_u32 s100, s100, s{S_W}", f"s_add_u32 s100, s100, {4*g}", "s_and_b32 s100, s100, 31",
               f"s_mul_i32 s{S_WG}, s100, {32*1280}", f"s_mov_b32 m0, s{S_WL}"]
        regs = [VK, VK+1, VK+2, VK+3, 1]
        for ee in range(4):
            out.append((pre if ee == 0 else []) + [f"buffer_load_dwordx4 v{regs[ee]}, s[{SWO}:{SWO+3}], s{S_WG} offen offset:{1024*ee}{WOF} lds"])
        out.append([f"s_add_u32 m0, s{S_WL}, 4096", f"buffer_load_dwordx4 v{regs[4]}, s[{SWO}:{SWO+3}], s{S_WG} offen{WOF} lds"])
        return out
    NWE = opt.get("nwe", 3)
    if not STOP:
        for g in range(NWE):
            a, b = unit_range(kvt[16 - D + g]) if 16 - D + g <= 15 else unit_range(kvt[15])
            L = b - a
            for i, gg in enumerate(w_ops(g)):
                slots[a + (2 * i + 1) * L // 10]["dma"].append((gg, ("W", g), "AB"))
    def gap_q_pre(): pass
    def gap_q_post():
        for i in range(32):
            e(f"v_cvt_pk_bf16_f32 v{QF+i}, v{Oacc+2*i}, v{Oacc+2*i+1}")
    def gap_sm_pre(hh):
        for o in max_ops(hh, 7): e(o)
        e(f"v_mov_b32 v{T0}, v{VM}")
        e(f"v_permlane32_swap_b32 v{T0}, v{VM}")
        e(f"v_max_f32 v{VM}, v{T0}, v{VM}")
        if hh == 0:
            e(f"v_mul_f32 v{VMC}, s{S_C}, v{VM}")
            wait_vm(["dbgld"])
            l1, l2 = newlab("dc"), newlab("dc")
            e("s_mov_b32 s101, 0")
            e.label(l1)
            e(f"v_cmp_le_u32 vcc, 0x80, v{T3}")
            e("s_cmp_eq_u64 vcc, -1")
            e(f"s_cbranch_scc1 {l2}")
            e("s_add_u32 s101, s101, 1")
            e("s_cmp_ge_u32 s101, 0x100000")
            e(f"s_cbranch_scc1 {l2}")
            e("s_sleep 8")
            e(f"buffer_load_ubyte v{T3}, v{VPO}, s[{SD}:{SD+3}], 0 offen sc1")
            e("s_waitcnt vmcnt(0)")
            e(f"s_branch {l1}")
            e.label(l2)
            e(f"v_cmp_eq_u32 vcc, v{T3}, v{VDB}")
            e("s_and_b32 s100, vcc_lo, 0xff")
            e("s_cmp_eq_u32 s100, 0xff")
            e(f"s_cselect_b32 s{S_FAST}, {0 if FORCE_SLOW else 1}, 0")
        else:
            e(f"v_mul_f32 v{T1}, s{S_C}, v{VM}")
            e(f"v_sub_f32 v{VAL}, v{VMC}, v{T1}")
            e(f"v_exp_f32 v{VAL}, v{VAL}")
            e(f"v_mov_b32 v{VMC}, v{T1}")
            e(f"v_accvgpr_read_b32 v{T0}, a{LACC}")
            for i in range(64):
                e(f"v_mul_f32 v{Oacc+i}, v{Oacc+i}, v{VAL}")
            e(f"v_mul_f32 v{T0}, v{T0}, v{VAL}")
            e(f"v_accvgpr_write_b32 a{LACC}, v{T0}")
            if not STOP:
                for ee in range(4): e(f"v_accvgpr_read_b32 v{VK+ee}, a{AWO+ee}")
                e(f"v_accvgpr_read_b32 v1, a{AWO+4}")
    def gap_sm_post(hh):
        for o in frag_ops(0): e(o)
    assert D <= 4
    gaps = {unit_first[("k", 0)]: (gap_q_pre, gap_q_post),
            unit_first[("v", 0)]: (lambda: gap_sm_pre(0), lambda: gap_sm_post(0)),
            unit_first[("v", 4)]: (lambda: gap_sm_pre(1), lambda: gap_sm_post(1))}
    def enter_unit(u):
        if u[0] == "s":
            j = u[1]
            wait_vm([("x", j), ("w", j)])
            e("s_barrier")
            if j == 0:
                e(f"buffer_store_byte v{VDB}, v{VZ}, s[{SD}:{SD+3}], 0 offen sc1"); vm_add("dbgst")
            e(f"v_add_u32 v{RA}, {slot_of[('w',j)]*16384}, v{VBW}")
            e(f"v_add_u32 v{RA+4}, {slot_of[('x',j)]*16384}, v{VAX}")
            for t in range(1, 4):
                e(f"v_xor_b32 v{RA+t}, {t<<6}, v{RA}")
                e(f"v_xor_b32 v{RA+4+t}, {t<<5}, v{RA+4}")
        else:
            wait_vm([u])
            e("s_barrier")
            if u == ("k", 2):
                e(f"buffer_load_ubyte v{T3}, v{VPO}, s[{SD}:{SD+3}], 0 offen sc1"); vm_add("dbgld")
            so = slot_of[u] * 16384
            if u[0] == "k":
                e(f"v_add_u32 v{RA}, {so}, v{VAK}")
                for m in range(1, 8): e(f"v_xor_b32 v{RA+m}, {m<<5}, v{RA}")
            else:
                e(f"v_add_u32 v{RA}, {so}, v{VBW}")
                for t in range(1, 4): e(f"v_xor_b32 v{RA+t}, {t<<6}, v{RA}")
    st = dict(rd=0, cur=None)
    lg = []
    def issue_reads(upto):
        while st["rd"] <= upto and st["rd"] < N:
            s = slots[st["rd"]]
            if s["unit"] != st["cur"]:
                st["cur"] = s["unit"]
                enter_unit(st["cur"])
                if diag >= 2 and st["cur"][0] == "s": stamp()
            for r in s["reads"]:
                e(r); lg.append(st["rd"])
            st["rd"] += 1
    def next_gap(k):
        c = [g for g in gaps if g > k]
        return min(c) if c else N
    inA = [False]
    for k in range(N):
        s = slots[k]
        if k in gaps:
            stamp()
            gaps[k][0]()
            issue_reads(k + LA - 1)
            gaps[k][1]()
            stamp()
        elif k == 0:
            issue_reads(LA - 1)
            stamp()
        if s["reads"]:
            idx = max(i for i, t in enumerate(lg) if t == k)
            n_after = len(lg) - 1 - idx
            assert n_after <= 15
            e(f"s_waitcnt lgkmcnt({n_after})")
        e(s["mf"])
        for p in s["post"]:
            if p == "barrier2": e("s_barrier")
        issue_reads(min(k + LA, next_gap(k) - 1))
        for g, t, roles in s["dma"]:
            if roles == "A":
                l1 = newlab("a")
                e(f"s_cmp_eq_u32 s{S_ROLE}, 0")
                e(f"s_cbranch_scc0 {l1}")
                emit_group(g, t, roles)
                e.label(l1)
            else:
                emit_group(g, t, roles)
        for f in s["fill"]: e(f)
    stamp()
    if not STOP:
        wait_vm([("W", 0)] if NWE < 2 else [("W", 1)])
        e("s_barrier")
    e(f"v_accvgpr_read_b32 v{T0}, a{LACC}")
    e(f"s_movk_i32 s{S_SO}, 4096")
    e(f"v_rcp_f32 v{T0}, v{T0}")
    e(f"s_cmp_eq_u32 s{S_FAST}, 0")
    for t in range(4):
        for i in range(16):
            e(f"v_mul_f32 v{Oacc+16*t+i}, v{Oacc+16*t+i}, v{T0}")
        d = QF + 8 * t
        for u in range(2):
            b = Oacc + 16 * t + 4 * u
            e(f"v_cvt_pk_bf16_f32 v{d+4*u}, v{b}, v{b+1}")
            e(f"v_cvt_pk_bf16_f32 v{d+4*u+1}, v{b+2}, v{b+3}")
            e(f"v_cvt_pk_bf16_f32 v{d+4*u+2}, v{b+8}, v{b+9}")
            e(f"v_cvt_pk_bf16_f32 v{d+4*u+3}, v{b+10}, v{b+11}")
        for i in range(4):
            e(f"v_permlane16_swap_b32 v{d+i}, v{d+4+i}")
        l1, l2 = newlab("o"), newlab("o")
        so = f"s{S_SO}" if t >= 2 else "0"
        e(f"s_cbranch_scc1 {l1}")
        for z in range(2):
            e(f"buffer_store_dwordx4 {vr(d+4*z,4)}, v{VL16}, s[{SO}:{SO+3}], {so} offen offset:{((2*t+z)&3)*1024}")
        e(f"s_branch {l2}")
        e.label(l1)
        for z in range(2):
            e(f"buffer_store_dwordx4 {vr(d+4*z,4)}, v{VL16}, s[{SO}:{SO+3}], {so} offen offset:{((2*t+z)&3)*1024} sc1")
        e.label(l2)
        vm_add("Ost"); vm_add("Ost")
    stamp()
    if not STOP:
        tail(e, opt, locals())
    if diag:
        e("s_waitcnt vmcnt(0)")
        stamp()
        e("s_memrealtime s[100:101]")
        e("s_waitcnt lgkmcnt(0)")
        e(f"s_mov_b32 s29, {WS_DIAG}")
        srd(e, 8, 78, 79, 29, 1 << 20)
        e("s_lshl_b32 s29, s2, 2"); e("s_add_u32 s29, s29, s3"); e("s_lshl_b32 s29, s29, 7")
        e("v_mov_b32 v1, s29")
        vals = [f"s{40+k}" for k in range(nstamp[0])] + ["0"] * (24 - nstamp[0]) + ["s94", "s95", "s100", "s101"]
        e("s_getreg_b32 s30, hwreg(HW_REG_XCC_ID)")
        vals += ["s30", f"s{S_ROLE}", f"s{S_FAST}", "0"]
        for q in range(8):
            for i in range(4): e(f"v_mov_b32 v{4+i}, {vals[4*q+i]}")
            e(f"buffer_store_dwordx4 v[4:7], v1, s[8:11], 0 offen offset:{16*q}")
    e.label("L_done")
    e("s_endpgm")
    e.raw('.section .rodata,"a"')
    kernel_desc(e, kname, 512, 256)
    sys.stderr.write(f"nops inserted: {e.nnop}, instrs: {sum(1 for x in e.L if x[0])}\n")
    return e.text()

def tail(e, opt, L):
    g = L
    S_W, S_B, S_HG, S_HI, S_T0, S_T1, S_SO, S_FAST = [g[k] for k in "S_W S_B S_HG S_HI S_T0 S_T1 S_SO S_FAST".split()]
    SOG, SF, SP, QF, V_L, VL16, VPO, VZ, T0, T1, T2, T3 = [g[k] for k in "SOG SF SP QF V_L VL16 VPO VZ T0 T1 T2 T3".split()]
    vm_add, wait_vm, emit_group, w_ops, newlab, stamp, NWE = [g[k] for k in "vm_add wait_vm emit_group w_ops newlab stamp NWE".split()]
    LA = opt.get("LA4", 6); R = LA + 2
    ACC = 128; FR = 168; VB = 12
    S_PM = 34
    e(f"v_lshrrev_b32 v{T1}, 2, v{V_L}")
    e(f"v_mul_u32_u24 v{T1}, 160, v{T1}")
    e(f"v_and_b32 v{T2}, 3, v{V_L}")
    e(f"v_lshl_add_u32 v{VB}, v{T2}, 3, v{T1}")
    e(f"v_add_u32 v{VB+1}, {12*5120}, v{VB}")
    e(f"v_add_u32 v{VB+2}, {24*5120}, v{VB}")
    e(f"s_lshl_b32 s{S_T0}, s2, 3"); e(f"s_add_u32 s{S_T0}, s{S_T0}, s{S_W}"); e(f"s_lshl_b32 s{S_T0}, s{S_T0}, 7")
    e(f"v_mov_b32 v{VZ}, s{S_T0}")
    e(f"v_mov_b32 v{T1}, 0x7fffffff")
    e(f"v_cmp_eq_u32 vcc, 0, v{V_L}")
    e(f"v_cndmask_b32 v{VZ}, v{T1}, v{VZ}, vcc")
    e(f"v_add_u32 v{T1}, s{S_HI}, v{V_L}")
    e(f"v_and_b32 v{T1}, 7, v{T1}")
    e(f"s_and_b32 s{S_T0}, s2, 31"); e(f"s_lshl_b32 s{S_T0}, s{S_T0}, 3"); e(f"s_add_u32 s{S_T0}, s{S_T0}, s{S_W}"); e(f"s_lshl_b32 s{S_T0}, s{S_T0}, 7")
    e(f"v_lshl_add_u32 v{VPO}, v{T1}, 15, s{S_T0}")
    e(f"v_mov_b32 v{T2}, 1")
    slots = []
    for c in range(32):
        p = (c + 7) & 31
        for tn in range(5):
            k = len(slots); fb = FR + 4 * (k % R)
            base = VB + p // 12; off = (p % 12) * 5120 + tn * 32
            rd = [f"ds_read_b64_tr_b16 {vr(fb,2)}, v{base} offset:{off}", f"ds_read_b64_tr_b16 {vr(fb+2,2)}, v{base} offset:{off+2560}"]
            mf = []
            for z in range(2):
                d = ACC + 4 * (z * 5 + tn)
                cc = "0" if c == 0 else vr(d, 4)
                b = vr(QF + 8 * c + 4 * z, 4) if c < 4 else ar(((c - 4) * 2 + z) * 4, 4)
                mf.append(f"v_mfma_f32_16x16x32_bf16 {vr(d,4)}, {vr(fb,4)}, {b}, {cc}")
            slots.append(dict(unit=c // 4, reads=rd, mf=mf, act=[]))
    N = len(slots)
    def o_ops(h):
        out = []
        pre = [f"s_add_u32 s100, s{S_HI}, {h}", "s_and_b32 s100, s100, 7", f"s_lshl_b32 s{S_T0}, s100, 15", f"s_add_u32 s{S_T1}, s{S_T0}, 4096"]
        for f in range(8):
            so = S_T0 if f < 4 else S_T1
            out.append((pre if f == 0 else []) + [f"buffer_load_dwordx4 {ar(((h-1)*8+f)*4,4)}, v{VL16}, s[{SOG}:{SOG+3}], s{so} offen offset:{(f&3)*1024} sc1"])
        return out
    def check_flag(h):
        l1, l2 = newlab("p"), newlab("p")
        e("s_mov_b32 s101, 0")
        e.label(l1)
        e(f"s_bitcmp1_b32 s{S_PM}, {h}")
        e(f"s_cbranch_scc1 {l2}")
        e("s_add_u32 s101, s101, 1")
        e("s_cmp_ge_u32 s101, 0x100000")
        e(f"s_cbranch_scc1 {l2}")
        e(f"buffer_load_dword v{T3}, v{VPO}, s[{SF}:{SF+3}], 0 offen sc1")
        e("s_waitcnt vmcnt(0)")
        e(f"v_cmp_eq_u32 vcc, 1, v{T3}")
        e(f"s_mov_b32 s{S_PM}, vcc_lo")
        e(f"s_branch {l1}")
        e.label(l2)
    def flag_store():
        wait_vm(["Ost"])
        l1, l2 = newlab("f"), newlab("f")
        e(f"s_cmp_eq_u32 s{S_FAST}, 0")
        e(f"s_cbranch_scc1 {l1}")
        e(f"buffer_store_dword v{T2}, v{VZ}, s[{SF}:{SF+3}], 0 offen")
        e(f"s_branch {l2}")
        e.label(l1)
        e(f"buffer_store_dword v{T2}, v{VZ}, s[{SF}:{SF+3}], 0 offen sc1")
        e.label(l2)
        vm_add("flag")
        stamp()
    def grp(gg, tag):
        return lambda: emit_group(gg, tag)
    wq = [(gg, ("W", gi)) for gi in range(NWE, 8) for gg in w_ops(gi)]
    FS = opt.get("fs", 8)
    PS = opt.get("ps", 14)
    nw0 = opt.get("nw0", 5)
    nw1 = opt.get("nw1", 5)
    for i in range(nw0):
        gg, tag = wq.pop(0); slots[i]["act"].append(grp(gg, tag))
    slots[FS]["act"].append(flag_store)
    for i in range(nw1):
        gg, tag = wq.pop(0); slots[FS + 1 + i]["act"].append(grp(gg, tag))
    def poll_issue():
        e(f"buffer_load_dword v{T3}, v{VPO}, s[{SF}:{SF+3}], 0 offen sc1"); vm_add("poll")
    slots[PS]["act"].append(poll_issue)
    def poll_take():
        wait_vm(["poll"])
        e(f"v_cmp_eq_u32 vcc, 1, v{T3}")
        e(f"s_mov_b32 s{S_PM}, vcc_lo")
        stamp()
        for h in (1, 2):
            check_flag(h)
            for gg in o_ops(h): emit_group(gg, ("O", h))
        stamp()
    for h in range(1, 6):
        a = 20 * h
        q = []
        if h + 2 <= 7:
            oo = o_ops(h + 2)
            q.append(lambda hh=h + 2: check_flag(hh))
            q += [grp(gg, ("O", h + 2)) for gg in oo]
        for i in range(5):
            if wq:
                gg, tag = wq.pop(0); q.append(grp(gg, tag))
        for i, fn in enumerate(q):
            slots[a + i]["act"].append(fn)
    assert not wq
    lg = []; st = dict(rd=0, cur=-1)
    def issue_reads(upto):
        while st["rd"] <= upto and st["rd"] < N:
            s = slots[st["rd"]]
            if s["unit"] != st["cur"]:
                st["cur"] = s["unit"]
                h = st["cur"]
                if h >= 2 or (h == 1 and NWE < 2):
                    wait_vm([("W", h)])
                    e("s_barrier")
            for r in s["reads"]:
                e(r); lg.append(st["rd"])
            st["rd"] += 1
    issue_reads(LA - 1)
    for k in range(N):
        if k == 20: poll_take()
        if k % 20 == 0 and k > 0: wait_vm([("O", k // 20)])
        idx = max(i for i, t in enumerate(lg) if t == k)
        e(f"s_waitcnt lgkmcnt({len(lg)-1-idx})")
        for m in slots[k]["mf"]: e(m)
        issue_reads(k + LA)
        for fn in slots[k]["act"]: fn()
    stamp()
    e(f"s_lshl_b32 s{S_T0}, s{S_B}, 3"); e(f"s_add_u32 s{S_T0}, s{S_T0}, s{S_HI}"); e(f"s_lshl_b32 s{S_T0}, s{S_T0}, 4")
    e(f"s_mul_i32 s{S_T0}, s{S_T0}, 10240"); e(f"s_add_u32 s{S_T0}, s{S_T0}, {WS_P}")
    srd(e, SP, 78, 79, S_T0, 16 * 10240)
    e(f"s_lshl_b32 s100, s{S_HG}, 2"); e(f"s_add_u32 s100, s100, s{S_W}"); e("s_mul_i32 s100, s100, 10240")
    e("s_add_u32 s101, s100, 4096"); e("s_add_u32 s36, s100, 8192")
    for tau in range(10):
        so = ["s100", "s101", "s36"][tau // 4]
        e(f"buffer_store_dwordx4 {vr(ACC+4*tau,4)}, v{VL16}, s[{SP}:{SP+3}], {so} offen offset:{(tau&3)*1024} sc1")
    e(f"v_add_u32 v{VZ}, 512, v{VZ}")
    e(f"v_and_b32 v{T1}, 3, v{V_L}")
    e(f"s_and_b32 s{S_T0}, s2, 0xf9"); e(f"s_lshl_b32 s{S_T0}, s{S_T0}, 3"); e(f"s_add_u32 s{S_T0}, s{S_T0}, s{S_HG}"); e(f"s_add_u32 s{S_T0}, s{S_T0}, 4")
    e(f"s_lshl_b32 s{S_T0}, s{S_T0}, 7")
    e(f"v_lshl_add_u32 v{VPO}, v{T1}, 11, s{S_T0}")
    SOUT = 8
    e(f"s_lshl_b32 s{S_T0}, s{S_B}, 2"); e(f"s_add_u32 s{S_T0}, s{S_T0}, s{S_HG}"); e(f"s_mul_i32 s{S_T0}, s{S_T0}, {32*1280}")
    e(f"s_mul_i32 s{S_T1}, s{S_HI}, 160"); e(f"s_add_u32 s{S_T0}, s{S_T0}, s{S_T1}")
    e(f"s_sub_u32 s{S_T1}, {1024*1280}, s{S_T0}")
    srd(e, SOUT, 74, 75, S_T0, f"s{S_T1}")
    e(f"v_and_b32 v2, 15, v{V_L}"); e("v_mul_u32_u24 v2, 1280, v2")
    e(f"v_lshrrev_b32 v3, 4, v{V_L}"); e("v_lshl_add_u32 v2, v3, 3, v2")
    e("s_waitcnt vmcnt(0)")
    e(f"buffer_store_dword v{T2}, v{VZ}, s[{SF}:{SF+3}], 0 offen sc1")
    stamp()
    l1, l2 = newlab("q"), newlab("q")
    e("s_mov_b32 s101, 0")
    e.label(l1)
    e(f"buffer_load_dword v{T3}, v{VPO}, s[{SF}:{SF+3}], 0 offen sc1")
    e("s_waitcnt vmcnt(0)")
    e(f"v_cmp_eq_u32 vcc, 1, v{T3}")
    e("s_cmp_eq_u64 vcc, -1")
    e(f"s_cbranch_scc1 {l2}")
    e("s_add_u32 s101, s101, 1")
    e("s_cmp_lt_u32 s101, 0x100000")
    e(f"s_cbranch_scc1 {l1}")
    e.label(l2)
    stamp()
    lsk, ldone = newlab("r"), newlab("r")
    e(f"s_mul_i32 s36, s{S_HG}, 10240")
    e(f"s_lshl_b32 s100, s{S_W}, 10"); e("s_add_u32 s36, s36, s100")
    for q in range(3):
        if q == 2:
            e(f"s_cmp_ge_u32 s{S_W}, 2"); e(f"s_cbranch_scc1 {lsk}")
        e(f"s_add_u32 s100, s36, {q*4096}")
        for hg in range(4):
            e(f"buffer_load_dwordx4 {vr(32+16*q+4*hg,4)}, v{VL16}, s[{SP}:{SP+3}], s100 offen sc1")
            if hg < 3: e("s_add_u32 s100, s100, 40960")
    e.label(lsk)
    e("s_waitcnt vmcnt(0)")
    for q in range(3):
        if q == 2:
            e(f"s_cmp_ge_u32 s{S_W}, 2"); e(f"s_cbranch_scc1 {ldone}")
        b = 32 + 16 * q
        for i in range(4):
            e(f"v_add_f32 v{b+i}, v{b+i}, v{b+4+i}")
            e(f"v_add_f32 v{b+8+i}, v{b+8+i}, v{b+12+i}")
        for i in range(4):
            e(f"v_add_f32 v{b+i}, v{b+i}, v{b+8+i}")
        e(f"v_cvt_pk_bf16_f32 v{b+4}, v{b}, v{b+1}")
        e(f"v_cvt_pk_bf16_f32 v{b+5}, v{b+2}, v{b+3}")
        e(f"s_add_u32 s100, s{S_W}, {4*q}")
        e("s_cmp_ge_u32 s100, 5")
        e(f"s_cselect_b32 s101, {16*1280 - 5*32}, 0")
        e("s_lshl_b32 s100, s100, 5")
        e("s_add_u32 s100, s100, s101")
        e(f"buffer_store_dwordx2 {vr(b+4,2)}, v2, s[{SOUT}:{SOUT+3}], s100 offen")
    e.label(ldone)

if __name__ == "__main__":
    out = sys.argv[1]
    opt = {}
    for a in sys.argv[2:]:
        k, v = a.split("=")
        try: v = int(v)
        except: pass
        if k.endswith("flag"): v = (" " + v.replace("+", " ")) if v not in ("none", 0) else ""
        opt[k] = v
    open(out, "w").write(gen(opt))
```

```python
import sys, math
sys.path.insert(0, "gen")
from asmlib import *
NAME = "standalone__gqa_block_cached__near_ridge"
WS_O = 0
WS_P = 16 << 20
WS_F = 28 << 20
WS_DIAG = 32 << 20
SCALE = math.log2(math.e) / math.sqrt(128.0)
SPIN = 0x40000
NONCE_OFF = 256 * 1024

def cost(s):
    op = s.split()[0]
    if op in ("v_exp_f32", "v_rcp_f32"): return 8
    if op.startswith("v_mfma"): return 8
    return 4

def gen(opt):
    e = Asm()
    kname = NAME + "_kernel"
    e.raw("; @launch grid=(256,1,1) block=(256,1,1) lds=163840")
    e.raw('.amdgcn_target "amdgcn-amd-amdhsa--gfx950"')
    e.raw(".text")
    kernel_header(e, kname)
    LA = opt.get("LA", 6)
    D = opt.get("d", 3)
    KVF = opt.get("kvflag", "")
    XWF = opt.get("xwflag", "")
    WOF = opt.get("woflag", "")
    diag = opt.get("diag", 0)
    FORCE_SLOW = opt.get("slow", 0)
    STOP = opt.get("stop", 0)
    PAIRW = opt.get("pairw", 1)
    lab = [0]
    def newlab(p):
        lab[0] += 1
        return f"L_{p}{lab[0]}"
    nstamp = [0]
    def stamp():
        if not diag: return
        k = nstamp[0]; nstamp[0] += 1
        assert k < 23
        e("s_memtime s[92:93]")
        e("s_waitcnt lgkmcnt(0)")
        e(f"s_mov_b32 s{40+k}, s92")
    S_W, S_B, S_HG, S_HI, S_H = 3, 4, 5, 6, 7
    SX, SW, SK, SV, SO = 8, 12, 16, 20, 24
    S_W4K, S_T0, S_T1, S_SO, S_C = 28, 29, 30, 31, 32
    S_PO, S_KT, S_FAST, S_SX, S_SW2 = 33, 34, 35, 36, 37
    S_WL, S_WG = 38, 39
    SWO, SOG, SF, SP = 80, 84, 88, 96
    SD = SOG
    VK, VV, VAX, VBW, VAK = 2, 6, 7, 8, 9
    VL16, VDB = 10, 11
    RA = 12
    VM, VMC, VAL = 20, 21, 22
    VWO = [0, 1, 23, 7, 29]
    V_L, T0, T1, T2, T3 = 24, 25, 26, 27, 28
    T4 = 29
    VZ, VPO = 30, 31
    S_TAG = 63
    QF = 32
    Oacc, Sreg = 64, 128
    VX, VW = 128, 132
    R = LA + 2
    AF = 0; XF = 4 * R; XR = 3
    ONES = 44; LACC = 48
    assert XF + 4 * XR <= ONES
    AWO = 64

    e("s_cmp_ge_u32 s2, 256")
    e("s_cbranch_scc1 L_done")
    if diag: e("s_memrealtime s[94:95]")
    e("s_load_dwordx16 s[64:79], s[0:1], 0")
    if opt.get("pf", 1):
        e("s_getpc_b64 s[100:101]")
        e("s_and_b32 s100, s100, 0xffffff00")
        e("s_lshr_b32 s99, s2, 3")
        e("s_lshl_b32 s99, s99, 10")
        e("v_and_b32 v3, 63, v0")
        e("v_lshlrev_b32 v3, 4, v3")
        e("v_lshrrev_b32 v4, 6, v0")
        e("v_lshl_add_u32 v3, v4, 15, v3")
        e("v_add_u32 v3, s99, v3")
        e(f"v_min_u32 v3, (L_done-{kname}-16)&0xfffffff0, v3")
        e("v_mov_b32 v5, s101")
        e("v_add_co_u32 v4, vcc, s100, v3")
        e("v_addc_co_u32 v5, vcc, 0, v5, vcc")
        e("global_load_dwordx4 a[252:255], v[4:5], off")
    e("v_lshrrev_b32 v1, 6, v0")
    e(f"v_and_b32 v{V_L}, 63, v0")
    e(f"v_readfirstlane_b32 s{S_W}, v1")
    e("s_and_b32 s100, s2, 1")
    e("s_lshl_b32 s100, s100, 2")
    e("s_bfe_u32 s101, s2, 0x20003")
    e(f"s_add_u32 s{S_B}, s100, s101")
    e(f"s_bfe_u32 s{S_HG}, s2, 0x20001")
    e(f"s_lshr_b32 s{S_HI}, s2, 5")
    e(f"s_lshl_b32 s{S_H}, s{S_HG}, 3")
    e(f"s_add_u32 s{S_H}, s{S_H}, s{S_HI}")
    e("s_lshl_b32 s100, s101, 2")
    e(f"s_lshr_b32 s{S_KT}, 0x8530, s100")
    e(f"s_and_b32 s{S_KT}, s{S_KT}, 15")
    e(f"s_add_u32 s{S_KT}, s{S_KT}, s{S_HI}")
    e(f"s_cmp_ge_u32 s{S_KT}, 10")
    e("s_cselect_b32 s100, 10, 0")
    e(f"s_sub_u32 s{S_KT}, s{S_KT}, s100")
    e(f"s_lshl_b32 s{S_W4K}, s{S_W}, 12")
    e(f"v_lshrrev_b32 v{T0}, 4, v{V_L}")
    e(f"v_and_b32 v{T1}, 15, v{V_L}")
    e(f"v_lshrrev_b32 v{T2}, 3, v{V_L}")
    e(f"s_lshl_b32 s{S_T0}, s{S_W}, 5")
    e(f"v_add_u32 v{T2}, s{S_T0}, v{T2}")
    e(f"v_mul_u32_u24 v{T2}, 1280, v{T2}")
    e(f"v_and_b32 v{T3}, 7, v{V_L}")
    e(f"v_xor_b32 v{T4}, v{T0}, v{T3}")
    e(f"v_lshl_add_u32 v{VX}, v{T4}, 4, v{T2}")
    e(f"v_add_u32 v{VX+2}, {2*9216}, v{VX}")
    e(f"v_xor_b32 v{T4}, 64, v{VX}")
    e(f"v_add_u32 v{VX+1}, 9216, v{T4}")
    e(f"v_add_u32 v{VX+3}, {3*9216}, v{T4}")
    e(f"v_lshlrev_b32 v{T2}, 2, v{T0}")
    e(f"v_xor_b32 v{T2}, v{T2}, v{T1}")
    e(f"v_lshlrev_b32 v{T2}, 4, v{T2}")
    e(f"s_lshl_b32 s{S_T0}, s{S_W}, 17")
    e(f"v_lshl_add_u32 v{VW}, v{T0}, 13, s{S_T0}")
    e(f"v_add_u32 v{VW}, v{VW}, v{T2}")
    for jj in range(1, 4):
        e(f"v_add_u32 v{VW+jj}, {jj*(32768-1024)}, v{VW}")
    e(f"v_lshl_add_u32 v{T3}, v{T0}, 8, s{S_W4K}")
    e(f"v_add_u32 v{VV}, v{T2}, v{T3}")
    e("s_waitcnt lgkmcnt(0)")
    e(f"s_mul_i32 s{S_T0}, s{S_B}, 163840")
    srd(e, SX, 64, 65, S_T0, 163840)
    e(f"s_lshl_b32 s{S_T0}, s{S_H}, 8")
    e(f"s_sub_u32 s{S_T1}, {640*8192}, s{S_T0}")
    srd(e, SW, 70, 71, S_T0, f"s{S_T1}")
    stamp()
    vm = []
    def vm_add(tag): vm.append(tag)
    def wait_vm(tags):
        idx = max(i for i, t in enumerate(vm) if t in tags)
        e(f"s_waitcnt vmcnt({min(63, len(vm)-1-idx)})")
    slot_of = {}
    for j in range(10):
        slot_of[("x", j)] = j % 3
        slot_of[("w", j)] = 3 + j % 3
    kvt = [("k",0),("k",1),("k",2),("k",3),("v",0),("v",1),("k",4),("k",5),("v",2),("v",3),("k",6),("k",7),("v",4),("v",5),("v",6),("v",7)]
    for i, t in enumerate(kvt): slot_of[t] = 5 + (i + 1) % 5
    assert D == 3
    def dma_ops(t):
        kind, j = t
        so = slot_of[t] * 16384
        out = []
        for jj in range(4):
            g = []
            if jj == 0:
                g.append(f"s_add_u32 m0, s{S_W4K}, {so}")
                if kind == "x":
                    g += [f"s_lshl_b32 s{S_SX}, s{S_KT}, 7", f"s_lshl_b32 s{S_SW2}, s{S_KT}, 19", f"s_add_u32 s{S_KT}, s{S_KT}, 1",
                          f"s_cmp_ge_u32 s{S_KT}, 10", f"s_cselect_b32 s{S_KT}, 0, s{S_KT}"]
                elif kind in "kv":
                    g.append(f"s_mov_b32 s{S_SO}, {16384*j}")
            elif kind in "kv" and t in kvt[:4]:
                g.append(f"s_add_u32 m0, s{S_W4K}, {so}")
            if kind == "x":
                g.append(f"buffer_load_dwordx4 v{VX+jj}, s[{SX}:{SX+3}], s{S_SX} offen offset:{1024*jj}{XWF} lds")
            elif kind == "w":
                g.append(f"buffer_load_dwordx4 v{VW+jj}, s[{SW}:{SW+3}], s{S_SW2} offen offset:{1024*jj}{XWF} lds")
            elif kind == "k":
                g.append(f"buffer_load_dwordx4 v{VK+jj}, s[{SK}:{SK+3}], s{S_SO} offen offset:{1024*jj}{KVF} lds")
            else:
                g.append(f"buffer_load_dwordx4 v{VV}, s[{SV}:{SV+3}], s{S_SO} offen offset:{1024*jj}{KVF} lds")
            out.append(g)
        return out
    def emit_group(g, tag):
        for s in g: e(s)
        vm_add(tag)
    ini = [dma_ops(("x", 0)), dma_ops(("w", 0)), dma_ops(("x", 1)), dma_ops(("w", 1))]
    for i, t in enumerate((("x", 0), ("w", 0), ("x", 1))):
        for g in ini[i]: emit_group(g, t)
    stamp()
    for jj in range(4):
        e(f"v_add_u32 v{T2}, {4*jj}, v{T0}")
        e(f"v_xor_b32 v{T2}, v{T2}, v{T1}")
        e(f"v_lshl_add_u32 v{VK+jj}, v{T2}, 4, v{T3}")
    e(f"s_lshl_b32 s{S_T1}, s{S_B}, 5")
    e(f"s_add_u32 s{S_T1}, s{S_T1}, s{S_H}")
    e(f"s_lshl_b32 s{S_T0}, s{S_T1}, 17")
    srd(e, SK, 66, 67, S_T0, 131072)
    srd(e, SV, 68, 69, S_T0, 131072)
    e(f"s_lshl_b32 s{S_T0}, s{S_T1}, 15")
    e(f"s_lshl_b32 s100, s{S_W}, 13")
    e(f"s_add_u32 s{S_T0}, s{S_T0}, s100")
    srd(e, SO, 78, 79, S_T0, 8192)
    srd(e, SD, 76, 77, None, 256)
    e(f"s_mul_i32 s{S_T0}, s{S_HG}, {1024*1280}")
    e(f"s_mul_i32 s{S_T1}, s{S_HI}, 160")
    e(f"s_add_u32 s{S_T0}, s{S_T0}, s{S_T1}")
    e(f"s_sub_u32 s{S_T1}, {4096*1280}, s{S_T0}")
    srd(e, SWO, 72, 73, S_T0, f"s{S_T1}")
    e(f"s_mov_b32 s{S_T0}, {WS_F}")
    srd(e, SF, 78, 79, S_T0, 256 * 1024 + 128)
    e(f"s_lshl_b32 s{S_T0}, s{S_B}, 3"); e(f"s_add_u32 s{S_T0}, s{S_T0}, s{S_HI}")
    e(f"s_mul_i32 s{S_T0}, s{S_T0}, 163840"); e(f"s_add_u32 s{S_T0}, s{S_T0}, {WS_P}")
    srd(e, SP, 78, 79, S_T0, 163840)
    e(f"s_lshl_b32 s{S_PO}, s{S_HG}, 2"); e(f"s_add_u32 s{S_PO}, s{S_PO}, s{S_W}"); e(f"s_mul_i32 s{S_PO}, s{S_PO}, 10240")

    e(f"v_and_b32 v{T0}, 31, v{V_L}")
    e(f"v_lshrrev_b32 v{T1}, 5, v{V_L}")
    e(f"v_bfe_u32 v{T2}, v{V_L}, 1, 3")
    e(f"v_xor_b32 v{T2}, v{T2}, v{T1}")
    e(f"v_lshlrev_b32 v{T2}, 4, v{T2}")
    e(f"v_lshl_add_u32 v{T3}, v{T0}, 7, s{S_W4K}")
    e(f"v_add_u32 v{VAX}, v{T2}, v{T3}")
    e(f"v_and_b32 v{T2}, 19, v{T0}")
    e(f"v_bfe_u32 v{T3}, v{T0}, 2, 1")
    e(f"v_lshl_or_b32 v{T2}, v{T3}, 3, v{T2}")
    e(f"v_bfe_u32 v{T3}, v{T0}, 3, 1")
    e(f"v_lshl_or_b32 v{T2}, v{T3}, 2, v{T2}")
    e(f"v_and_b32 v{T3}, 15, v{T2}")
    e(f"v_xor_b32 v{T3}, v{T3}, v{T1}")
    e(f"v_lshlrev_b32 v{T3}, 4, v{T3}")
    e(f"v_lshl_add_u32 v{VAK}, v{T2}, 8, v{T3}")
    e(f"v_bfe_u32 v{T2}, v{V_L}, 2, 2")
    e(f"v_mul_u32_u24 v{T2}, 320, v{T2}")
    e(f"v_lshl_add_u32 v{T2}, v{T1}, 11, v{T2}")
    e(f"v_bfe_u32 v{T3}, v{V_L}, 4, 1")
    e(f"v_lshl_add_u32 v{T2}, v{T3}, 5, v{T2}")
    e(f"v_and_b32 v{T3}, 1, v{V_L}")
    e(f"v_lshl_add_u32 v{T2}, v{T3}, 4, v{T2}")
    e(f"v_bfe_u32 v{T3}, v{V_L}, 1, 1")
    e(f"v_lshl_add_u32 v{VBW}, v{T3}, 3, v{T2}")
    e(f"v_lshlrev_b32 v{VL16}, 4, v{V_L}")
    e(f"s_mov_b32 s{S_C}, {f32bits(SCALE)}")
    e(f"v_mov_b32 v{T0}, 0x3f803f80")
    for i in range(4): e(f"v_accvgpr_write_b32 a{ONES+i}, v{T0}")
    for g in ini[3]: emit_group(g, ("w", 1))
    e(f"s_mov_b32 s100, {NONCE_OFF}")
    e(f"buffer_load_dword v{VDB}, off, s[{SF}:{SF+3}], s100 sc1"); vm_add("oldn")
    e("v_or_b32 v1, s2, v0")
    e(f"v_mov_b32 v{T0}, 0x7fffffff")
    e("v_cmp_eq_u32 vcc, 0, v1")
    e(f"v_cndmask_b32 v{VZ}, v{T0}, 0, vcc")
    e(f"v_and_b32 v{T0}, 7, v{V_L}")
    e("s_and_b32 s100, s2, 31"); e("s_lshl_b32 s100, s100, 10")
    e(f"v_lshl_add_u32 v{VPO}, v{T0}, 15, s100")
    for ee in range(5):
        e(f"v_add_u32 v{T0}, {64*ee}, v{V_L}")
        e(f"v_mul_u32_u24 v{T1}, 6554, v{T0}")
        e(f"v_lshrrev_b32 v{T1}, 16, v{T1}")
        e(f"v_mul_u32_u24 v{T2}, 10, v{T1}")
        e(f"v_sub_u32 v{T2}, v{T0}, v{T2}")
        e(f"v_mul_u32_u24 v{T1}, 1280, v{T1}")
        if ee == 3:
            e(f"v_lshl_add_u32 v{T1}, v{T2}, 4, v{T1}")
            e(f"v_subrev_u32 v{T1}, {1024*ee}, v{T1}")
            e(f"v_accvgpr_write_b32 a{AWO}, v{T1}")
        elif 0 < ee < 4:
            e(f"v_lshl_add_u32 v{T1}, v{T2}, 4, v{T1}")
            e(f"v_subrev_u32 v{VWO[ee]}, {1024*ee}, v{T1}")
        else:
            e(f"v_lshl_add_u32 v{VWO[ee]}, v{T2}, 4, v{T1}")

    slots = []
    def add_slot(unit, reads, mf, tag=None):
        slots.append(dict(unit=unit, reads=reads, mf=mf, fill=[], dma=[], post=[], tag=tag))
    ring = [0]
    def newbuf():
        b = AF + 4 * (ring[0] % R); ring[0] += 1
        return b
    for j in range(10):
        for s in range(4):
            xi = (j * 4 + s) % XR
            for t in range(4):
                ab = newbuf()
                rd = []
                if t == 0: rd.append(f"ds_read_b128 {ar(XF+4*xi,4)}, v{RA+4+s}")
                rd.append(f"ds_read_b64_tr_b16 {ar(ab,2)}, v{RA+t} offset:{s*4096}")
                rd.append(f"ds_read_b64_tr_b16 {ar(ab+2,2)}, v{RA+t} offset:{s*4096+1024}")
                c = "0" if (j == 0 and s == 0) else vr(Oacc+16*t, 16)
                add_slot(("s", j), rd, f"v_mfma_f32_32x32x16_bf16 {vr(Oacc+16*t,16)}, {ar(ab,4)}, {ar(XF+4*xi,4)}, {c}")
    def sbuf(q): return Sreg + 64 * (q & 1)
    def frag_ops(q, f):
        b = sbuf(q) + 8 * f
        return ([f"v_fma_f32 v{b+i}, v{b+i}, s{S_C}, -v{VMC}" for i in range(8)] +
                [f"v_exp_f32 v{b+i}, v{b+i}" for i in range(8)] +
                [f"v_cvt_pk_bf16_f32 v{b+i}, v{b+2*i}, v{b+2*i+1}" for i in range(4)])
    def max_ops(q, sg):
        b = sbuf(q) + 16 * sg
        ops = []
        for i in range(8):
            if q == 0 and sg == 0 and i == 0:
                ops.append(f"v_max_f32 v{VM}, v{b}, v{b+1}")
            else:
                ops.append(f"v_max3_f32 v{VM}, v{VM}, v{b+2*i}, v{b+2*i+1}")
        return ops
    def combine_ops(q):
        ops = [f"v_mov_b32 v{T0}, v{VM}", "s_nop 1", f"v_permlane32_swap_b32 v{T0}, v{VM}", f"v_max_f32 v{VM}, v{T0}, v{VM}"]
        if q == 0:
            ops.append(f"v_mul_f32 v{VMC}, s{S_C}, v{VM}")
        else:
            ops += [f"v_mul_f32 v{T1}, s{S_C}, v{VM}", f"v_sub_f32 v{VAL}, v{VMC}, v{T1}", f"v_exp_f32 v{VAL}, v{VAL}", f"v_mov_b32 v{VMC}, v{T1}"]
        return ops
    def rescale_ops():
        return ([f"v_accvgpr_read_b32 v{T2}, a{LACC}"] + [f"v_mul_f32 v{Oacc+i}, v{Oacc+i}, v{VAL}" for i in range(8)] +
                [f"v_mul_f32 v{T2}, v{T2}, v{VAL}"] + [f"v_mul_f32 v{Oacc+i}, v{Oacc+i}, v{VAL}" for i in range(8, 16)] +
                [f"v_accvgpr_write_b32 a{LACC}, v{T2}"] + [f"v_mul_f32 v{Oacc+i}, v{Oacc+i}, v{VAL}" for i in range(16, 64)])
    seg = {}
    def add_qk(q):
        a = len(slots)
        for jl in range(2):
            unit = ("k", 2*q + jl)
            for u in range(2):
                sg = 2 * jl + u
                sb = sbuf(q) + 16 * sg
                for m in range(8):
                    ab = newbuf()
                    c = "0" if m == 0 else vr(sb, 16)
                    add_slot(unit, [f"ds_read_b128 {ar(ab,4)}, v{RA+m} offset:{u*8192}"],
                             f"v_mfma_f32_32x32x16_bf16 {vr(sb,16)}, {ar(ab,4)}, {vr(QF+4*m,4)}, {c}")
        seg[("qk", q)] = (a, len(slots))
    def add_pv(q):
        a = len(slots)
        for jl in range(2):
            unit = ("v", 2*q + jl)
            for m in range(4):
                f = 4 * jl + m
                pb = sbuf(q) + 8 * f
                first = (q == 0 and f == 0)
                add_slot(unit, [], f"v_mfma_f32_32x32x16_bf16 {ar(LACC,16)}, {ar(ONES,4)}, {vr(pb,4)}, {'0' if first else ar(LACC,16)}")
                for t in range(4):
                    ab = newbuf()
                    rd = [f"ds_read_b64_tr_b16 {ar(ab,2)}, v{RA+t} offset:{m*4096}",
                          f"ds_read_b64_tr_b16 {ar(ab+2,2)}, v{RA+t} offset:{m*4096+1024}"]
                    add_slot(unit, rd, f"v_mfma_f32_32x32x16_bf16 {vr(Oacc+16*t,16)}, {ar(ab,4)}, {vr(pb,4)}, {'0' if first else vr(Oacc+16*t,16)}")
        seg[("pv", q)] = (a, len(slots))
    add_qk(0); add_qk(1); add_pv(0); add_qk(2); add_pv(1); add_qk(3); add_pv(2); add_pv(3)
    N = len(slots)
    unit_first = {}
    for k, s in enumerate(slots): unit_first.setdefault(s["unit"], k)
    def unit_range(u):
        ks = [k for k, s in enumerate(slots) if s["unit"] == u]
        return ks[0], ks[-1] + 1
    for j in range(8):
        k0 = unit_first[("s", j)]
        if j >= 1: slots[k0]["post"].append("barrier2")
        ops = [(g, ("x", j+2)) for g in dma_ops(("x", j+2))] + [(g, ("w", j+2)) for g in dma_ops(("w", j+2))]
        for i, (g, t) in enumerate(ops):
            slots[k0 + 2 * i]["dma"].append((g, t))
    kmix = str(opt.get("kmix", "0002222224")).zfill(10)
    assert sum(map(int, kmix)) == 16
    kops = [(g, kvt[n]) for n in range(4) for g in dma_ops(kvt[n])]
    for j in range(10):
        c = int(kmix[j]); k0 = unit_first[("s", j)]
        for i in range(c):
            if j < 8:
                pos = {1: [7], 2: [7, 15], 3: [7, 15, 15], 4: [7, 7, 15, 15]}[c][i]
            else:
                pos = (2 * i + 1) * 16 // (2 * c)
            slots[k0 + pos]["dma"].append(kops.pop(0))
    for n in range(4, 16):
        a, b = unit_range(kvt[n - D])
        L = b - a
        for i, g in enumerate(dma_ops(kvt[n])):
            slots[a + (2 * i) * L // 16 + 1]["dma"].append((g, kvt[n]))
    NS0 = opt.get('ns0', 4)
    AST = 256 - 20 * (8 - NS0)
    def w_lds(g, dst):
        pre = [f"s_add_u32 s100, s{S_W}, {4*g}"]
        if g < 4: pre += [f"s_mul_i32 s{dst}, s100, 5120"]
        elif g < 6: pre += [f"s_add_u32 s101, s100, 7", f"s_mul_i32 s{dst}, s101, 5120"]
        elif g == 6: pre += ["s_cmp_lt_u32 s100, 25", "s_cselect_b32 s101, 7, -9", "s_add_u32 s101, s100, s101", f"s_mul_i32 s{dst}, s101, 5120"]
        else: pre += [f"s_sub_u32 s101, s100, 9", f"s_mul_i32 s{dst}, s101, 5120"]
        return pre
    def w_ops(g, stage=False):
        glob = [f"s_lshl_b32 s101, s{S_HI}, 2", "s_add_u32 s100, s100, s101", "s_and_b32 s100, s100, 31", f"s_mul_i32 s{S_WG}, s100, {32*1280}"]
        out = []
        if stage:
            pre = [f"s_add_u32 s100, s{S_W}, {4*g}"] + glob
            for ee in range(5):
                out.append((pre if ee == 0 else []) + [f"buffer_load_dwordx4 {ar(AST+20*(g-NS0)+4*ee,4)}, v{VWO[ee]}, s[{SWO}:{SWO+3}], s{S_WG} offen offset:{1024*ee if ee<4 else 0}{WOF}"])
            return out
        pre = w_lds(g, S_WL) + [f"s_mov_b32 m0, s{S_WL}"] + glob
        for ee in range(4):
            out.append((pre if ee == 0 else [f"s_mov_b32 m0, s{S_WL}", "s_nop 0"]) + [f"buffer_load_dwordx4 v{VWO[ee]}, s[{SWO}:{SWO+3}], s{S_WG} offen offset:{1024*ee}{WOF} lds"])
        out.append([f"s_add_u32 m0, s{S_WL}, 4096", "s_nop 0", f"buffer_load_dwordx4 v{VWO[4]}, s[{SWO}:{SWO+3}], s{S_WG} offen{WOF} lds"])
        return out
    def pmap(c): return c if c < 16 else (c + 7 if c < 25 else c - 9)
    wpl = str(opt.get("wpl", "sssssdef"))
    wtail = []
    if not STOP:
        byu = {}
        sp = [it for g in range(8) if wpl[g] == "s" for it in [(gg, ("W", g)) for gg in w_ops(g, g >= NS0)]]
        if sp:
            lo_u, hi_u = [int(c, 16) for c in str(opt.get("wsp", "0c"))]
            nu = hi_u - lo_u + 1
            for i, (gg, tag) in enumerate(sp):
                byu.setdefault(lo_u + i * nu // len(sp), []).append((gg, tag))
        for g in range(8):
            if wpl[g] == "s": continue
            n = int(wpl[g], 16)
            if g == 4 and g < NS0: assert n >= 14
            if g == 5 and g < NS0: assert n >= 15
            byu.setdefault(n, []).extend([(gg, ("W", g)) for gg in w_ops(g, g >= NS0)])
        for n, ops in byu.items():
            a, b = unit_range(kvt[n]); L = b - a
            lo = a + L // 2 + 1 if n + D <= 15 else a + 1
            for i, it in enumerate(ops):
                slots[lo + i * (b - lo) // len(ops)]["dma"].append(it)
    def base_cost(k):
        s = slots[k]
        return 8 + 4 * len(slots[min(N-1, k+LA)]["reads"]) + (2 if PAIRW else 4) + sum(4 * len(g) for g, t in s["dma"]) + sum(cost(x) for x in s["fill"])
    def spread(ops, a, b, dead=None):
        tot = sum(cost(o) for o in ops)
        lo, hi = 0, 400
        def place(level, commit):
            i = 0
            for k in range(a, b):
                c = base_cost(k)
                while i < len(ops):
                    forced = dead and any(oi >= i and sl <= k + 1 for oi, sl in dead)
                    if c + cost(ops[i]) <= level or forced:
                        c += cost(ops[i])
                        if commit: slots[k]["fill"].append(ops[i])
                        i += 1
                    else: break
            return i == len(ops)
        while lo < hi:
            mid = (lo + hi) // 2
            if place(mid, False): hi = mid
            else: lo = mid + 1
        assert place(lo, True)
        return lo
    for q in range(4):
        a, b = seg[("qk", q)]
        for sg in range(3):
            base = a + 8 * (sg + 1)
            mo = max_ops(q, sg)
            for i in range(4): slots[base + 4 + i]["fill"] += mo[2*i:2*i+2]
    lv = []
    for q in range(1, 4):
        a, b = seg[("pv", q - 1)]
        mo = max_ops(q, 3)
        for i in range(4): slots[a + 3 + i]["fill"] += mo[2*i:2*i+2]
        co = combine_ops(q)
        slots[a + 7]["fill"] += co[:4]; slots[a + 8]["fill"] += co[4:]
    for q in (1, 2):
        a, b = seg[("qk", q + 1)]
        lv.append(spread(rescale_ops(), a + 4, b))
    a, b = seg[("qk", 1)]
    lv.append(spread([o for f in range(8) for o in frag_ops(0, f)], a, b))
    for q in (1, 2):
        lv.append(spread([o for f in range(8) for o in frag_ops(q, f)], seg[("pv", q-1)][0] + 9, seg[("qk", q+1)][1]))
    a3 = seg[("pv", 3)][0]
    lv.append(spread([o for f in range(8) for o in frag_ops(3, f)], seg[("pv", 2)][0] + 9, a3 + 30,
                     dead=[(20 * f + 19, a3 + 5 * f) for f in range(8)]))
    sys.stderr.write(f"filler levels {lv}\n")
    def gap_q_post():
        for i in range(32):
            e(f"v_cvt_pk_bf16_f32 v{QF+i}, v{Oacc+2*i}, v{Oacc+2*i+1}")
        e(f"v_accvgpr_read_b32 v{VWO[3]}, a{AWO}")
    def gap0_pre():
        for o in max_ops(0, 3) + combine_ops(0): e(o)
    def gap3_pre():
        for o in rescale_ops(): e(o)
        wait_vm(["dbgld"])
        l1, l2 = newlab("dc"), newlab("dc")
        e("s_mov_b32 s101, 0")
        e.label(l1)
        e(f"v_xor_b32 v{T0}, v{T3}, v{VDB}")
        e(f"v_cmp_gt_u32 vcc, 16, v{T0}")
        e("s_cmp_eq_u64 vcc, -1")
        e(f"s_cbranch_scc1 {l2}")
        e("s_add_u32 s101, s101, 1")
        e(f"s_cmp_ge_u32 s101, {SPIN}")
        e(f"s_cbranch_scc1 {l2}")
        e("s_sleep 8")
        e(f"buffer_load_dword v{T3}, v{VPO}, s[{SF}:{SF+3}], 0 offen offset:512 sc1")
        e("s_waitcnt vmcnt(0)")
        e(f"s_branch {l1}")
        e.label(l2)
        e(f"v_cmp_eq_u32 vcc, 0, v{T0}")
        e(f"s_lshl_b32 s{S_T0}, s{S_B}, 2"); e(f"s_add_u32 s{S_T0}, s{S_T0}, s{S_HG}"); e(f"s_lshl_b32 s{S_T0}, s{S_T0}, 18")
        e(f"s_lshl_b32 s100, s{S_W}, 13")
        e(f"s_add_u32 s{S_T0}, s{S_T0}, s100")
        srd(e, SOG, 78, 79, S_T0, 7 * 32768 + 8192)
        e("s_cmp_eq_u64 vcc, -1")
        e(f"s_cselect_b32 s{S_FAST}, {0 if FORCE_SLOW else 1}, 0")
    nop = lambda: None
    gaps = {seg[("qk", 0)][0]: (nop, gap_q_post, True),
            seg[("qk", 1)][0]: (gap0_pre, nop, False),
            seg[("pv", 3)][0]: (gap3_pre, nop, False)}
    def enter_unit(u):
        if u[0] == "s":
            j = u[1]
            wait_vm([("x", j), ("w", j)])
            e("s_barrier")
            if j == 9:
                e(f"v_add_u32 v{VDB}, 1, v{VDB}")
                e(f"v_cmp_eq_u32 vcc, 0, v{VDB}")
                e(f"s_mov_b32 s100, {NONCE_OFF}")
                e(f"v_cndmask_b32 v{VDB}, v{VDB}, 1, vcc")
                e(f"buffer_store_dword v{VDB}, v{VZ}, s[{SD}:{SD+3}], 0 offen sc1"); vm_add("nst")
                e(f"buffer_store_dword v{VDB}, v{VZ}, s[{SF}:{SF+3}], s100 offen sc1"); vm_add("nst")
            e(f"v_add_u32 v{RA}, {slot_of[('w',j)]*16384}, v{VBW}")
            e(f"v_add_u32 v{RA+4}, {slot_of[('x',j)]*16384}, v{VAX}")
            for t in range(1, 4):
                e(f"v_xor_b32 v{RA+t}, {t<<6}, v{RA}")
                e(f"v_xor_b32 v{RA+4+t}, {t<<5}, v{RA+4}")
        else:
            wait_vm([u])
            e("s_barrier")
            if u == kvt[4]:
                e(f"buffer_load_dword v{T3}, off, s[{SD}:{SD+3}], 0 sc1"); vm_add("nld")
            if u == kvt[7]:
                l1, l2 = newlab("nc"), newlab("nc")
                e("s_mov_b32 s101, 0")
                e.label(l1)
                e(f"v_readfirstlane_b32 s{S_TAG}, v{T3}")
                e("s_add_u32 s101, s101, 1")
                e(f"s_cmp_lg_u32 s{S_TAG}, 0")
                e(f"s_cbranch_scc1 {l2}")
                e(f"s_cmp_ge_u32 s101, {SPIN}")
                e(f"s_cbranch_scc1 {l2}")
                e("s_sleep 8")
                e(f"buffer_load_dword v{T3}, off, s[{SD}:{SD+3}], 0 sc1")
                e("s_waitcnt vmcnt(0)")
                e(f"s_branch {l1}")
                e.label(l2)
                e("s_getreg_b32 s100, hwreg(HW_REG_XCC_ID)")
                e("s_and_b32 s100, s100, 15")
                e(f"s_lshl_b32 s101, s{S_TAG}, 4")
                e("s_or_b32 s100, s100, s101")
                e(f"v_mov_b32 v{VDB}, s100")
                e("s_lshl_b32 s100, s2, 10")
                e(f"buffer_store_dword v{VDB}, off, s[{SF}:{SF+3}], s100 offset:512 sc1"); vm_add("xst")
            if u == kvt[12]:
                e(f"buffer_load_dword v{T3}, v{VPO}, s[{SF}:{SF+3}], 0 offen offset:512 sc1"); vm_add("dbgld")
            so = slot_of[u] * 16384
            if u[0] == "k":
                e(f"v_add_u32 v{RA}, {so}, v{VAK}")
                for m in range(1, 8): e(f"v_xor_b32 v{RA+m}, {m<<5}, v{RA}")
            else:
                e(f"v_add_u32 v{RA}, {so}, v{VBW}")
                for t in range(1, 4): e(f"v_xor_b32 v{RA+t}, {t<<6}, v{RA}")
    st = dict(rd=0, cur=None, waited=-1)
    lg = []
    def issue_reads(upto):
        while st["rd"] <= upto and st["rd"] < N:
            s = slots[st["rd"]]
            if s["unit"] != st["cur"]:
                st["cur"] = s["unit"]
                enter_unit(st["cur"])
                if diag == 2 and st["cur"][0] == "s": stamp()
            for r in s["reads"]:
                e(r); lg.append(st["rd"])
            st["rd"] += 1
    def limit(k):
        c = [g for g in gaps if g > k and gaps[g][2]]
        return (min(c) if c else N) - 1
    segstarts = {v[0] for v in seg.values()}
    for k in range(N):
        s = slots[k]
        if k in segstarts and diag != 3: stamp()
        if k in gaps:
            gaps[k][0]()
            issue_reads(k + LA - 1)
            gaps[k][1]()
        elif k == 0:
            issue_reads(LA - 1)
            stamp()
        if s["reads"] and k > st["waited"]:
            kk = k
            if PAIRW and k + 1 < st["rd"] and slots[k+1]["reads"] and (k + 1) not in gaps: kk = k + 1
            idx = max(i for i, t in enumerate(lg) if t == kk)
            n_after = len(lg) - 1 - idx
            assert n_after <= 15
            e(f"s_waitcnt lgkmcnt({n_after})")
            st["waited"] = kk
        e(s["mf"])
        for p in s["post"]:
            if p == "barrier2": e("s_barrier")
        issue_reads(min(k + LA, limit(k)))
        for g, t in s["dma"]: emit_group(g, t)
        for f in s["fill"]: e(f)
    stamp()
    wearly = [g for g in range(8) if g not in wtail]
    if not STOP:
        wait_vm([("W", g) for g in range(opt.get("gx", 3) + 1)])
        e("s_barrier")
    e(f"v_accvgpr_read_b32 v{T0}, a{LACC}")
    e(f"s_movk_i32 s{S_SO}, 4096")
    e(f"v_rcp_f32 v{T0}, v{T0}")
    e(f"s_cmp_eq_u32 s{S_FAST}, 0")
    e(f"v_mov_b32 v{T1}, v{T0}") if T0 % 2 == 1 else None
    for t in range(4):
        for i in range(0, 16, 2):
            r = Oacc + 16 * t + i
            e(f"v_pk_mul_f32 v[{r}:{r+1}], v[{r}:{r+1}], v[{T1}:{T1+1}] op_sel_hi:[1,0]")
        d = QF + 8 * t
        for u in range(2):
            b = Oacc + 16 * t + 4 * u
            e(f"v_cvt_pk_bf16_f32 v{d+4*u}, v{b}, v{b+1}")
            e(f"v_cvt_pk_bf16_f32 v{d+4*u+1}, v{b+2}, v{b+3}")
            e(f"v_cvt_pk_bf16_f32 v{d+4*u+2}, v{b+8}, v{b+9}")
            e(f"v_cvt_pk_bf16_f32 v{d+4*u+3}, v{b+10}, v{b+11}")
        for i in range(4):
            e(f"v_permlane16_swap_b32 v{d+i}, v{d+4+i}")
        l1, l2 = newlab("o"), newlab("o")
        so = f"s{S_SO}" if t >= 2 else "0"
        e(f"s_cbranch_scc1 {l1}")
        for z in range(2):
            e(f"buffer_store_dwordx4 {vr(d+4*z,4)}, v{VL16}, s[{SO}:{SO+3}], {so} offen offset:{((2*t+z)&3)*1024}")
        e(f"s_branch {l2}")
        e.label(l1)
        for z in range(2):
            e(f"buffer_store_dwordx4 {vr(d+4*z,4)}, v{VL16}, s[{SO}:{SO+3}], {so} offen offset:{((2*t+z)&3)*1024} sc1")
        e.label(l2)
        vm_add("Ost"); vm_add("Ost")
    stamp()
    if not STOP:
        tail(e, opt, locals())
    if diag:
        e("s_waitcnt vmcnt(0)")
        stamp()
        e("s_memrealtime s[100:101]")
        e("s_waitcnt lgkmcnt(0)")
        e(f"s_mov_b32 s29, {WS_DIAG}")
        srd(e, 8, 78, 79, 29, 1 << 20)
        e("s_lshl_b32 s29, s2, 2"); e("s_add_u32 s29, s29, s3"); e("s_lshl_b32 s29, s29, 7")
        e("v_mov_b32 v1, s29")
        vals = [f"s{40+k}" for k in range(nstamp[0])] + ["0"] * (24 - nstamp[0]) + ["s94", "s95", "s100", "s101"]
        e("s_getreg_b32 s30, hwreg(HW_REG_XCC_ID)")
        vals += ["s30", "0", f"s{S_FAST}", "s37"]
        for q in range(8):
            for i in range(4): e(f"v_mov_b32 v{4+i}, {vals[4*q+i]}")
            e(f"buffer_store_dwordx4 v[4:7], v1, s[8:11], 0 offen offset:{16*q}")
    e.label("L_done")
    e("s_endpgm")
    e.raw('.section .rodata,"a"')
    kernel_desc(e, kname, 512, 256)
    sys.stderr.write(f"nops inserted: {e.nnop}, instrs: {sum(1 for x in e.L if x[0])}\n")
    return e.text()

def tail(e, opt, g):
    S_W, S_B, S_HG, S_HI, S_T0, S_T1, S_SO, S_FAST, S_PO = [g[k] for k in "S_W S_B S_HG S_HI S_T0 S_T1 S_SO S_FAST S_PO".split()]
    SOG, SF, SP, QF, V_L, VL16, VPO, VZ, T0, T1, T2, T3 = [g[k] for k in "SOG SF SP QF V_L VL16 VPO VZ T0 T1 T2 T3".split()]
    vm_add, wait_vm, emit_group, w_ops, newlab, stamp, wtail, pmap = [g[k] for k in "vm_add wait_vm emit_group w_ops newlab stamp wtail pmap".split()]
    LA = opt.get("LA4", 6); R = LA + 2
    ACC = 128; FR = 168; VB = 12
    S_PM = 34
    e(f"v_lshrrev_b32 v{T1}, 2, v{V_L}")
    e(f"v_mul_u32_u24 v{T1}, 160, v{T1}")
    e(f"v_and_b32 v{T2}, 3, v{V_L}")
    e(f"v_lshl_add_u32 v{VB}, v{T2}, 3, v{T1}")
    e(f"v_add_u32 v{VB+1}, {12*5120}, v{VB}")
    e(f"v_add_u32 v{VB+2}, {24*5120}, v{VB}")
    slots = []
    for c in range(32):
        p = pmap(c)
        for tn in range(5):
            k = len(slots); fb = FR + 4 * (k % R)
            base = VB + p // 12; off = (p % 12) * 5120 + tn * 32
            rd = [f"ds_read_b64_tr_b16 {vr(fb,2)}, v{base} offset:{off}", f"ds_read_b64_tr_b16 {vr(fb+2,2)}, v{base} offset:{off+2560}"]
            mf = []
            for z in range(2):
                d = ACC + 4 * (z * 5 + tn)
                cc = "0" if c == 0 else vr(d, 4)
                b = vr(QF + 8 * c + 4 * z, 4) if c < 4 else ar(((c - 4) * 2 + z) * 4, 4)
                mf.append(f"v_mfma_f32_16x16x32_bf16 {vr(d,4)}, {vr(fb,4)}, {b}, {cc}")
            slots.append(dict(unit=c // 4, reads=rd, mf=mf, act=[]))
    N = len(slots)
    def setup_flags():
        e(f"s_lshl_b32 s{S_T0}, s2, 3"); e(f"s_add_u32 s{S_T0}, s{S_T0}, s{S_W}"); e(f"s_lshl_b32 s{S_T0}, s{S_T0}, 7")
        e(f"v_mov_b32 v{VZ}, s{S_T0}")
        e(f"v_mov_b32 v{T1}, 0x7fffffff")
        e(f"v_cmp_eq_u32 vcc, 0, v{V_L}")
        e(f"v_mov_b32 v{T2}, s{g['S_TAG']}")
        e(f"v_cndmask_b32 v{VZ}, v{T1}, v{VZ}, vcc")
    def setup_poll():
        e(f"v_add_u32 v{T1}, s{S_HI}, v{V_L}")
        e(f"v_and_b32 v{T1}, 7, v{T1}")
        e(f"s_and_b32 s{S_T0}, s2, 31"); e(f"s_lshl_b32 s{S_T0}, s{S_T0}, 3"); e(f"s_add_u32 s{S_T0}, s{S_T0}, s{S_W}"); e(f"s_lshl_b32 s{S_T0}, s{S_T0}, 7")
        e(f"v_lshl_add_u32 v{VPO}, v{T1}, 15, s{S_T0}")
    def o_ops(h):
        out = []
        pre = [f"s_add_u32 s100, s{S_HI}, {h}", "s_and_b32 s100, s100, 7", f"s_lshl_b32 s{S_T0}, s100, 15", f"s_add_u32 s{S_T1}, s{S_T0}, 4096"]
        for f in range(8):
            so = S_T0 if f < 4 else S_T1
            out.append((pre if f == 0 else []) + [f"buffer_load_dwordx4 {ar(((h-1)*8+f)*4,4)}, v{VL16}, s[{SOG}:{SOG+3}], s{so} offen offset:{(f&3)*1024}{opt.get('olflag', ' sc1')}"])
        return out
    if opt.get("abl4", 0):
        def o_ops(h):
            return [["s_nop 0"] for f in range(8)]
    def check_flag(h):
        l1, l2 = newlab("p"), newlab("p")
        e("s_mov_b32 s101, 0")
        e.label(l1)
        e(f"s_bitcmp1_b32 s{S_PM}, {h}")
        e(f"s_cbranch_scc1 {l2}")
        e("s_add_u32 s101, s101, 1")
        e(f"s_cmp_ge_u32 s101, {SPIN}")
        e(f"s_cbranch_scc1 {l2}")
        e(f"buffer_load_dword v{T3}, v{VPO}, s[{SF}:{SF+3}], 0 offen sc1")
        e("s_waitcnt vmcnt(0)")
        e(f"v_cmp_eq_u32 vcc, v{T2}, v{T3}")
        e(f"s_mov_b32 s{S_PM}, vcc_lo")
        e(f"s_branch {l1}")
        e.label(l2)
    def flag_store():
        wait_vm(["Ost"])
        l1, l2 = newlab("f"), newlab("f")
        e(f"s_cmp_eq_u32 s{S_FAST}, 0")
        e(f"s_cbranch_scc1 {l1}")
        e(f"buffer_store_dword v{T2}, v{VZ}, s[{SF}:{SF+3}], 0 offen")
        e(f"s_branch {l2}")
        e.label(l1)
        e(f"buffer_store_dword v{T2}, v{VZ}, s[{SF}:{SF+3}], 0 offen sc1")
        e.label(l2)
        vm_add("flag")
        stamp()
    def grp(gg, tag):
        return lambda: emit_group(gg, tag)
    wq = [(gg, ("W", gi)) for gi in wtail for gg in w_ops(gi)]
    FS = opt.get("fs", 6)
    PS = opt.get("ps", 13)
    nw1 = opt.get("nw1", 0)
    slots[0]["act"].append(setup_flags)
    slots[2]["act"].append(setup_poll)
    slots[FS]["act"].append(flag_store)
    for i in range(nw1):
        if wq:
            gg, tag = wq.pop(0); slots[FS + 1 + i]["act"].append(grp(gg, tag))
    def poll_issue():
        e(f"buffer_load_dword v{T3}, v{VPO}, s[{SF}:{SF+3}], 0 offen sc1"); vm_add("poll")
    slots[PS]["act"].append(poll_issue)
    PT = opt.get("pt", 20)
    def poll_take():
        wait_vm(["poll"])
        e(f"v_cmp_eq_u32 vcc, v{T2}, v{T3}")
        e(f"s_mov_b32 s{S_PM}, vcc_lo")
        stamp()
        check_flag(1)
        for gg in o_ops(1): emit_group(gg, ("O", 1))
        check_flag(2)
        for gg in o_ops(2)[:4]: emit_group(gg, ("O", 2))
        stamp()
    def chk_grp(h, gg):
        def f():
            check_flag(h); emit_group(gg, ("O", h))
        return f
    seq = [grp(gg, ("O", 2)) for gg in o_ops(2)[4:]]
    wby = {}
    for gg, tag in wq: wby.setdefault(tag[1], []).append(grp(gg, tag))
    for h in range(3, 8):
        for gi in sorted(wby):
            if gi <= h and wby[gi]:
                seq += wby[gi]; wby[gi] = []
        oo = o_ops(h)
        seq.append(chk_grp(h, oo[0]))
        seq += [grp(gg, ("O", h)) for gg in oo[1:]]
    osp = opt.get("osp", 20)
    for i, fn in enumerate(seq):
        slots[min(20 + i * osp // 10, N - 1)]["act"].append(fn)
    lg = []; st = dict(rd=0, cur=-1, waited=-1)
    AST, w_lds, VDB, S_TAG = g["AST"], g["w_lds"], g["VDB"], g["S_TAG"]
    def stage_write(gi):
        def f():
            wait_vm([("W", gi)])
            for s_ in w_lds(gi, 36): e(s_)
            e(f"v_add_u32 v{T0}, s36, v{VL16}")
            e("s_waitcnt lgkmcnt(9)")
            for ee in range(5):
                e(f"ds_write_b128 v{T0}, {ar(AST+20*(gi-NS0)+4*ee,4)} offset:{1024*ee}"); lg.append(-1)
        return f
    SWS = opt.get("sws", 24)
    NS0 = g["NS0"]
    for i, gi in enumerate(range(NS0, 8)):
        slots[SWS + 2 * i]["act"].append(stage_write(gi))
    GX = opt.get("gx", 3)
    SOUT = 8
    xs = []
    xs += [[f"s_lshl_b32 s100, s{S_B}, 2", f"s_add_u32 s100, s100, s{S_HG}", f"s_mul_i32 s100, s100, {32*1280}"],
           [f"s_mul_i32 s101, s{S_HI}, 160", "s_add_u32 s100, s100, s101", f"s_sub_u32 s101, {1024*1280}, s100"],
           [f"s_add_u32 s{SOUT}, s74, s100", f"s_addc_u32 s{SOUT+1}, s75, 0", f"s_mov_b32 s{SOUT+2}, s101", f"s_mov_b32 s{SOUT+3}, 0x20000"],
           [f"v_and_b32 v2, 15, v{V_L}", "v_mul_u32_u24 v2, 1280, v2"], [f"v_lshrrev_b32 v3, 4, v{V_L}", "v_lshl_add_u32 v2, v3, 3, v2"]]
    for i in range(1, 4):
        xs += [[f"s_add_u32 s100, s{S_HG}, {i}", "s_and_b32 s100, s100, 3", "s_lshl_b32 s100, s100, 2", f"s_add_u32 s100, s100, s{S_HG}"],
               ["s_mul_i32 s100, s100, 10240", f"s_lshl_b32 s101, s{S_W}, 10", f"s_add_u32 s{12+i}, s100, s101"],
               [f"s_add_u32 s{16+i}, s{12+i}, 4096", f"s_add_u32 s{20+i}, s{12+i}, 8192"]]
    xs += [[f"s_lshl_b32 s100, s{S_W}, 10", f"v_add_u32 v3, s100, v{VL16}", f"s_and_b32 s25, s{S_TAG}, 0xff", "v_mov_b32 v5, s25"],
           [f"s_add_u32 s{S_T0}, s{S_PO}, 4096", f"s_add_u32 s{S_T1}, s{S_PO}, 8192", "s_mov_b32 s36, 0xffffff00"]]
    base = N - len(xs) - 3
    assert base > 20 + (len(seq) - 1) * osp // 10
    for i, x in enumerate(xs):
        slots[base + i]["act"].append(lambda x=x: [e(s_) for s_ in x])
    def issue_reads(upto):
        while st["rd"] <= upto and st["rd"] < N:
            s = slots[st["rd"]]
            if s["unit"] != st["cur"]:
                st["cur"] = s["unit"]
                h = st["cur"]
                if h == GX + 1 and h <= 5:
                    wait_vm([("W", gi) for gi in range(NS0)])
                    e("s_barrier")
                if h == 6 and NS0 == 6:
                    e("s_barrier")
            for r in s["reads"]:
                if pend is not None and r is s["reads"][1]: pend.append((r, st["rd"]))
                else:
                    e(r); lg.append(st["rd"])
            st["rd"] += 1
    pend = None
    issue_reads(LA - 1)
    for k in range(N):
        if k == PT: poll_take()
        if k % 20 == 0 and k > 0:
            wait_vm([("O", k // 20)])
            if opt.get("diag", 0) == 3 and k > 20: stamp()
        if k > st["waited"]:
            kk = k + 1 if (k + 1 < st["rd"]) else k
            idx = max(i for i, t in enumerate(lg) if t == kk)
            e(f"s_waitcnt lgkmcnt({min(15, len(lg)-1-idx)})")
            st["waited"] = kk
        e(slots[k]["mf"][0])
        pend = []
        issue_reads(k + LA)
        e(slots[k]["mf"][1])
        for r, t in pend:
            e(r); lg.append(t)
        for fn in slots[k]["act"]: fn()
    stamp()
    lown, ljoin = newlab("x"), newlab("x")
    e(f"s_cmp_eq_u32 s{S_W}, s{S_HG}")
    e(f"s_cbranch_scc1 {lown}")
    order = [0, 5, 1, 6, 2, 7, 3, 8, 4, 9]
    for tau in order:
        for i in range(4): e(f"v_and_or_b32 v{ACC+4*tau+i}, v{ACC+4*tau+i}, s36, v5")
        so = [S_PO, S_T0, S_T1][tau // 4]
        e(f"buffer_store_dwordx4 {vr(ACC+4*tau,4)}, v{VL16}, s[{SP}:{SP+3}], s{so} offen offset:{(tau&3)*1024} sc1")
    e("s_barrier")
    e(f"s_branch {ljoin}")
    e.label(lown)
    e("s_nop 7")
    e("s_barrier")
    for tau in range(10):
        e(f"ds_write_b128 v{VL16}, {vr(ACC+4*tau,4)} offset:{tau*1024}")
    e.label(ljoin)
    stamp()
    l1, l2, l3, l4 = newlab("q"), newlab("q"), newlab("q"), newlab("q")
    e("s_mov_b32 s37, 0")
    e.label(l1)
    for q in range(3):
        if q == 2:
            e(f"s_cmp_ge_u32 s{S_W}, 2"); e(f"s_cbranch_scc1 {l3}")
        for i in range(1, 4):
            e(f"buffer_load_dwordx4 {vr(32+16*q+4*(i-1),4)}, v{VL16}, s[{SP}:{SP+3}], s{12+4*q+i} offen sc1")
    e.label(l3)
    e("v_mov_b32 v4, 0")
    e("v_mov_b32 v6, 0")
    e("s_waitcnt vmcnt(0)")
    for q in range(3):
        if q == 2:
            e(f"s_cbranch_scc1 {l4}")
        for j in range(12):
            e(f"v_xor_b32 v{32+16*q+j}, s25, v{32+16*q+j}")
        for j in range(0, 12, 2):
            a_ = 4 if j & 2 else 6
            e(f"v_or3_b32 v{a_}, v{a_}, v{32+16*q+j}, v{32+16*q+j+1}")
    e.label(l4)
    e("v_or_b32 v4, v4, v6")
    e("v_and_b32 v4, 0xff, v4")
    e("v_cmp_ne_u32 vcc, 0, v4")
    e("s_add_u32 s37, s37, 1")
    e("s_cmp_eq_u64 vcc, 0")
    e(f"s_cbranch_scc1 {l2}")
    e(f"s_cmp_lt_u32 s37, {SPIN}")
    e(f"s_cbranch_scc1 {l1}")
    e.label(l2)
    stamp()
    e("s_waitcnt lgkmcnt(0)")
    e("s_barrier")
    for q in range(3):
        e(f"ds_read_b128 {vr(32+16*q+12,4)}, v3 offset:{q*4096}")
    ldone = newlab("r")
    e("s_waitcnt lgkmcnt(0)")
    for q in range(3):
        if q == 2:
            e(f"s_cmp_ge_u32 s{S_W}, 2"); e(f"s_cbranch_scc1 {ldone}")
        b = 32 + 16 * q
        for i in range(4):
            e(f"v_add_f32 v{b+i}, v{b+i}, v{b+4+i}")
            e(f"v_add_f32 v{b+8+i}, v{b+8+i}, v{b+12+i}")
        for i in range(4):
            e(f"v_add_f32 v{b+i}, v{b+i}, v{b+8+i}")
        e(f"v_cvt_pk_bf16_f32 v{b+4}, v{b}, v{b+1}")
        e(f"v_cvt_pk_bf16_f32 v{b+5}, v{b+2}, v{b+3}")
        e(f"s_add_u32 s100, s{S_W}, {4*q}")
        e("s_cmp_ge_u32 s100, 5")
        e(f"s_cselect_b32 s101, {16*1280 - 5*32}, 0")
        e("s_lshl_b32 s100, s100, 5")
        e("s_add_u32 s100, s100, s101")
        e(f"buffer_store_dwordx2 {vr(b+4,2)}, v2, s[{SOUT}:{SOUT+3}], s100 offen")
    e.label(ldone)

if __name__ == "__main__":
    out = sys.argv[1]
    opt = {}
    for a in sys.argv[2:]:
        k, v = a.split("=")
        if k not in ("kmix", "wpl", "wsp"):
            try: v = int(v)
            except: pass
        if k.endswith("flag"): v = (" " + v.replace("+", " ")) if v not in ("none", 0) else ""
        opt[k] = v
    open(out, "w").write(gen(opt))
```

```python
import sys, math
sys.path.insert(0, "gen")
from asmlib import *
NAME = "standalone__gqa_block_cached__near_ridge"
WS_O = 0
WS_P = 16 << 20
WS_F = 28 << 20
WS_DIAG = 32 << 20
SCALE = math.log2(math.e) / math.sqrt(128.0)
SPIN = 0x40000
NONCE_OFF = 256 * 1024

def cost(s):
    if not isinstance(s, str): return s.cost
    op = s.split()[0]
    if op in ("v_exp_f32", "v_rcp_f32"): return 8
    if op.startswith("v_mfma"): return 8
    return 4

class Act:
    def __init__(self, fn, cost): self.fn = fn; self.cost = cost

def gen(opt):
    e = Asm()
    kname = NAME + "_kernel"
    e.raw("; @launch grid=(256,1,1) block=(256,1,1) lds=163840")
    e.raw('.amdgcn_target "amdgcn-amd-amdhsa--gfx950"')
    e.raw(".text")
    kernel_header(e, kname)
    LA = opt.get("LA", 6)
    D = opt.get("d", 3)
    KVF = opt.get("kvflag", " nt")
    XWF = opt.get("xwflag", "")
    WOF = opt.get("woflag", "")
    diag = opt.get("diag", 0)
    FORCE_SLOW = opt.get("slow", 0)
    STOP = opt.get("stop", 0)
    PAIRW = opt.get("pairw", 1)
    ROLES = opt.get("roles", 1)
    NST = opt.get("nst", 3) if ROLES else 0
    S_ROLE = 62
    AKV = 68
    lab = [0]
    def newlab(p):
        lab[0] += 1
        return f"L_{p}{lab[0]}"
    nstamp = [0]
    def stamp():
        if not diag: return
        k = nstamp[0]; nstamp[0] += 1
        assert k < 21
        e("s_memtime s[92:93]")
        e("s_waitcnt lgkmcnt(0)")
        e(f"s_mov_b32 s{40+k}, s92")
    S_W, S_B, S_HG, S_HI, S_H = 3, 4, 5, 6, 7
    SX, SW, SK, SV, SO = 8, 12, 16, 20, 24
    S_W4K, S_T0, S_T1, S_SO, S_C = 28, 29, 30, 31, 32
    S_PO, S_KT, S_FAST, S_SX, S_SW2 = 33, 34, 35, 36, 37
    S_WL, S_WG = 38, 39
    SWO, SOG, SF, SP = 80, 84, 88, 96
    SD = SOG
    VK, VV, VAX, VBW, VAK = 2, 6, 7, 8, 9
    VL16, VDB = 10, 11
    RA = 12
    VM, VMC, VAL = 20, 21, 22
    VWO = [0, 1, 23, 7, 29]
    V_L, T0, T1, T2, T3 = 24, 25, 26, 27, 28
    T4 = 29
    VZ, VPO = 30, 31
    S_TAG = 63
    QF = 32
    Oacc, Sreg = 64, 128
    VX, VW = 128, 132
    R = LA + 2
    AF = 0; XF = 4 * R; XR = 3
    ONES = 44; LACC = 48
    assert XF + 4 * XR <= ONES
    AWO = 64

    e("s_cmp_ge_u32 s2, 256")
    e("s_cbranch_scc1 L_done")
    if diag: e("s_memrealtime s[94:95]")
    e("s_load_dwordx16 s[64:79], s[0:1], 0")
    if opt.get("pf", 1):
        e("s_getpc_b64 s[100:101]")
        e("s_and_b32 s100, s100, 0xffffff00")
        e("s_lshr_b32 s99, s2, 3")
        e("s_lshl_b32 s99, s99, 10")
        e("v_and_b32 v3, 63, v0")
        e("v_lshlrev_b32 v3, 4, v3")
        e("v_lshrrev_b32 v4, 6, v0")
        e("v_lshl_add_u32 v3, v4, 15, v3")
        e("v_add_u32 v3, s99, v3")
        e(f"v_min_u32 v3, (L_done-{kname}-16)&0xfffffff0, v3")
        e("v_mov_b32 v5, s101")
        e("v_add_co_u32 v4, vcc, s100, v3")
        e("v_addc_co_u32 v5, vcc, 0, v5, vcc")
        e("global_load_dwordx4 a[252:255], v[4:5], off")
    e("v_lshrrev_b32 v1, 6, v0")
    e(f"v_and_b32 v{V_L}, 63, v0")
    e(f"v_readfirstlane_b32 s{S_W}, v1")
    e("s_and_b32 s100, s2, 1")
    e("s_lshl_b32 s100, s100, 2")
    e("s_bfe_u32 s101, s2, 0x20003")
    e(f"s_add_u32 s{S_B}, s100, s101")
    e(f"s_bfe_u32 s{S_HG}, s2, 0x20001")
    e(f"s_lshr_b32 s{S_HI}, s2, 5")
    e(f"s_lshl_b32 s{S_H}, s{S_HG}, 3")
    e(f"s_add_u32 s{S_H}, s{S_H}, s{S_HI}")
    e(f"s_add_u32 s{S_ROLE}, s101, s{S_HI}")
    e(f"s_and_b32 s{S_ROLE}, s{S_ROLE}, {1 if ROLES else 0}")
    e("s_lshl_b32 s100, s101, 2")
    e(f"s_lshr_b32 s{S_KT}, 0x8530, s100")
    e(f"s_and_b32 s{S_KT}, s{S_KT}, 15")
    e(f"s_add_u32 s{S_KT}, s{S_KT}, s{S_HI}")
    e(f"s_cmp_ge_u32 s{S_KT}, 10")
    e("s_cselect_b32 s100, 10, 0")
    e(f"s_sub_u32 s{S_KT}, s{S_KT}, s100")
    e(f"s_lshl_b32 s{S_W4K}, s{S_W}, 12")
    e(f"v_lshrrev_b32 v{T0}, 4, v{V_L}")
    e(f"v_and_b32 v{T1}, 15, v{V_L}")
    e(f"v_lshrrev_b32 v{T2}, 3, v{V_L}")
    e(f"s_lshl_b32 s{S_T0}, s{S_W}, 5")
    e(f"v_add_u32 v{T2}, s{S_T0}, v{T2}")
    e(f"v_mul_u32_u24 v{T2}, 1280, v{T2}")
    e(f"v_and_b32 v{T3}, 7, v{V_L}")
    e(f"v_xor_b32 v{T4}, v{T0}, v{T3}")
    e(f"v_lshl_add_u32 v{VX}, v{T4}, 4, v{T2}")
    e(f"v_add_u32 v{VX+2}, {2*9216}, v{VX}")
    e(f"v_xor_b32 v{T4}, 64, v{VX}")
    e(f"v_add_u32 v{VX+1}, 9216, v{T4}")
    e(f"v_add_u32 v{VX+3}, {3*9216}, v{T4}")
    e(f"v_lshlrev_b32 v{T2}, 2, v{T0}")
    e(f"v_xor_b32 v{T2}, v{T2}, v{T1}")
    e(f"v_lshlrev_b32 v{T2}, 4, v{T2}")
    e(f"s_lshl_b32 s{S_T0}, s{S_W}, 17")
    e(f"v_lshl_add_u32 v{VW}, v{T0}, 13, s{S_T0}")
    e(f"v_add_u32 v{VW}, v{VW}, v{T2}")
    for jj in range(1, 4):
        e(f"v_add_u32 v{VW+jj}, {jj*(32768-1024)}, v{VW}")
    e(f"v_lshl_add_u32 v{T3}, v{T0}, 8, s{S_W4K}")
    e(f"v_add_u32 v{VV}, v{T2}, v{T3}")
    e("s_waitcnt lgkmcnt(0)")
    e(f"s_mul_i32 s{S_T0}, s{S_B}, 163840")
    srd(e, SX, 64, 65, S_T0, 163840)
    e(f"s_lshl_b32 s{S_T0}, s{S_H}, 8")
    e(f"s_sub_u32 s{S_T1}, {640*8192}, s{S_T0}")
    srd(e, SW, 70, 71, S_T0, f"s{S_T1}")
    stamp()
    vmbox = [[]]
    def vm_add(tag, roles=None): vmbox[0].append(tag)
    def wait_vm(tags):
        vm = vmbox[0]
        idx = max(i for i, t in enumerate(vm) if t in tags)
        e(f"s_waitcnt vmcnt({min(63, len(vm) - 1 - idx)})")
    slot_of = {}
    for j in range(10):
        slot_of[("x", j)] = j % 3
        slot_of[("w", j)] = 3 + j % 3
    kvt = [("k",0),("k",1),("k",2),("k",3),("v",0),("v",1),("k",4),("k",5),("v",2),("v",3),("k",6),("k",7),("v",4),("v",5),("v",6),("v",7)]
    for i, t in enumerate(kvt): slot_of[t] = 5 + (i + 1) % 5
    assert D == 3 and NST <= 3
    def dma_ops(t):
        kind, j = t
        so = slot_of[t] * 16384
        out = []
        for jj in range(4):
            g = []
            if jj == 0:
                g.append(f"s_add_u32 m0, s{S_W4K}, {so}")
                if kind == "x":
                    g += [f"s_lshl_b32 s{S_SX}, s{S_KT}, 7", f"s_lshl_b32 s{S_SW2}, s{S_KT}, 19", f"s_add_u32 s{S_KT}, s{S_KT}, 1",
                          f"s_cmp_ge_u32 s{S_KT}, 10", f"s_cselect_b32 s{S_KT}, 0, s{S_KT}"]
                elif kind in "kv":
                    g.append(f"s_mov_b32 s{S_SO}, {16384*j}")
            elif kind in "kv" and t in kvt[:4]:
                g.append(f"s_add_u32 m0, s{S_W4K}, {so}")
            if kind == "x":
                g.append(f"buffer_load_dwordx4 v{VX+jj}, s[{SX}:{SX+3}], s{S_SX} offen offset:{1024*jj}{XWF} lds")
            elif kind == "w":
                g.append(f"buffer_load_dwordx4 v{VW+jj}, s[{SW}:{SW+3}], s{S_SW2} offen offset:{1024*jj}{XWF} lds")
            elif kind == "k":
                g.append(f"buffer_load_dwordx4 v{VK+jj}, s[{SK}:{SK+3}], s{S_SO} offen offset:{1024*jj}{KVF} lds")
            else:
                g.append(f"buffer_load_dwordx4 v{VV}, s[{SV}:{SV+3}], s{S_SO} offen offset:{1024*jj}{KVF} lds")
            out.append(g)
        return out
    def emit_group(g, tag, roles="AB"):
        for s in g: e(s)
        vm_add(tag, roles)
    def kv_setup():
        for jj in range(4):
            e(f"v_add_u32 v{T2}, {4*jj}, v{T0}")
            e(f"v_xor_b32 v{T2}, v{T2}, v{T1}")
            e(f"v_lshl_add_u32 v{VK+jj}, v{T2}, 4, v{T3}")
        e(f"s_lshl_b32 s{S_T1}, s{S_B}, 5")
        e(f"s_add_u32 s{S_T1}, s{S_T1}, s{S_H}")
        e(f"s_lshl_b32 s{S_T0}, s{S_T1}, 17")
        srd(e, SK, 66, 67, S_T0, 131072)
        srd(e, SV, 68, 69, S_T0, 131072)
    ini = [dma_ops(("x", 0)), dma_ops(("w", 0)), dma_ops(("x", 1)), dma_ops(("w", 1))]
    for i, t in enumerate((("x", 0), ("w", 0), ("x", 1))):
        for g in ini[i]: emit_group(g, t)
    stamp()
    kv_setup()
    e(f"s_mul_i32 s{S_T0}, s{S_HG}, {1024*1280}")
    e(f"s_lshl_b32 s100, s{S_HI}, 1"); e("s_bfe_u32 s101, s2, 0x10004"); e("s_add_u32 s100, s100, s101")
    e(f"s_lshl_b32 s100, s100, 2"); e(f"s_add_u32 s100, s100, s{S_W}"); e("s_mul_i32 s100, s100, 20480")
    e(f"s_add_u32 s{S_T0}, s{S_T0}, s100")
    srd(e, SO, 72, 73, S_T0, 20480)
    srd(e, SD, 76, 77, None, 256)
    e(f"s_mul_i32 s{S_T0}, s{S_HG}, {1024*1280}")
    e(f"s_mul_i32 s{S_T1}, s{S_HI}, 160")
    e(f"s_add_u32 s{S_T0}, s{S_T0}, s{S_T1}")
    e(f"s_sub_u32 s{S_T1}, {4096*1280}, s{S_T0}")
    srd(e, SWO, 72, 73, S_T0, f"s{S_T1}")
    e(f"s_mov_b32 s{S_T0}, {WS_F}")
    srd(e, SF, 78, 79, S_T0, 256 * 1024 + 128)
    e(f"s_lshl_b32 s{S_T0}, s{S_B}, 3"); e(f"s_add_u32 s{S_T0}, s{S_T0}, s{S_HI}")
    e(f"s_mul_i32 s{S_T0}, s{S_T0}, 163840"); e(f"s_add_u32 s{S_T0}, s{S_T0}, {WS_P}")
    srd(e, SP, 78, 79, S_T0, 163840)
    e(f"s_lshl_b32 s{S_PO}, s{S_HG}, 2"); e(f"s_add_u32 s{S_PO}, s{S_PO}, s{S_W}"); e(f"s_mul_i32 s{S_PO}, s{S_PO}, 10240")

    e(f"v_and_b32 v{T0}, 31, v{V_L}")
    e(f"v_lshrrev_b32 v{T1}, 5, v{V_L}")
    e(f"v_bfe_u32 v{T2}, v{V_L}, 1, 3")
    e(f"v_xor_b32 v{T2}, v{T2}, v{T1}")
    e(f"v_lshlrev_b32 v{T2}, 4, v{T2}")
    e(f"v_lshl_add_u32 v{T3}, v{T0}, 7, s{S_W4K}")
    e(f"v_add_u32 v{VAX}, v{T2}, v{T3}")
    e(f"v_and_b32 v{T2}, 19, v{T0}")
    e(f"v_bfe_u32 v{T3}, v{T0}, 2, 1")
    e(f"v_lshl_or_b32 v{T2}, v{T3}, 3, v{T2}")
    e(f"v_bfe_u32 v{T3}, v{T0}, 3, 1")
    e(f"v_lshl_or_b32 v{T2}, v{T3}, 2, v{T2}")
    e(f"v_and_b32 v{T3}, 15, v{T2}")
    e(f"v_xor_b32 v{T3}, v{T3}, v{T1}")
    e(f"v_lshlrev_b32 v{T3}, 4, v{T3}")
    e(f"v_lshl_add_u32 v{VAK}, v{T2}, 8, v{T3}")
    e(f"v_bfe_u32 v{T2}, v{V_L}, 2, 2")
    e(f"v_mul_u32_u24 v{T2}, 320, v{T2}")
    e(f"v_lshl_add_u32 v{T2}, v{T1}, 11, v{T2}")
    e(f"v_bfe_u32 v{T3}, v{V_L}, 4, 1")
    e(f"v_lshl_add_u32 v{T2}, v{T3}, 5, v{T2}")
    e(f"v_and_b32 v{T3}, 1, v{V_L}")
    e(f"v_lshl_add_u32 v{T2}, v{T3}, 4, v{T2}")
    e(f"v_bfe_u32 v{T3}, v{V_L}, 1, 1")
    e(f"v_lshl_add_u32 v{VBW}, v{T3}, 3, v{T2}")
    e(f"v_lshlrev_b32 v{VL16}, 4, v{V_L}")
    e(f"s_mov_b32 s{S_C}, {f32bits(SCALE)}")
    e(f"v_mov_b32 v{T0}, 0x3f803f80")
    for i in range(4): e(f"v_accvgpr_write_b32 a{ONES+i}, v{T0}")
    for g in ini[3]: emit_group(g, ("w", 1))
    e(f"s_mov_b32 s100, {NONCE_OFF}")
    e(f"buffer_load_dword v{VDB}, off, s[{SF}:{SF+3}], s100 sc1"); vm_add("oldn")
    e("v_or_b32 v1, s2, v0")
    e(f"v_mov_b32 v{T0}, 0x7fffffff")
    e("v_cmp_eq_u32 vcc, 0, v1")
    e(f"v_cndmask_b32 v{VZ}, v{T0}, 0, vcc")
    e(f"v_and_b32 v{T0}, 7, v{V_L}")
    e("s_and_b32 s100, s2, 31"); e("s_lshl_b32 s100, s100, 10")
    e(f"v_lshl_add_u32 v{VPO}, v{T0}, 15, s100")
    for ee in range(5):
        e(f"v_add_u32 v{T0}, {64*ee}, v{V_L}")
        e(f"v_mul_u32_u24 v{T1}, 6554, v{T0}")
        e(f"v_lshrrev_b32 v{T1}, 16, v{T1}")
        e(f"v_mul_u32_u24 v{T2}, 10, v{T1}")
        e(f"v_sub_u32 v{T2}, v{T0}, v{T2}")
        e(f"v_mul_u32_u24 v{T1}, 1280, v{T1}")
        if ee == 3:
            e(f"v_lshl_add_u32 v{T1}, v{T2}, 4, v{T1}")
            e(f"v_subrev_u32 v{T1}, {1024*ee}, v{T1}")
            e(f"v_accvgpr_write_b32 a{AWO}, v{T1}")
        elif 0 < ee < 4:
            e(f"v_lshl_add_u32 v{T1}, v{T2}, 4, v{T1}")
            e(f"v_subrev_u32 v{VWO[ee]}, {1024*ee}, v{T1}")
        else:
            e(f"v_lshl_add_u32 v{VWO[ee]}, v{T2}, 4, v{T1}")

    def attention(role):
        slots = []
        def add_slot(unit, reads, mf, tag=None):
            slots.append(dict(unit=unit, reads=reads, mf=mf, fill=[], dma=[], post=[], tag=tag))
        ring = [0]
        def newbuf():
            b = AF + 4 * (ring[0] % R); ring[0] += 1
            return b
        for j in range(10):
            for s in range(4):
                xi = (j * 4 + s) % XR
                for t in range(4):
                    ab = newbuf()
                    rd = []
                    if t == 0: rd.append(f"ds_read_b128 {ar(XF+4*xi,4)}, v{RA+4+s}")
                    rd.append(f"ds_read_b64_tr_b16 {ar(ab,2)}, v{RA+t} offset:{s*4096}")
                    rd.append(f"ds_read_b64_tr_b16 {ar(ab+2,2)}, v{RA+t} offset:{s*4096+1024}")
                    c = "0" if (j == 0 and s == 0) else vr(Oacc+16*t, 16)
                    add_slot(("s", j), rd, f"v_mfma_f32_32x32x16_bf16 {vr(Oacc+16*t,16)}, {ar(ab,4)}, {ar(XF+4*xi,4)}, {c}")
        def sbuf(q): return Sreg + 64 * (q & 1)
        def frag_ops(q, f):
            b = sbuf(q) + 8 * f
            return ([f"v_fma_f32 v{b+i}, v{b+i}, s{S_C}, -v{VMC}" for i in range(8)] +
                    [f"v_exp_f32 v{b+i}, v{b+i}" for i in range(8)] +
                    [f"v_cvt_pk_bf16_f32 v{b+i}, v{b+2*i}, v{b+2*i+1}" for i in range(4)])
        def max_ops(q, sg):
            b = sbuf(q) + 16 * sg
            ops = []
            for i in range(8):
                if q == 0 and sg == 0 and i == 0:
                    ops.append(f"v_max_f32 v{VM}, v{b}, v{b+1}")
                else:
                    ops.append(f"v_max3_f32 v{VM}, v{VM}, v{b+2*i}, v{b+2*i+1}")
            return ops
        def combine_ops(q):
            ops = [f"v_mov_b32 v{T0}, v{VM}", "s_nop 1", f"v_permlane32_swap_b32 v{T0}, v{VM}", f"v_max_f32 v{VM}, v{T0}, v{VM}"]
            if q == 0:
                ops.append(f"v_mul_f32 v{VMC}, s{S_C}, v{VM}")
            else:
                ops += [f"v_mul_f32 v{T1}, s{S_C}, v{VM}", f"v_sub_f32 v{VAL}, v{VMC}, v{T1}", f"v_exp_f32 v{VAL}, v{VAL}", f"v_mov_b32 v{VMC}, v{T1}"]
            return ops
        def rescale_ops():
            return ([f"v_accvgpr_read_b32 v{T2}, a{LACC}"] + [f"v_mul_f32 v{Oacc+i}, v{Oacc+i}, v{VAL}" for i in range(8)] +
                    [f"v_mul_f32 v{T2}, v{T2}, v{VAL}"] + [f"v_mul_f32 v{Oacc+i}, v{Oacc+i}, v{VAL}" for i in range(8, 16)] +
                    [f"v_accvgpr_write_b32 a{LACC}, v{T2}"] + [f"v_mul_f32 v{Oacc+i}, v{Oacc+i}, v{VAL}" for i in range(16, 64)])
        seg = {}
        def add_qk(q):
            a = len(slots)
            for jl in range(2):
                unit = ("k", 2*q + jl)
                for u in range(2):
                    sg = 2 * jl + u
                    sb = sbuf(q) + 16 * sg
                    for m in range(8):
                        ab = newbuf()
                        c = "0" if m == 0 else vr(sb, 16)
                        add_slot(unit, [f"ds_read_b128 {ar(ab,4)}, v{RA+m} offset:{u*8192}"],
                                 f"v_mfma_f32_32x32x16_bf16 {vr(sb,16)}, {ar(ab,4)}, {vr(QF+4*m,4)}, {c}")
            seg[("qk", q)] = (a, len(slots))
        def add_pv(q):
            a = len(slots)
            def lslot(unit, f):
                first = (q == 0 and f == 0)
                add_slot(unit, [], f"v_mfma_f32_32x32x16_bf16 {ar(LACC,16)}, {ar(ONES,4)}, {vr(sbuf(q)+8*f,4)}, {'0' if first else ar(LACC,16)}")
            def oslot(unit, f, t):
                first = (q == 0 and f == 0); m = f & 3
                ab = newbuf()
                rd = [f"ds_read_b64_tr_b16 {ar(ab,2)}, v{RA+t} offset:{m*4096}",
                      f"ds_read_b64_tr_b16 {ar(ab+2,2)}, v{RA+t} offset:{m*4096+1024}"]
                add_slot(unit, rd, f"v_mfma_f32_32x32x16_bf16 {vr(Oacc+16*t,16)}, {ar(ab,4)}, {vr(sbuf(q)+8*f,4)}, {'0' if first else vr(Oacc+16*t,16)}")
            for jl in range(2):
                unit = ("v", 2*q + jl)
                if q == 3 and jl == 1:
                    for t in range(4):
                        for m in range(4): oslot(unit, 4 + m, t)
                    continue
                for m in range(4):
                    f = 4 * jl + m
                    lslot(unit, f)
                    for t in range(4): oslot(unit, f, t)
                if q == 3:
                    for f in range(4, 8): lslot(unit, f)
            seg[("pv", q)] = (a, len(slots))
        add_qk(0); add_qk(1); add_pv(0); add_qk(2); add_pv(1); add_qk(3); add_pv(2); add_pv(3)
        N = len(slots)
        unit_first = {}
        for k, s in enumerate(slots): unit_first.setdefault(s["unit"], k)
        def unit_range(u):
            ks = [k for k, s in enumerate(slots) if s["unit"] == u]
            return ks[0], ks[-1] + 1
        for j in range(8):
            k0 = unit_first[("s", j)]
            if j >= 1: slots[k0]["post"].append("barrier2")
            ops = [(g, ("x", j+2)) for g in dma_ops(("x", j+2))] + [(g, ("w", j+2)) for g in dma_ops(("w", j+2))]
            for i, (g, t) in enumerate(ops):
                slots[k0 + 2 * i]["dma"].append((g, t))
        def b_prefetch():
            for n in range(4):
                for g in dma_ops(kvt[n]): emit_group(g, kvt[n])
            for n in range(4, 4 + NST):
                kind, j = kvt[n]
                e(f"s_mov_b32 s{S_SO}, {16384*j}")
                for jj in range(4):
                    vo, sr_ = (VK + jj, SK) if kind == "k" else (VV, SV)
                    e(f"buffer_load_dwordx4 {ar(AKV+16*(n-4)+4*jj,4)}, v{vo}, s[{sr_}:{sr_+3}], s{S_SO} offen offset:{1024*jj}{KVF}"); vm_add(kvt[n])
        if role == "B":
            slots[unit_first[("s", opt.get("bst", 1))] + 15]["fill"].append(Act(b_prefetch, 0))
        if role != "B":
            kops = [(g, kvt[n]) for n in range(4) for g in dma_ops(kvt[n])]
            npf = opt.get("npf", 20) if role == "A" and not STOP else 0
            pfo = [([f"s_movk_i32 s{S_T0}, {(i>>2)*4096}"] if i % 4 == 0 else []) + [f"buffer_load_dwordx4 a[252:255], v{VL16}, s[{SO}:{SO+3}], s{S_T0} offen offset:{(i&3)*1024}{WOF}"] for i in range(npf)]
            pfo = [(g, "pf") for g in pfo]
            if opt.get("pffirst", 1): kops = pfo + kops
            else: kops = kops + pfo
            kmix = str(opt.get("kmix", "00000006ff" if role == "A" else "0002222224")).zfill(10)
            assert sum(int(c, 16) for c in kmix) == len(kops), len(kops)
            for j in range(10):
                c = int(kmix[j], 16); k0 = unit_first[("s", j)]
                for i in range(c):
                    if j < 8: pos = 7 if i < c // 2 else 15
                    else: pos = (2 * i + 1) * 16 // (2 * c)
                    slots[k0 + pos]["dma"].append(kops.pop(0))
        for n in range(4, 16):
            a, b = unit_range(kvt[n - D])
            L = b - a
            for i, g in enumerate(dma_ops(kvt[n])):
                if role == "B" and n < 4 + NST:
                    alt = [f"v_add_u32 v{T3}, s{S_W4K}, v{VL16}", f"v_add_u32 v{T3}, {slot_of[kvt[n]]*16384}, v{T3}"] if i == 0 else []
                    alt.append(f"ds_write_b128 v{T3}, {ar(AKV+16*(n-4)+4*i,4)} offset:{1024*i}")
                    slots[a + (2 * i) * L // 16 + 1]["dma"].append((alt, None))
                else:
                    slots[a + (2 * i) * L // 16 + 1]["dma"].append((g, kvt[n]))
        NS0 = opt.get('ns0', 4)
        AST = 256 - 20 * (8 - NS0)
        WROT = opt.get("wrot", 1)
        def w_grp(g):
            if not WROT: return [f"s_add_u32 s100, s{S_W}, {4*g}"]
            return ["s_bfe_u32 s100, s2, 0x20003", f"s_add_u32 s100, s100, {g & 3}", "s_and_b32 s100, s100, 3", "s_lshl_b32 s100, s100, 2",
                    f"s_add_u32 s100, s100, s{S_W}"] + ([f"s_add_u32 s100, s100, 16"] if g >= 4 else [])
        def w_lds(g, dst):
            return w_grp(g) + [f"s_mul_i32 s{dst}, s100, 5120"]
        def w_ops(g, stage=False):
            glob = [f"s_lshl_b32 s101, s{S_HI}, 2", "s_add_u32 s100, s100, s101", "s_and_b32 s100, s100, 31", f"s_mul_i32 s{S_WG}, s100, {32*1280}"]
            out = []
            if stage:
                pre = w_grp(g) + glob
                for ee in range(5):
                    out.append((pre if ee == 0 else []) + [f"buffer_load_dwordx4 {ar(AST+20*(g-NS0)+4*ee,4)}, v{VWO[ee]}, s[{SWO}:{SWO+3}], s{S_WG} offen offset:{1024*ee if ee<4 else 0}{WOF}"])
                return out
            pre = w_lds(g, S_WL) + [f"s_mov_b32 m0, s{S_WL}"] + glob
            for ee in range(4):
                out.append((pre if ee == 0 else [f"s_mov_b32 m0, s{S_WL}", "s_nop 0"]) + [f"buffer_load_dwordx4 v{VWO[ee]}, s[{SWO}:{SWO+3}], s{S_WG} offen offset:{1024*ee}{WOF} lds"])
            out.append([f"s_add_u32 m0, s{S_WL}, 4096", "s_nop 0", f"buffer_load_dwordx4 v{VWO[4]}, s[{SWO}:{SWO+3}], s{S_WG} offen{WOF} lds"])
            return out
        def pmap(c): return c
        assert NS0 == 4
        def place_w(rng, role):
            lo_u, hi_u = [int(c, 16) for c in rng]
            sp = [(gg, ("W", g)) for g in range(8) for gg in w_ops(g, g >= NS0)]
            nu = hi_u - lo_u + 1
            byu = {}
            for i, it in enumerate(sp): byu.setdefault(lo_u + i * nu // len(sp), []).append(it)
            for n, ops in byu.items():
                a, b = unit_range(kvt[n]); L = b - a
                nokv = n + D > 15 or n == 0 or (role == "B" and n + D < 4 + NST)
                lo = a + 1 if nokv else a + L // 2 + 1
                if n == 15: b = a + 8
                for i, it in enumerate(ops):
                    slots[lo + i * (b - lo) // len(ops)]["dma"].append(it)
        if not STOP:
            place_w(str(opt.get({"A": "wspa", "B": "wspb", "AB": "wsp"}[role], {"A": "df", "B": "03", "AB": "0b"}[role])), role)
        def base_cost(k):
            s = slots[k]
            return 8 + 4 * len(slots[min(N-1, k+LA)]["reads"]) + (2 if PAIRW else 4) + sum(4 * len(x[0]) for x in s["dma"]) + sum(cost(x) for x in s["fill"])
        def spread(ops, a, b, dead=None):
            tot = sum(cost(o) for o in ops)
            lo, hi = 0, 400
            def place(level, commit):
                i = 0
                for k in range(a, b):
                    c = base_cost(k)
                    while i < len(ops):
                        if c + cost(ops[i]) <= level:
                            c += cost(ops[i])
                            if commit: slots[k]["fill"].append(ops[i])
                            i += 1
                        else: break
                    if dead and any(oi >= i and sl <= k + 1 for oi, sl in dead): return False
                return i == len(ops)
            while lo < hi:
                mid = (lo + hi) // 2
                if place(mid, False): hi = mid
                else: lo = mid + 1
            assert place(lo, True)
            return lo
        for q in range(4):
            a, b = seg[("qk", q)]
            for sg in range(3):
                base = a + 8 * (sg + 1)
                mo = max_ops(q, sg)
                for i in range(4): slots[base + 4 + i]["fill"] += mo[2*i:2*i+2]
        lv = []
        for q in range(1, 4):
            a, b = seg[("pv", q - 1)]
            mo = max_ops(q, 3)
            for i in range(4): slots[a + 3 + i]["fill"] += mo[2*i:2*i+2]
            co = combine_ops(q)
            slots[a + 7]["fill"] += co[:4]; slots[a + 8]["fill"] += co[4:]
        for q in (1, 2):
            a, b = seg[("qk", q + 1)]
            lv.append(spread(rescale_ops(), a + 4, b))
        a, b = seg[("qk", 1)]
        lv.append(spread([o for f in range(8) for o in frag_ops(0, f)], a, b))
        for q in (1, 2):
            lv.append(spread([o for f in range(8) for o in frag_ops(q, f)], seg[("pv", q-1)][0] + 9, seg[("qk", q+1)][1]))
        a3 = seg[("pv", 3)][0]
        lv.append(spread([o for f in range(8) for o in frag_ops(3, f)], seg[("pv", 2)][0] + 9, a3 + 24 - LA,
                         dead=[(20 * f + 19, a3 + (5 * f if f < 4 else 16 + f)) for f in range(8)]))
        a7 = unit_first[("v", 7)]
        def store_t(t):
            def f():
                d = QF + 8 * t
                l1, l2 = newlab("o"), newlab("o")
                so = f"s{S_SO}" if t >= 2 else "0"
                e(f"s_cmp_eq_u32 s{S_FAST}, 0")
                e(f"s_cbranch_scc1 {l1}")
                for z in range(2):
                    e(f"buffer_store_dwordx4 {vr(d+4*z,4)}, v{VL16}, s[{SO}:{SO+3}], {so} offen offset:{((2*t+z)&3)*1024}{opt.get('osflag', '')}")
                e(f"s_branch {l2}")
                e.label(l1)
                for z in range(2):
                    e(f"buffer_store_dwordx4 {vr(d+4*z,4)}, v{VL16}, s[{SO}:{SO+3}], {so} offen offset:{((2*t+z)&3)*1024} sc1")
                e.label(l2)
                vm_add("Ost"); vm_add("Ost")
            return Act(f, 20)
        def pack_ops(t, pk=False):
            ops = []
            if pk:
                for i in range(0, 16, 2):
                    r = Oacc + 16 * t + i
                    ops.append(f"v_pk_mul_f32 v[{r}:{r+1}], v[{r}:{r+1}], v[{T1}:{T1+1}] op_sel_hi:[1,0]")
            else:
                ops += [f"v_mul_f32 v{Oacc+16*t+i}, v{Oacc+16*t+i}, v{T1}" for i in range(16)]
            d = QF + 8 * t
            for u in range(2):
                b = Oacc + 16 * t + 4 * u
                ops += [f"v_cvt_pk_bf16_f32 v{d+4*u}, v{b}, v{b+1}", f"v_cvt_pk_bf16_f32 v{d+4*u+1}, v{b+2}, v{b+3}",
                        f"v_cvt_pk_bf16_f32 v{d+4*u+2}, v{b+8}, v{b+9}", f"v_cvt_pk_bf16_f32 v{d+4*u+3}, v{b+10}, v{b+11}"]
            ops += [f"v_permlane16_swap_b32 v{d+i}, v{d+4+i}" for i in range(4)]
            ops.append(store_t(t))
            return ops
        slots[a7 + 2]["fill"] += [f"v_accvgpr_read_b32 v{T1}, a{LACC}", f"s_movk_i32 s{S_SO}, 4096"]
        slots[a7 + 3]["fill"] += [f"v_rcp_f32 v{T1}, v{T1}"]
        p0, p1, p2 = pack_ops(0), pack_ops(1), pack_ops(2)
        PK0 = opt.get("pk0", 6)
        for i in range(4): slots[a7 + PK0 + i]["fill"] += p0[i*29//4:(i+1)*29//4]
        for i in range(4): slots[a7 + PK0 + 4 + i]["fill"] += p1[i*29//4:(i+1)*29//4]
        n2 = 16 - (PK0 + 8)
        for i in range(n2): slots[a7 + PK0 + 8 + i]["fill"] += p2[i*8:(i+1)*8]
        epi_rest = p2[n2*8:] + pack_ops(3, True)
        EARLY = opt.get("early", 0) and not STOP
        S_PM, S_EARLY = 34, 61
        assert not EARLY
        OB = [None, 64, 96, 128, 0, 32, 160, 192]
        def o_ops(h):
            out = []
            pre = [f"s_add_u32 s100, s{S_HI}, {h}", "s_and_b32 s100, s100, 7", f"s_lshl_b32 s{S_T0}, s100, 15", f"s_add_u32 s{S_T1}, s{S_T0}, 4096"]
            for f in range(8):
                so = S_T0 if f < 4 else S_T1
                out.append((pre if f == 0 else []) + [f"buffer_load_dwordx4 {ar(OB[h]+4*f,4)}, v{VL16}, s[{SOG}:{SOG+3}], s{so} offen offset:{(f&3)*1024}{opt.get('olflag', ' sc1')}"])
            return out
        def early_take():
            wait_vm(["poll0"])
            l1 = newlab("e")
            e(f"v_cmp_eq_u32 vcc, v{T2}, v{T3}")
            e(f"s_mov_b32 s{S_PM}, vcc_lo")
            e(f"s_and_b32 s100, s{S_PM}, 14")
            e("s_cmp_eq_u32 s100, 14")
            e(f"s_cselect_b32 s{S_EARLY}, 1, 0")
            e(f"s_cbranch_scc0 {l1}")
            for gg in o_ops(1) + o_ops(2)[:4]:
                for s_ in gg: e(s_)
            e.label(l1)
        if EARLY:
            slots[a7 + opt.get("et", 9)]["fill"].insert(0, Act(early_take, 40))
        sys.stderr.write(f"filler levels {lv}\n")
        def gap_q_post():
            for i in range(32):
                e(f"v_cvt_pk_bf16_f32 v{QF+i}, v{Oacc+2*i}, v{Oacc+2*i+1}")
            e(f"v_accvgpr_read_b32 v{VWO[3]}, a{AWO}")
        def gap0_pre():
            for o in max_ops(0, 3) + combine_ops(0): e(o)
        def gap3_pre():
            for o in rescale_ops(): e(o)
            wait_vm(["dbgld"])
            l1, l2 = newlab("dc"), newlab("dc")
            e("s_mov_b32 s101, 0")
            e.label(l1)
            e(f"v_xor_b32 v{T0}, v{T3}, v{VDB}")
            e(f"v_cmp_gt_u32 vcc, 16, v{T0}")
            e("s_cmp_eq_u64 vcc, -1")
            e(f"s_cbranch_scc1 {l2}")
            e("s_add_u32 s101, s101, 1")
            e(f"s_cmp_ge_u32 s101, {SPIN}")
            e(f"s_cbranch_scc1 {l2}")
            e("s_sleep 8")
            e(f"buffer_load_dword v{T3}, v{VPO}, s[{SF}:{SF+3}], 0 offen offset:512 sc1")
            e("s_waitcnt vmcnt(0)")
            e(f"s_branch {l1}")
            e.label(l2)
            e(f"v_cmp_eq_u32 vcc, 0, v{T0}")
            e(f"s_lshl_b32 s{S_T0}, s{S_B}, 2"); e(f"s_add_u32 s{S_T0}, s{S_T0}, s{S_HG}"); e(f"s_lshl_b32 s{S_T0}, s{S_T0}, 18")
            e(f"s_lshl_b32 s100, s{S_W}, 13")
            e(f"s_add_u32 s{S_T0}, s{S_T0}, s100")
            srd(e, SOG, 78, 79, S_T0, 7 * 32768 + 8192)
            e(f"s_lshl_b32 s100, s{S_HI}, 15")
            e(f"s_add_u32 s{S_T0}, s{S_T0}, s100")
            srd(e, SO, 78, 79, S_T0, 8192)
            e("s_cmp_eq_u64 vcc, -1")
            e(f"s_cselect_b32 s{S_FAST}, {0 if FORCE_SLOW else 1}, 0")
            e(f"s_lshl_b32 s{S_T0}, s2, 3"); e(f"s_add_u32 s{S_T0}, s{S_T0}, s{S_W}"); e(f"s_lshl_b32 s{S_T0}, s{S_T0}, 7")
            e(f"v_mov_b32 v{VZ}, s{S_T0}")
            e(f"v_mov_b32 v{T0}, 0x7fffffff")
            e(f"v_cmp_eq_u32 vcc, 0, v{V_L}")
            e(f"v_mov_b32 v{T2}, s{S_TAG}")
            e(f"v_cndmask_b32 v{VZ}, v{T0}, v{VZ}, vcc")
            e(f"v_add_u32 v{T0}, s{S_HI}, v{V_L}")
            e(f"v_and_b32 v{T0}, 7, v{T0}")
            e(f"s_and_b32 s{S_T0}, s2, 31"); e(f"s_lshl_b32 s{S_T0}, s{S_T0}, 3"); e(f"s_add_u32 s{S_T0}, s{S_T0}, s{S_W}"); e(f"s_lshl_b32 s{S_T0}, s{S_T0}, 7")
            e(f"v_lshl_add_u32 v{VPO}, v{T0}, 15, s{S_T0}")
        nop = lambda: None
        gaps = {seg[("qk", 0)][0]: (nop, gap_q_post, True),
                seg[("qk", 1)][0]: (gap0_pre, nop, False),
                seg[("pv", 3)][0]: (gap3_pre, nop, False)}
        def enter_unit(u):
            if u[0] == "s":
                j = u[1]
                wait_vm([("x", j), ("w", j)])
                e("s_barrier")
                if j == 9:
                    e(f"v_add_u32 v{VDB}, 1, v{VDB}")
                    e(f"v_cmp_eq_u32 vcc, 0, v{VDB}")
                    e(f"s_mov_b32 s100, {NONCE_OFF}")
                    e(f"v_cndmask_b32 v{VDB}, v{VDB}, 1, vcc")
                    e(f"buffer_store_dword v{VDB}, v{VZ}, s[{SD}:{SD+3}], 0 offen sc1"); vm_add("nst")
                    e(f"buffer_store_dword v{VDB}, v{VZ}, s[{SF}:{SF+3}], s100 offen sc1"); vm_add("nst")
                e(f"v_add_u32 v{RA}, {slot_of[('w',j)]*16384}, v{VBW}")
                e(f"v_add_u32 v{RA+4}, {slot_of[('x',j)]*16384}, v{VAX}")
                for t in range(1, 4):
                    e(f"v_xor_b32 v{RA+t}, {t<<6}, v{RA}")
                    e(f"v_xor_b32 v{RA+4+t}, {t<<5}, v{RA+4}")
            else:
                wait_vm([u])
                e("s_barrier")
                if u == kvt[4]:
                    e(f"buffer_load_dword v{T3}, off, s[{SD}:{SD+3}], 0 sc1"); vm_add("nld")
                if u == kvt[7]:
                    l1, l2 = newlab("nc"), newlab("nc")
                    e("s_mov_b32 s101, 0")
                    e.label(l1)
                    e(f"v_readfirstlane_b32 s{S_TAG}, v{T3}")
                    e("s_add_u32 s101, s101, 1")
                    e(f"s_cmp_lg_u32 s{S_TAG}, 0")
                    e(f"s_cbranch_scc1 {l2}")
                    e(f"s_cmp_ge_u32 s101, {SPIN}")
                    e(f"s_cbranch_scc1 {l2}")
                    e("s_sleep 8")
                    e(f"buffer_load_dword v{T3}, off, s[{SD}:{SD+3}], 0 sc1")
                    e("s_waitcnt vmcnt(0)")
                    e(f"s_branch {l1}")
                    e.label(l2)
                    e("s_getreg_b32 s100, hwreg(HW_REG_XCC_ID)")
                    e("s_and_b32 s100, s100, 15")
                    e(f"s_lshl_b32 s101, s{S_TAG}, 4")
                    e("s_or_b32 s100, s100, s101")
                    e(f"v_mov_b32 v{VDB}, s100")
                    e("s_lshl_b32 s100, s2, 10")
                    e(f"buffer_store_dword v{VDB}, off, s[{SF}:{SF+3}], s100 offset:512 sc1"); vm_add("xst")
                if u == kvt[12]:
                    e(f"buffer_load_dword v{T3}, v{VPO}, s[{SF}:{SF+3}], 0 offen offset:512 sc1"); vm_add("dbgld")
                if u == kvt[15] and EARLY:
                    e(f"buffer_load_dword v{T3}, v{VPO}, s[{SF}:{SF+3}], 0 offen sc1"); vm_add("poll0")
                so = slot_of[u] * 16384
                if u[0] == "k":
                    e(f"v_add_u32 v{RA}, {so}, v{VAK}")
                    for m in range(1, 8): e(f"v_xor_b32 v{RA+m}, {m<<5}, v{RA}")
                else:
                    e(f"v_add_u32 v{RA}, {so}, v{VBW}")
                    for t in range(1, 4): e(f"v_xor_b32 v{RA+t}, {t<<6}, v{RA}")
        st = dict(rd=0, cur=None, waited=-1)
        lg = []
        def issue_reads(upto):
            while st["rd"] <= upto and st["rd"] < N:
                s = slots[st["rd"]]
                if s["unit"] != st["cur"]:
                    st["cur"] = s["unit"]
                    enter_unit(st["cur"])
                    if diag == 2 and st["cur"][0] == "s": stamp()
                for r in s["reads"]:
                    e(r); lg.append(st["rd"])
                st["rd"] += 1
        def limit(k):
            c = [g for g in gaps if g > k and gaps[g][2]]
            return (min(c) if c else N) - 1
        segstarts = {v[0] for v in seg.values()}
        for k in range(N):
            s = slots[k]
            if k in segstarts and diag not in (3, 4, 5): stamp()
            if k in gaps:
                gaps[k][0]()
                issue_reads(k + LA - 1)
                gaps[k][1]()
            elif k == 0:
                issue_reads(LA - 1)
                stamp()
            if s["reads"] and k > st["waited"]:
                kk = k
                if PAIRW and k + 1 < st["rd"] and slots[k+1]["reads"] and (k + 1) not in gaps: kk = k + 1
                idx = max(i for i, t in enumerate(lg) if t == kk)
                n_after = len(lg) - 1 - idx
                e(f"s_waitcnt lgkmcnt({min(15, n_after)})")
                st["waited"] = kk
            e(s["mf"])
            for p in s["post"]:
                if p == "barrier2": e("s_barrier")
            issue_reads(min(k + LA, limit(k)))
            for gg, tg in s["dma"]:
                for s_ in gg: e(s_)
                if tg is None: lg.append(-1)
                else: vm_add(tg)
            for f in s["fill"]:
                if isinstance(f, str): e(f)
                else: f.fn()
        stamp()
        for f in epi_rest:
            if isinstance(f, str): e(f)
            else: f.fn()
        if role == "A" and not STOP:
            assert vmbox[0][-1] == "Ost"
            e("s_waitcnt vmcnt(0)")
            flag_raw()
        return dict(AST=AST, w_lds=w_lds, NS0=NS0, OB=OB, S_PM=S_PM)
    def flag_raw():
        l1, l2 = newlab("f"), newlab("f")
        e(f"s_cmp_eq_u32 s{S_FAST}, 0")
        e(f"s_cbranch_scc1 {l1}")
        e(f"buffer_store_dword v{T2}, v{VZ}, s[{SF}:{SF+3}], 0 offen")
        e(f"s_branch {l2}")
        e.label(l1)
        e(f"buffer_store_dword v{T2}, v{VZ}, s[{SF}:{SF+3}], 0 offen sc1")
        e.label(l2)
    vm0 = list(vmbox[0]); st0 = nstamp[0]
    if ROLES:
        e(f"s_cmp_eq_u32 s{S_ROLE}, 0")
        e("s_cbranch_scc1 L_roleA")
        X = attention("B")
        e("s_branch L_tail")
        e.label("L_roleA")
        vmbox[0] = list(vm0); nstamp[0] = st0
        X = attention("A")
        e.label("L_tail")
    else:
        X = attention("AB")
    vmbox[0] = ["Ost"]
    AST, w_lds, NS0, OB, S_PM = X["AST"], X["w_lds"], X["NS0"], X["OB"], X["S_PM"]
    stamp()
    if not STOP:
        tail(e, opt, locals())
    if diag:
        e("s_waitcnt vmcnt(0)")
        stamp()
        e("s_memrealtime s[100:101]")
        e("s_waitcnt lgkmcnt(0)")
        e(f"s_mov_b32 s29, {WS_DIAG}")
        srd(e, 8, 78, 79, 29, 1 << 20)
        e("s_lshl_b32 s29, s2, 2"); e("s_add_u32 s29, s29, s3"); e("s_lshl_b32 s29, s29, 7")
        e("v_mov_b32 v1, s29")
        vals = [f"s{40+k}" for k in range(nstamp[0])] + ["0"] * (24 - nstamp[0])
        if diag == 5:
            vals = vals[:14] + ["s54", "s55", "s56", "s57"] + vals[18:]
        vals = vals + ["s94", "s95", "s100", "s101"]
        e("s_getreg_b32 s30, hwreg(HW_REG_XCC_ID)")
        vals += ["s30", "s62", f"s{S_FAST}", "s37"]
        for q in range(8):
            for i in range(4): e(f"v_mov_b32 v{4+i}, {vals[4*q+i]}")
            e(f"buffer_store_dwordx4 v[4:7], v1, s[8:11], 0 offen offset:{16*q}")
    e.label("L_done")
    e("s_endpgm")
    e.raw('.section .rodata,"a"')
    kernel_desc(e, kname, 512, 256)
    sys.stderr.write(f"nops inserted: {e.nnop}, instrs: {sum(1 for x in e.L if x[0])}\n")
    return e.text()

def tail(e, opt, g):
    S_W, S_B, S_HG, S_HI, S_T0, S_T1, S_SO, S_FAST, S_PO = [g[k] for k in "S_W S_B S_HG S_HI S_T0 S_T1 S_SO S_FAST S_PO".split()]
    SOG, SF, SP, QF, V_L, VL16, VPO, VZ, T0, T1, T2, T3 = [g[k] for k in "SOG SF SP QF V_L VL16 VPO VZ T0 T1 T2 T3".split()]
    vm_add, wait_vm, emit_group, newlab, stamp, OB, S_PM, flag_raw = [g[k] for k in "vm_add wait_vm emit_group newlab stamp OB S_PM flag_raw".split()]
    AST, w_lds, S_TAG, NS0 = g["AST"], g["w_lds"], g["S_TAG"], g["NS0"]
    LA = opt.get("LA4", 6); R = LA + 2
    ACC = 128; FR = 168; VB = 12
    e(f"v_lshrrev_b32 v{T1}, 2, v{V_L}")
    e(f"v_mul_u32_u24 v{T1}, 160, v{T1}")
    e(f"v_and_b32 v{T0}, 3, v{V_L}")
    e(f"v_lshl_add_u32 v{VB}, v{T0}, 3, v{T1}")
    e(f"v_add_u32 v{VB+1}, {12*5120}, v{VB}")
    e(f"v_add_u32 v{VB+2}, {24*5120}, v{VB}")
    slots = []
    WF = opt.get("wf", 1)
    order4 = [(c, tn) for c in range(24 if WF else 32) for tn in range(5)]
    if WF: order4 += [(c, tn) for tn in range(5) for c in range(24, 32)]
    for c, tn in order4:
        p = c
        k = len(slots); fb = FR + 4 * (k % R)
        base = VB + p // 12; off = (p % 12) * 5120 + tn * 32
        rd = [f"ds_read_b64_tr_b16 {vr(fb,2)}, v{base} offset:{off}", f"ds_read_b64_tr_b16 {vr(fb+2,2)}, v{base} offset:{off+2560}"]
        mf = []
        for z in range(2):
            d = ACC + 4 * (z * 5 + tn)
            cc = "0" if c == 0 else vr(d, 4)
            b = vr(QF + 8 * c + 4 * z, 4) if c < 4 else ar(OB[c // 4] + ((c & 3) * 2 + z) * 4, 4)
            mf.append(f"v_mfma_f32_16x16x32_bf16 {vr(d,4)}, {vr(fb,4)}, {b}, {cc}")
        slots.append(dict(unit=min(c // 4, 6), reads=rd, mf=mf, act=[], act0=[], c=c, tn=tn))
    N = len(slots)
    def check_flag(h):
        l1, l2 = newlab("p"), newlab("p")
        e(f"s_bitcmp1_b32 s{S_PM}, {h}")
        e(f"s_cbranch_scc1 {l2}")
        e("s_mov_b32 s38, 0")
        e.label(l1)
        e(f"buffer_load_dword v{T3}, v{VPO}, s[{SF}:{SF+3}], 0 offen sc1")
        e("s_add_u32 s38, s38, 1")
        e("s_waitcnt vmcnt(0)")
        e(f"v_cmp_eq_u32 vcc, v{T2}, v{T3}")
        e(f"s_mov_b32 s{S_PM}, vcc_lo")
        e(f"s_cmp_ge_u32 s38, {SPIN}")
        e(f"s_cbranch_scc1 {l2}")
        e(f"s_bitcmp1_b32 s{S_PM}, {h}")
        e(f"s_cbranch_scc0 {l1}")
        e.label(l2)
    ROLES, S_ROLE = g["ROLES"], g["S_ROLE"]
    def flag_store():
        l3 = newlab("f")
        if ROLES:
            e(f"s_cmp_eq_u32 s{S_ROLE}, 0")
            e(f"s_cbranch_scc1 {l3}")
        e("s_waitcnt vmcnt(0)")
        flag_raw(); vm_add("flag")
        e.label(l3)
        stamp()
    e("s_barrier")
    def grp(gg, tag):
        return lambda: emit_group(gg, tag)
    FS = opt.get("fs", 6)
    PS = opt.get("ps", 13)
    slots[FS]["act"].append(flag_store)
    def poll_issue():
        e(f"buffer_load_dword v{T3}, v{VPO}, s[{SF}:{SF+3}], 0 offen sc1"); vm_add("poll")
    slots[PS]["act"].append(poll_issue)
    d4 = stamp if opt.get("diag", 0) == 4 else (lambda: None)
    def oload(h, f):
        return f"buffer_load_dwordx4 {ar(OB[h]+4*f,4)}, v{VL16}, s[{SOG}:{SOG+3}], s{SOFF[2*(h-1)+(f>>2)]} offen offset:{(f&3)*1024}{opt.get('olflag', ' sc1')}"
    SOFF = list(range(64, 74)) + list(range(80, 84))
    for h in range(1, 8):
        slots[h - 1 + (1 if h - 1 >= FS else 0)]["act0"].append(lambda h=h: [e(s_) for s_ in (f"s_add_u32 s100, s{S_HI}, {h}", "s_and_b32 s100, s100, 7")])
        slots[h - 1 + (1 if h - 1 >= FS else 0)]["act"].insert(0, lambda h=h: [e(s_) for s_ in (f"s_lshl_b32 s{SOFF[2*(h-1)]}, s100, 15", f"s_add_u32 s{SOFF[2*(h-1)+1]}, s{SOFF[2*(h-1)]}, 4096")])
    def poll_take():
        d4()
        wait_vm(["poll"])
        d4()
        e(f"v_cmp_eq_u32 vcc, v{T2}, v{T3}")
        e(f"s_mov_b32 s{S_PM}, vcc_lo")
        check_flag(1)
        d4()
        for f in range(8): emit_group([oload(1, f)], ("O", 1, f // 2))
        check_flag(2)
        for f in range(4): emit_group([oload(2, f)], ("O", 2, f // 2))
        d4()
        stamp()
    osp = opt.get("osp", 21); o4 = opt.get("o4", 21)
    seq = [(2, f) for f in range(4, 8)] + [(h, f) for h in range(3, 8) for f in range(8)]
    for i, (h, f) in enumerate(seq):
        k = o4 + i * osp // 10
        if f == 0: slots[k - 1]["act0"].append(lambda h=h: check_flag(h))
        slots[k]["act0"].append(lambda h=h, f=f: emit_group([oload(h, f)], ("O", h, f // 2)))
    lg = []; st = dict(rd=0, cur=-1, waited=-1)
    sw0 = opt.get("sw0", 9); swsp = opt.get("swsp", 3)
    def sw_addr(gi):
        def f():
            for s_ in w_lds(gi, 36): e(s_)
            e(f"v_add_u32 v{T0}, s36, v{VL16}")
        return f
    def sw_one(gi, ee):
        def f():
            e(f"ds_write_b128 v{T0}, {ar(AST+20*(gi-NS0)+4*ee,4)} offset:{1024*ee}"); lg.append(-1)
        return f
    for i in range(20):
        gi, ee = NS0 + i // 5, i % 5
        k = sw0 + i * swsp
        if ee == 0: slots[k - 1]["act"].append(sw_addr(gi))
        slots[k]["act"].append(sw_one(gi, ee))
    assert sw0 + 19 * swsp < 80 - LA
    SOUT = 8
    xs = []
    xs += [[f"s_lshl_b32 s100, s{S_B}, 2", f"s_add_u32 s100, s100, s{S_HG}", f"s_mul_i32 s100, s100, {32*1280}"],
           [f"s_mul_i32 s101, s{S_HI}, 160", "s_add_u32 s100, s100, s101", f"s_sub_u32 s101, {1024*1280}, s100"],
           [f"s_add_u32 s{SOUT}, s74, s100", f"s_addc_u32 s{SOUT+1}, s75, 0", f"s_mov_b32 s{SOUT+2}, s101", f"s_mov_b32 s{SOUT+3}, 0x20000"],
           [f"v_and_b32 v2, 15, v{V_L}", "v_mul_u32_u24 v2, 1280, v2"], [f"v_lshrrev_b32 v3, 4, v{V_L}", "v_lshl_add_u32 v2, v3, 3, v2"]]
    for i in range(1, 4):
        xs += [[f"s_add_u32 s100, s{S_HG}, {i}", "s_and_b32 s100, s100, 3", "s_lshl_b32 s100, s100, 2", f"s_add_u32 s100, s100, s{S_HG}"],
               ["s_mul_i32 s100, s100, 10240", f"s_lshl_b32 s101, s{S_W}, 10", f"s_add_u32 s{12+i}, s100, s101"],
               [f"s_add_u32 s{16+i}, s{12+i}, 4096", f"s_add_u32 s{20+i}, s{12+i}, 8192"]]
    xs += [[f"s_lshl_b32 s100, s{S_W}, 10", f"v_add_u32 v3, s100, v{VL16}", f"s_and_b32 s25, s{S_TAG}, 0xff", "v_mov_b32 v5, s25"],
           [f"s_add_u32 s{S_T0}, s{S_PO}, 4096", f"s_add_u32 s{S_T1}, s{S_PO}, 8192", "s_mov_b32 s36, 0xffffff00", "s_mov_b32 s37, 0", "s_mov_b32 s26, 0"]]
    for q in range(3):
        xs += [[f"s_add_u32 s100, s{S_W}, {4*q}", "s_cmp_ge_u32 s100, 5", f"s_cselect_b32 s101, {16*1280 - 5*32}, 0", "s_lshl_b32 s100, s100, 5", f"s_add_u32 s{[12,16,20][q]}, s100, s101"]]
    base = 82
    assert base + 2 * len(xs) <= 127
    for i, x in enumerate(xs):
        slots[base + 2 * i]["act"].append(lambda x=x: [e(s_) for s_ in x])
    def send(tn):
        lown, ljoin = newlab("x"), newlab("x")
        e(f"s_cmp_eq_u32 s{S_W}, s{S_HG}")
        e(f"s_cbranch_scc1 {lown}")
        for tau in (tn, 5 + tn):
            for i in range(4): e(f"v_and_or_b32 v{ACC+4*tau+i}, v{ACC+4*tau+i}, s36, v5")
            so = [S_PO, S_T0, S_T1][tau // 4]
            e(f"buffer_store_dwordx4 {vr(ACC+4*tau,4)}, v{VL16}, s[{SP}:{SP+3}], s{so} offen offset:{(tau&3)*1024} sc1")
        e(f"s_branch {ljoin}")
        e.label(lown)
        e("s_nop 7")
        for tau in (tn, 5 + tn):
            e(f"ds_write_b128 v{VL16}, {vr(ACC+4*tau,4)} offset:{tau*1024}")
        e.label(ljoin)
    if WF:
        for tn in range(4):
            slots[120 + 8 * (tn + 1) + 1]["act"].append(lambda tn=tn: send(tn))
    def issue_reads(upto):
        while st["rd"] <= upto and st["rd"] < N:
            s = slots[st["rd"]]
            if s["unit"] != st["cur"]:
                st["cur"] = s["unit"]
                if st["cur"] == NS0: e("s_barrier")
            for r in s["reads"]:
                if pend is not None and r is s["reads"][1]: pend.append((r, st["rd"]))
                else:
                    e(r); lg.append(st["rd"])
            st["rd"] += 1
    pend = None
    issue_reads(LA - 1)
    for k in range(N):
        if k == 20: poll_take()
        if slots[k]["tn"] == 0 and k >= 20:
            wait_vm([("O", slots[k]["c"] // 4, slots[k]["c"] & 3)])
            if k % 20 == 0 and k <= 120 and (opt.get("diag", 0) == 3 or (opt.get("diag", 0) == 4 and k <= 60)): stamp()
        if k > st["waited"]:
            kk = k + 1 if (k + 1 < st["rd"]) else k
            idx = max(i for i, t in enumerate(lg) if t == kk)
            e(f"s_waitcnt lgkmcnt({min(15, len(lg)-1-idx)})")
            st["waited"] = kk
        e(slots[k]["mf"][0])
        pend = []
        issue_reads(k + LA)
        for fn in slots[k]["act0"]: fn()
        e(slots[k]["mf"][1])
        for r, t in pend:
            e(r); lg.append(t)
        for fn in slots[k]["act"]: fn()
    stamp()
    for tn in (range(4, 5) if WF else range(5)): send(tn)
    stamp()
    l1, l2 = newlab("q"), newlab("q")
    if opt.get("diag", 0) == 5:
        for t in range(4): e(f"s_mov_b32 s{54+t}, 0")
    if opt.get("ackfirst", 0):
        e("s_waitcnt vmcnt(0)")
        stamp()
    e.label(l1)
    for i in range(3):
        ls = newlab("q")
        e(f"s_bitcmp1_b32 s26, {i}")
        e(f"s_cbranch_scc1 {ls}")
        for q in range(3):
            if q == 2:
                e(f"s_cmp_ge_u32 s{S_W}, 2"); e(f"s_cbranch_scc1 {ls}")
            e(f"buffer_load_dwordx4 {vr(32+12*i+4*q,4)}, v{VL16}, s[{SP}:{SP+3}], s{13+4*q+i} offen sc1")
        e.label(ls)
    e("s_add_u32 s37, s37, 1")
    e("s_waitcnt vmcnt(0)")
    if opt.get("diag", 0) == 5:
        e("s_memtime s[92:93]"); e("s_waitcnt lgkmcnt(0)")
        for t in range(4):
            e(f"s_cmp_eq_u32 s37, {t+1}"); e(f"s_cselect_b32 s{54+t}, s92, s{54+t}");
    for i in range(3):
        ls, lt = newlab("q"), newlab("q")
        b = 32 + 12 * i
        e(f"s_bitcmp1_b32 s26, {i}")
        e(f"s_cbranch_scc1 {ls}")
        for j in range(8): e(f"v_xor_b32 v{b+j}, s25, v{b+j}")
        e(f"v_or3_b32 v4, v{b}, v{b+1}, v{b+2}")
        e(f"v_or3_b32 v6, v{b+3}, v{b+4}, v{b+5}")
        e(f"v_or3_b32 v4, v4, v{b+6}, v{b+7}")
        e(f"s_cmp_ge_u32 s{S_W}, 2"); e(f"s_cbranch_scc1 {lt}")
        for j in range(8, 12): e(f"v_xor_b32 v{b+j}, s25, v{b+j}")
        e(f"v_or3_b32 v6, v6, v{b+8}, v{b+9}")
        e(f"v_or3_b32 v4, v4, v{b+10}, v{b+11}")
        e.label(lt)
        e("v_or_b32 v4, v4, v6")
        e("v_and_b32 v4, 0xff, v4")
        e("v_cmp_ne_u32 vcc, 0, v4")
        e("s_cmp_lg_u64 vcc, 0")
        e(f"s_cbranch_scc1 {ls}")
        e(f"s_bitset1_b32 s26, {i}")
        e.label(ls)
    e("s_cmp_eq_u32 s26, 7")
    e(f"s_cbranch_scc1 {l2}")
    e(f"s_cmp_lt_u32 s37, {SPIN}")
    e(f"s_cbranch_scc1 {l1}")
    e.label(l2)
    stamp()
    e("s_waitcnt lgkmcnt(0)")
    e("s_barrier")
    for q in range(3):
        e(f"ds_read_b128 {vr(68+4*q,4)}, v3 offset:{q*4096}")
    ldone = newlab("r")
    for q in range(3):
        for j in range(4):
            e(f"v_add_f32 v{32+4*q+j}, v{32+4*q+j}, v{44+4*q+j}")
    e("s_waitcnt lgkmcnt(0)")
    for q in range(3):
        if q == 2:
            e(f"s_cmp_ge_u32 s{S_W}, 2"); e(f"s_cbranch_scc1 {ldone}")
        for j in range(4):
            e(f"v_add_f32 v{56+4*q+j}, v{56+4*q+j}, v{68+4*q+j}")
        for j in range(4):
            e(f"v_add_f32 v{32+4*q+j}, v{32+4*q+j}, v{56+4*q+j}")
        e(f"v_cvt_pk_bf16_f32 v{80+2*q}, v{32+4*q}, v{33+4*q}")
        e(f"v_cvt_pk_bf16_f32 v{81+2*q}, v{34+4*q}, v{35+4*q}")
        e(f"buffer_store_dwordx2 {vr(80+2*q,2)}, v2, s[{SOUT}:{SOUT+3}], s{[12,16,20][q]} offen")
    e.label(ldone)

if __name__ == "__main__":
    out = sys.argv[1]
    opt = {}
    for a in sys.argv[2:]:
        k, v = a.split("=")
        if k not in ("kmix", "wpl", "wsp", "wspa", "wspb"):
            try: v = int(v)
            except: pass
        if k.endswith("flag"): v = (" " + v.replace("+", " ")) if v not in ("none", 0) else ""
        opt[k] = v
    open(out, "w").write(gen(opt))
```

```python
import sys, math
sys.path.insert(0, "gen")
from asmlib import *
NAME = "standalone__gqa_block_cached__near_ridge"
WS_O = 0
WS_P = 16 << 20
WS_F = 28 << 20
WS_DIAG = 32 << 20
SCALE = math.log2(math.e) / math.sqrt(128.0)
SPIN = 0x40000
NONCE_OFF = 256 * 1024

def cost(s):
    if not isinstance(s, str): return s.cost
    op = s.split()[0]
    if op in ("v_exp_f32", "v_rcp_f32"): return 8
    if op.startswith("v_mfma"): return 8
    return 4

class Act:
    def __init__(self, fn, cost): self.fn = fn; self.cost = cost

def gen(opt):
    e = Asm()
    kname = NAME + "_kernel"
    TICK = opt.get("tick", 0)
    if TICK:
        e.raw("; @launch kernel=tick0_kernel grid=(1,1,1) block=(64,1,1) lds=0")
        e.raw(f"; @launch kernel={kname} grid=(256,1,1) block=(256,1,1) lds=163840")
        e.raw("; @launch kernel=tick1_kernel grid=(1,1,1) block=(64,1,1) lds=0")
    else:
        e.raw("; @launch grid=(256,1,1) block=(256,1,1) lds=163840")
    e.raw('.amdgcn_target "amdgcn-amd-amdhsa--gfx950"')
    e.raw(".text")
    kernel_header(e, kname)
    LA = opt.get("LA", 6)
    D = opt.get("d", 3)
    KVF = opt.get("kvflag", " nt")
    XWF = opt.get("xwflag", "")
    WOF = opt.get("woflag", "")
    diag = opt.get("diag", 0)
    FORCE_SLOW = opt.get("slow", 0)
    STOP = opt.get("stop", 0)
    PAIRW = opt.get("pairw", 1)
    ROLES = opt.get("roles", 1)
    NST = opt.get("nst", 3) if ROLES else 0
    S_ROLE = 62
    AKV = 68
    lab = [0]
    def newlab(p):
        lab[0] += 1
        return f"L_{p}{lab[0]}"
    nstamp = [0]
    def stamp():
        if not diag or diag == 9: return
        k = nstamp[0]; nstamp[0] += 1
        assert k < 21
        e("s_memtime s[92:93]")
        e("s_waitcnt lgkmcnt(0)")
        e(f"s_mov_b32 s{40+k}, s92")
    S_W, S_B, S_HG, S_HI, S_H = 3, 4, 5, 6, 7
    SX, SW, SK, SV, SO = 8, 12, 16, 20, 24
    S_W4K, S_T0, S_T1, S_SO, S_C = 28, 29, 30, 31, 32
    S_PO, S_KT, S_FAST, S_SX, S_SW2 = 33, 34, 35, 36, 37
    S_WL, S_WG = 38, 39
    SWO, SOG, SF, SP = 80, 84, 88, 96
    SD = SOG
    VK, VV, VAX, VBW, VAK = 2, 6, 7, 8, 9
    VL16, VDB = 10, 11
    RA = 12
    VM, VMC, VAL = 20, 21, 22
    VWO = [0, 1, 23, 7, 29]
    V_L, T0, T1, T2, T3 = 24, 25, 26, 27, 28
    T4 = 29
    VZ, VPO = 30, 31
    S_TAG = 63
    QF = 32
    Oacc, Sreg = 64, 128
    VX, VW = 128, 132
    R = LA + 2
    AF = 0; XF = 4 * R; XR = 3
    ONES = 44; LACC = 48
    assert XF + 4 * XR <= ONES
    AWO = 64
    KOFF = opt.get('koff', 0)
    AQ = 32; NEGM = 32; LS = 48; S_RS = 61
    THR = opt.get('thr', 8.0)
    rare = []
    assert R == 8

    e("s_cmp_ge_u32 s2, 256")
    e("s_cbranch_scc1 L_done")
    if diag: e("s_memrealtime s[94:95]")
    e("s_load_dwordx16 s[64:79], s[0:1], 0")
    if opt.get("pf", 1):
        e("s_getpc_b64 s[100:101]")
        e("s_and_b32 s100, s100, 0xffffff00")
        e("s_lshr_b32 s99, s2, 3")
        e("s_lshl_b32 s99, s99, 10")
        e("v_and_b32 v3, 63, v0")
        e("v_lshlrev_b32 v3, 4, v3")
        e("v_lshrrev_b32 v4, 6, v0")
        e("v_lshl_add_u32 v3, v4, 15, v3")
        e("v_add_u32 v3, s99, v3")
        e(f"v_min_u32 v3, (L_done-{kname}-16)&0xfffffff0, v3")
        e("v_mov_b32 v5, s101")
        e("v_add_co_u32 v4, vcc, s100, v3")
        e("v_addc_co_u32 v5, vcc, 0, v5, vcc")
        e("global_load_dwordx4 a[252:255], v[4:5], off")
    e("v_lshrrev_b32 v1, 6, v0")
    e(f"v_and_b32 v{V_L}, 63, v0")
    e(f"v_readfirstlane_b32 s{S_W}, v1")
    e("s_and_b32 s100, s2, 1")
    e("s_lshl_b32 s100, s100, 2")
    e("s_bfe_u32 s101, s2, 0x20003")
    e(f"s_add_u32 s{S_B}, s100, s101")
    e(f"s_bfe_u32 s{S_HG}, s2, 0x20001")
    e(f"s_lshr_b32 s{S_HI}, s2, 5")
    e(f"s_lshl_b32 s{S_H}, s{S_HG}, 3")
    e(f"s_add_u32 s{S_H}, s{S_H}, s{S_HI}")
    if opt.get("homo", 1): e(f"s_mov_b32 s{S_ROLE}, s101")
    else: e(f"s_add_u32 s{S_ROLE}, s101, s{S_HI}")
    e(f"s_and_b32 s{S_ROLE}, s{S_ROLE}, {1 if ROLES else 0}")
    e("s_lshl_b32 s100, s101, 2")
    e(f"s_lshr_b32 s{S_KT}, 0x8530, s100")
    e(f"s_and_b32 s{S_KT}, s{S_KT}, 15")
    e(f"s_add_u32 s{S_KT}, s{S_KT}, s{S_HI}")
    e(f"s_cmp_ge_u32 s{S_KT}, 10")
    e("s_cselect_b32 s100, 10, 0")
    e(f"s_sub_u32 s{S_KT}, s{S_KT}, s100")
    e(f"s_lshl_b32 s{S_W4K}, s{S_W}, 12")
    e(f"v_lshrrev_b32 v{T0}, 4, v{V_L}")
    e(f"v_and_b32 v{T1}, 15, v{V_L}")
    e(f"v_lshrrev_b32 v{T2}, 3, v{V_L}")
    e(f"s_lshl_b32 s{S_T0}, s{S_W}, 5")
    e(f"v_add_u32 v{T2}, s{S_T0}, v{T2}")
    e(f"v_mul_u32_u24 v{T2}, 1280, v{T2}")
    e(f"v_and_b32 v{T3}, 7, v{V_L}")
    e(f"v_xor_b32 v{T4}, v{T0}, v{T3}")
    e(f"v_lshl_add_u32 v{VX}, v{T4}, 4, v{T2}")
    e(f"v_add_u32 v{VX+2}, {2*9216}, v{VX}")
    e(f"v_xor_b32 v{T4}, 64, v{VX}")
    e(f"v_add_u32 v{VX+1}, 9216, v{T4}")
    e(f"v_add_u32 v{VX+3}, {3*9216}, v{T4}")
    e(f"v_lshlrev_b32 v{T2}, 2, v{T0}")
    e(f"v_xor_b32 v{T2}, v{T2}, v{T1}")
    e(f"v_lshlrev_b32 v{T2}, 4, v{T2}")
    e(f"s_lshl_b32 s{S_T0}, s{S_W}, 17")
    e(f"v_lshl_add_u32 v{VW}, v{T0}, 13, s{S_T0}")
    e(f"v_add_u32 v{VW}, v{VW}, v{T2}")
    for jj in range(1, 4):
        e(f"v_add_u32 v{VW+jj}, {jj*(32768-1024)}, v{VW}")
    e(f"v_lshl_add_u32 v{T3}, v{T0}, 8, s{S_W4K}")
    e(f"v_add_u32 v{VV}, v{T2}, v{T3}")
    e("s_waitcnt lgkmcnt(0)")
    e(f"s_mul_i32 s{S_T0}, s{S_B}, 163840")
    srd(e, SX, 64, 65, S_T0, 163840)
    e(f"s_lshl_b32 s{S_T0}, s{S_H}, 8")
    e(f"s_sub_u32 s{S_T1}, {640*8192}, s{S_T0}")
    srd(e, SW, 70, 71, S_T0, f"s{S_T1}")
    stamp()
    vmbox = [[]]
    def vm_add(tag, roles=None): vmbox[0].append(tag)
    def wait_vm(tags):
        vm = vmbox[0]
        idx = max(i for i, t in enumerate(vm) if t in tags)
        e(f"s_waitcnt vmcnt({min(63, len(vm) - 1 - idx)})")
    slot_of = {}
    for j in range(10):
        slot_of[("x", j)] = j % 3
        slot_of[("w", j)] = [3, 4, 8][j % 3]
    kvt = [("k",0),("k",1),("k",2),("k",3),("v",0),("v",1),("k",4),("k",5),("v",2),("v",3),("k",6),("k",7),("v",4),("v",5),("v",6),("v",7)]
    for i, t in enumerate(kvt): slot_of[t] = 5 + (i + 4) % 5
    assert D == 3 and NST <= 3
    def dma_ops(t):
        kind, j = t
        so = slot_of[t] * 16384
        out = []
        for jj in range(4):
            g = []
            if jj == 0:
                g.append(f"s_add_u32 m0, s{S_W4K}, {so}")
                if kind == "x":
                    g += [f"s_lshl_b32 s{S_SX}, s{S_KT}, 7", f"s_lshl_b32 s{S_SW2}, s{S_KT}, 19", f"s_add_u32 s{S_KT}, s{S_KT}, 1",
                          f"s_cmp_ge_u32 s{S_KT}, 10", f"s_cselect_b32 s{S_KT}, 0, s{S_KT}"]
                elif kind in "kv":
                    g.append(f"s_mov_b32 s{S_SO}, {16384*j}")
            elif kind in "kv" and t in kvt[:4]:
                g.append(f"s_add_u32 m0, s{S_W4K}, {so}")
            if kind == "x":
                g.append(f"buffer_load_dwordx4 v{VX+jj}, s[{SX}:{SX+3}], s{S_SX} offen offset:{1024*jj}{XWF} lds")
            elif kind == "w":
                g.append(f"buffer_load_dwordx4 v{VW+jj}, s[{SW}:{SW+3}], s{S_SW2} offen offset:{1024*jj}{XWF} lds")
            elif kind == "k":
                g.append(f"buffer_load_dwordx4 v{VK+jj}, s[{SK}:{SK+3}], s{S_SO} offen offset:{1024*jj}{KVF} lds")
            else:
                g.append(f"buffer_load_dwordx4 v{VV}, s[{SV}:{SV+3}], s{S_SO} offen offset:{1024*jj}{KVF} lds")
            out.append(g)
        return out
    def emit_group(g, tag, roles="AB"):
        for s in g: e(s)
        vm_add(tag, roles)
    def kv_setup():
        for jj in range(4):
            e(f"v_add_u32 v{T2}, {4*jj}, v{T0}")
            e(f"v_xor_b32 v{T2}, v{T2}, v{T1}")
            e(f"v_lshl_add_u32 v{VK+jj}, v{T2}, 4, v{T3}")
        e(f"s_lshl_b32 s{S_T1}, s{S_B}, 5")
        e(f"s_add_u32 s{S_T1}, s{S_T1}, s{S_H}")
        e(f"s_lshl_b32 s{S_T0}, s{S_T1}, 17")
        srd(e, SK, 66, 67, S_T0, 131072)
        srd(e, SV, 68, 69, S_T0, 131072)
    ini = [dma_ops(("x", 0)), dma_ops(("w", 0)), dma_ops(("x", 1)), dma_ops(("w", 1))]
    for i, t in enumerate((("x", 0), ("w", 0), ("x", 1))):
        for g in ini[i]: emit_group(g, t)
    stamp()
    kv_setup()
    e(f"s_mul_i32 s{S_T0}, s{S_HG}, {1024*1280}")
    e(f"s_lshl_b32 s100, s{S_HI}, 1"); e("s_bfe_u32 s101, s2, 0x10004"); e("s_add_u32 s100, s100, s101")
    e(f"s_lshl_b32 s100, s100, 2"); e(f"s_add_u32 s100, s100, s{S_W}"); e("s_mul_i32 s100, s100, 20480")
    e(f"s_add_u32 s{S_T0}, s{S_T0}, s100")
    srd(e, SO, 72, 73, S_T0, 20480)
    srd(e, SD, 76, 77, None, 256)
    e(f"s_mul_i32 s{S_T0}, s{S_HG}, {1024*1280}")
    e(f"s_mul_i32 s{S_T1}, s{S_HI}, 160")
    e(f"s_add_u32 s{S_T0}, s{S_T0}, s{S_T1}")
    e(f"s_sub_u32 s{S_T1}, {4096*1280}, s{S_T0}")
    srd(e, SWO, 72, 73, S_T0, f"s{S_T1}")
    e(f"s_mov_b32 s{S_T0}, {WS_F}")
    srd(e, SF, 78, 79, S_T0, 256 * 1024 + 128)
    e(f"s_lshl_b32 s{S_T0}, s{S_B}, 3"); e(f"s_add_u32 s{S_T0}, s{S_T0}, s{S_HI}")
    e(f"s_mul_i32 s{S_T0}, s{S_T0}, 163840"); e(f"s_add_u32 s{S_T0}, s{S_T0}, {WS_P}")
    srd(e, SP, 78, 79, S_T0, 163840)
    e(f"s_lshl_b32 s{S_PO}, s{S_HG}, 2"); e(f"s_add_u32 s{S_PO}, s{S_PO}, s{S_W}"); e(f"s_mul_i32 s{S_PO}, s{S_PO}, 10240")

    e(f"v_and_b32 v{T0}, 31, v{V_L}")
    e(f"v_lshrrev_b32 v{T1}, 5, v{V_L}")
    e(f"v_bfe_u32 v{T2}, v{V_L}, 1, 3")
    e(f"v_xor_b32 v{T2}, v{T2}, v{T1}")
    e(f"v_lshlrev_b32 v{T2}, 4, v{T2}")
    e(f"v_lshl_add_u32 v{T3}, v{T0}, 7, s{S_W4K}")
    e(f"v_add_u32 v{VAX}, v{T2}, v{T3}")
    e(f"v_and_b32 v{T2}, 19, v{T0}")
    e(f"v_bfe_u32 v{T3}, v{T0}, 2, 1")
    e(f"v_lshl_or_b32 v{T2}, v{T3}, 3, v{T2}")
    e(f"v_bfe_u32 v{T3}, v{T0}, 3, 1")
    e(f"v_lshl_or_b32 v{T2}, v{T3}, 2, v{T2}")
    e(f"v_and_b32 v{T3}, 15, v{T2}")
    e(f"v_xor_b32 v{T3}, v{T3}, v{T1}")
    e(f"v_lshlrev_b32 v{T3}, 4, v{T3}")
    e(f"v_lshl_add_u32 v{VAK}, v{T2}, 8, v{T3}")
    e(f"v_bfe_u32 v{T2}, v{V_L}, 2, 2")
    e(f"v_mul_u32_u24 v{T2}, 320, v{T2}")
    e(f"v_lshl_add_u32 v{T2}, v{T1}, 11, v{T2}")
    e(f"v_bfe_u32 v{T3}, v{V_L}, 4, 1")
    e(f"v_lshl_add_u32 v{T2}, v{T3}, 5, v{T2}")
    e(f"v_and_b32 v{T3}, 1, v{V_L}")
    e(f"v_lshl_add_u32 v{T2}, v{T3}, 4, v{T2}")
    e(f"v_bfe_u32 v{T3}, v{V_L}, 1, 1")
    e(f"v_lshl_add_u32 v{VBW}, v{T3}, 3, v{T2}")
    e(f"v_lshlrev_b32 v{VL16}, 4, v{V_L}")
    e(f"s_mov_b32 s{S_C}, {f32bits(SCALE)}")
    for g in ini[3]: emit_group(g, ("w", 1))
    e(f"s_mov_b32 s100, {NONCE_OFF}")
    e(f"buffer_load_dword v{VDB}, off, s[{SF}:{SF+3}], s100 sc1"); vm_add("oldn")
    e("v_or_b32 v1, s2, v0")
    e(f"v_mov_b32 v{T0}, 0x7fffffff")
    e("v_cmp_eq_u32 vcc, 0, v1")
    e(f"v_cndmask_b32 v{VZ}, v{T0}, 0, vcc")
    e(f"v_and_b32 v{T0}, 7, v{V_L}")
    e("s_and_b32 s100, s2, 31"); e("s_lshl_b32 s100, s100, 10")
    e(f"v_lshl_add_u32 v{VPO}, v{T0}, 15, s100")
    for ee in range(5):
        e(f"v_add_u32 v{T0}, {64*ee}, v{V_L}")
        e(f"v_mul_u32_u24 v{T1}, 6554, v{T0}")
        e(f"v_lshrrev_b32 v{T1}, 16, v{T1}")
        e(f"v_mul_u32_u24 v{T2}, 10, v{T1}")
        e(f"v_sub_u32 v{T2}, v{T0}, v{T2}")
        e(f"v_mul_u32_u24 v{T1}, 1280, v{T1}")
        if ee == 3:
            e(f"v_lshl_add_u32 v{T1}, v{T2}, 4, v{T1}")
            e(f"v_subrev_u32 v{T1}, {1024*ee}, v{T1}")
            e(f"v_accvgpr_write_b32 a{AWO}, v{T1}")
        elif 0 < ee < 4:
            e(f"v_lshl_add_u32 v{T1}, v{T2}, 4, v{T1}")
            e(f"v_subrev_u32 v{VWO[ee]}, {1024*ee}, v{T1}")
        else:
            e(f"v_lshl_add_u32 v{VWO[ee]}, v{T2}, 4, v{T1}")

    def attention(role):
        slots = []
        def add_slot(unit, reads, mf, tag=None):
            slots.append(dict(unit=unit, reads=reads, mf=mf, fill=[], fill2=[], dma=[], post=[], tag=tag))
        ring = [0]
        def newbuf():
            b = AF + 4 * (ring[0] % R); ring[0] += 1
            return b
        for j in range(10):
            for s in range(4):
                xi = (j * 4 + s) % XR
                for t in range(4):
                    ab = newbuf()
                    rd = []
                    if t == 0: rd.append(f"ds_read_b128 {ar(XF+4*xi,4)}, v{RA+4+s}")
                    rd.append(f"ds_read_b64_tr_b16 {ar(ab,2)}, v{RA+t} offset:{s*4096}")
                    rd.append(f"ds_read_b64_tr_b16 {ar(ab+2,2)}, v{RA+t} offset:{s*4096+1024}")
                    c = "0" if (j == 0 and s == 0) else vr(Oacc+16*t, 16)
                    add_slot(("s", j), rd, f"v_mfma_f32_32x32x16_bf16 {vr(Oacc+16*t,16)}, {ar(ab,4)}, {ar(XF+4*xi,4)}, {c}")
        def sbuf(q): return Sreg + 64 * (q & 1)
        def frag_ops(q, f):
            b = sbuf(q) + 8 * f
            ops = [f"v_add_f32 v{b+i}, v{b+i}, v{NEGM}" for i in range(8)] if q == 0 else []
            ops += [f"v_exp_f32 v{b+i}, v{b+i}" for i in range(8)]
            if q == 0 and f == 0:
                ops += [f"v_add_f32 v{LS+i}, v{b+i}, v{b+4+i}" for i in range(4)]
            else:
                ops += [f"v_add_f32 v{LS+(i&3)}, v{LS+(i&3)}, v{b+i}" for i in range(8)]
            ops += [f"v_cvt_pk_bf16_f32 v{b+i}, v{b+2*i}, v{b+2*i+1}" for i in range(4)]
            return ops
        def max_ops(q, sg):
            b = sbuf(q) + 16 * sg
            ops = []
            for i in range(8):
                if sg == 0 and i == 0:
                    ops.append(f"v_max_f32 v{VM}, v{b}, v{b+1}")
                else:
                    ops.append(f"v_max3_f32 v{VM}, v{VM}, v{b+2*i}, v{b+2*i+1}")
            return ops
        def check1(q):
            def f():
                lr, lb = newlab("rr"), newlab("rb")
                e(f"v_cmp_lt_f32 vcc, {f32bits(float(THR))}, v{VM}")
                e("s_cmp_lg_u64 vcc, 0")
                e(f"s_cbranch_scc1 {lr}")
                e.label(lb)
                def blk():
                    e.label(lr)
                    e(f"v_mov_b32 v{T0}, v{VM}")
                    e("s_nop 1")
                    e(f"v_permlane32_swap_b32 v{T0}, v{VM}")
                    e(f"v_max3_f32 v{VM}, v{T0}, v{VM}, 0")
                    e(f"v_exp_f32 v{VAL}, -v{VM}")
                    for i in range(64): e(f"v_sub_f32 v{sbuf(q)+i}, v{sbuf(q)+i}, v{VM}")
                    for i in range(4): e(f"v_mul_f32 v{LS+i}, v{LS+i}, v{VAL}")
                    for i in range(16): e(f"v_sub_f32 v{NEGM+i}, v{NEGM+i}, v{VM}")
                    e(f"s_mov_b32 s{S_RS}, 1")
                    e("s_nop 1")
                    e(f"s_branch {lb}")
                rare.append(blk)
            return Act(f, 12)
        def check2():
            def f():
                lr, lb = newlab("rr"), newlab("rb")
                e(f"s_cmp_lg_u32 s{S_RS}, 0")
                e(f"s_cbranch_scc1 {lr}")
                e.label(lb)
                def blk():
                    e.label(lr)
                    e("s_nop 15")
                    for i in range(64): e(f"v_mul_f32 v{Oacc+i}, v{Oacc+i}, v{VAL}")
                    e(f"s_mov_b32 s{S_RS}, 0")
                    e("s_nop 1")
                    e(f"s_branch {lb}")
                rare.append(blk)
            return Act(f, 8)
        seg = {}
        def add_qk(q):
            a = len(slots)
            for jl in range(2):
                unit = ("k", 2*q + jl)
                for u in range(2):
                    sg = 2 * jl + u
                    sb = sbuf(q) + 16 * sg
                    for m in range(8):
                        ab = newbuf()
                        c = ("0" if q == 0 else vr(NEGM, 16)) if m == 0 else vr(sb, 16)
                        add_slot(unit, [f"ds_read_b128 {ar(ab,4)}, v{RA+m} offset:{u*8192}"],
                                 f"v_mfma_f32_32x32x16_bf16 {vr(sb,16)}, {ar(ab,4)}, {ar(AQ+4*m,4)}, {c}")
            seg[("qk", q)] = (a, len(slots))
        def add_pv(q):
            a = len(slots)
            def lslot(unit, f):
                first = (q == 0 and f == 0)
                add_slot(unit, [], f"v_mfma_f32_32x32x16_bf16 {ar(LACC,16)}, {ar(ONES,4)}, {vr(sbuf(q)+8*f,4)}, {'0' if first else ar(LACC,16)}")
            def oslot(unit, f, t):
                first = (q == 0 and f == 0); m = f & 3
                ab = newbuf()
                rd = [f"ds_read_b64_tr_b16 {ar(ab,2)}, v{RA+t} offset:{m*4096}",
                      f"ds_read_b64_tr_b16 {ar(ab+2,2)}, v{RA+t} offset:{m*4096+1024}"]
                add_slot(unit, rd, f"v_mfma_f32_32x32x16_bf16 {vr(Oacc+16*t,16)}, {ar(ab,4)}, {vr(sbuf(q)+8*f,4)}, {'0' if first else vr(Oacc+16*t,16)}")
            for jl in range(2):
                unit = ("v", 2*q + jl)
                if q == 3 and jl == 1:
                    for t in range(4):
                        for m in range(4): oslot(unit, 4 + m, t)
                    continue
                for m in range(4):
                    f = 4 * jl + m
                    for t in range(4): oslot(unit, f, t)
            seg[("pv", q)] = (a, len(slots))
        add_qk(0); add_qk(1); add_pv(0); add_qk(2); add_pv(1); add_qk(3); add_pv(2); add_pv(3)
        N = len(slots)
        unit_first = {}
        for k, s in enumerate(slots): unit_first.setdefault(s["unit"], k)
        def unit_range(u):
            ks = [k for k, s in enumerate(slots) if s["unit"] == u]
            return ks[0], ks[-1] + 1
        for j in range(8):
            k0 = unit_first[("s", j)]
            if j >= 1: slots[k0]["post"].append("barrier2")
            ops = [(g, ("x", j+2)) for g in dma_ops(("x", j+2))] + [(g, ("w", j+2)) for g in dma_ops(("w", j+2))]
            for i, (g, t) in enumerate(ops):
                slots[k0 + 2 * i]["dma"].append((g, t))
        def b_prefetch():
            for n in range(4):
                for g in dma_ops(kvt[n]): emit_group(g, kvt[n])
            for n in range(4, 4 + NST):
                kind, j = kvt[n]
                e(f"s_mov_b32 s{S_SO}, {16384*j}")
                for jj in range(4):
                    vo, sr_ = (VK + jj, SK) if kind == "k" else (VV, SV)
                    e(f"buffer_load_dwordx4 {ar(AKV+16*(n-4)+4*jj,4)}, v{vo}, s[{sr_}:{sr_+3}], s{S_SO} offen offset:{1024*jj}{KVF}"); vm_add(kvt[n])
        PFB = opt.get("pfb", 0)
        def pf_ops(n):
            return [([f"s_movk_i32 s{S_T0}, {(i>>2)*4096}"] if i % 4 == 0 else []) + [f"buffer_load_dwordx4 a[252:255], v{VL16}, s[{SO}:{SO+3}], s{S_T0} offen offset:{(i&3)*1024}{WOF}"] for i in range(n)]
        def b_all():
            if PFB == 1:
                for gg in pf_ops(20): emit_group(gg, "pf")
            b_prefetch()
            if PFB == 2:
                for gg in pf_ops(20): emit_group(gg, "pf")
        if role == "B":
            slots[unit_first[("s", opt.get("bst", 1))] + 15]["fill"].append(Act(b_all, 0))
        if role == "B" and PFB == 3:
            lo_u, hi_u = [int(c, 16) for c in str(opt.get("pfu", "03"))]
            a = unit_range(kvt[lo_u])[0] + 6; b = unit_range(kvt[hi_u])[1]
            for i, gg in enumerate(pf_ops(20)):
                slots[a + i * (b - a) // 20]["dma"].append((gg, "pf"))
        if role != "B":
            kops = [(g, kvt[n]) for n in range(4) for g in dma_ops(kvt[n])]
            npf = opt.get("npf", 20) if role == "A" and not STOP and not PFB else 0
            pfo = [([f"s_movk_i32 s{S_T0}, {(i>>2)*4096}"] if i % 4 == 0 else []) + [f"buffer_load_dwordx4 a[252:255], v{VL16}, s[{SO}:{SO+3}], s{S_T0} offen offset:{(i&3)*1024}{WOF}"] for i in range(npf)]
            pfo = [(g, "pf") for g in pfo]
            if opt.get("pffirst", 1): kops = pfo + kops
            else: kops = kops + pfo
            kmix = str(opt.get("kmix", ("0000000088" if PFB else "00000006ff") if role == "A" else "0002222224")).zfill(10)
            assert sum(int(c, 16) for c in kmix) == len(kops), len(kops)
            for j in range(10):
                c = int(kmix[j], 16); k0 = unit_first[("s", j)]
                for i in range(c):
                    if j < 8: pos = 7 if i < c // 2 else 15
                    else: pos = (2 * i + 1) * 16 // (2 * c)
                    slots[k0 + pos]["dma"].append(kops.pop(0))
        for n in range(4, 16):
            a, b = unit_range(kvt[n - D])
            L = b - a
            for i, g in enumerate(dma_ops(kvt[n])):
                if role == "B" and n < 4 + NST:
                    alt = [f"v_add_u32 v{T3}, s{S_W4K}, v{VL16}", f"v_add_u32 v{T3}, {slot_of[kvt[n]]*16384}, v{T3}"] if i == 0 else []
                    alt.append(f"ds_write_b128 v{T3}, {ar(AKV+16*(n-4)+4*i,4)} offset:{1024*i}")
                    slots[a + (2 * i) * L // 16 + 1 + KOFF]["dma"].append((alt, None))
                else:
                    slots[a + (2 * i) * L // 16 + 1 + KOFF]["dma"].append((g, kvt[n]))
        NS0 = opt.get('ns0', 4)
        AST = 256 - 20 * (8 - NS0)
        WROT = opt.get("wrot", 1)
        def w_grp(g):
            if not WROT or g >= 4: return [f"s_add_u32 s100, s{S_W}, {4*g}"]
            return ["s_bfe_u32 s100, s2, 0x20003", f"s_add_u32 s100, s100, {g & 3}", "s_and_b32 s100, s100, 3", "s_lshl_b32 s100, s100, 2",
                    f"s_add_u32 s100, s100, s{S_W}"] + ([f"s_add_u32 s100, s100, 16"] if g >= 4 else [])
        def w_lds(g, dst):
            return w_grp(g) + [f"s_mul_i32 s{dst}, s100, 5120"]
        def w_ops(g, stage=False):
            glob = [f"s_lshl_b32 s101, s{S_HI}, 2", "s_add_u32 s100, s100, s101", "s_and_b32 s100, s100, 31", f"s_mul_i32 s{S_WG}, s100, {32*1280}"]
            out = []
            if stage:
                pre = w_grp(g) + glob
                for ee in range(5):
                    out.append((pre if ee == 0 else []) + [f"buffer_load_dwordx4 {ar(AST+20*(g-NS0)+4*ee,4)}, v{VWO[ee]}, s[{SWO}:{SWO+3}], s{S_WG} offen offset:{1024*ee if ee<4 else 0}{WOF}"])
                return out
            pre = w_lds(g, S_WL) + [f"s_mov_b32 m0, s{S_WL}"] + glob
            for ee in range(4):
                out.append((pre if ee == 0 else [f"s_mov_b32 m0, s{S_WL}", "s_nop 0"]) + [f"buffer_load_dwordx4 v{VWO[ee]}, s[{SWO}:{SWO+3}], s{S_WG} offen offset:{1024*ee}{WOF} lds"])
            out.append([f"s_add_u32 m0, s{S_WL}, 4096", "s_nop 0", f"buffer_load_dwordx4 v{VWO[4]}, s[{SWO}:{SWO+3}], s{S_WG} offen{WOF} lds"])
            return out
        def pmap(c): return c
        assert NS0 == 4
        def place_w(rng, role):
            lo_u, hi_u = [int(c, 16) for c in rng]
            sp = [(gg, ("W", g)) for g in range(4) for gg in w_ops(g, False)]
            nu = hi_u - lo_u + 1
            byu = {}
            for i, it in enumerate(sp): byu.setdefault(lo_u + i * nu // len(sp), []).append(it)
            for n, ops in byu.items():
                a, b = unit_range(kvt[n]); L = b - a
                nokv = n + D > 15 or n == 0 or (role == "B" and n + D < 4 + NST)
                lo = a + 1 if nokv else a + L // 2 + 1 + KOFF
                if n == 15: b = a + 8
                for i, it in enumerate(ops):
                    slots[lo + i * (b - lo) // len(ops)]["dma"].append(it)
        if not STOP:
            for gi, n in ((4, 14), (5, 15)):
                a, b = unit_range(kvt[n])
                for i, gg in enumerate(w_ops(gi, False)):
                    slots[a + (8 if n == 14 else 0) + i]["dma"].append((gg, ("W", gi)))
            place_w(str(opt.get({"A": "wspa", "B": "wspb", "AB": "wsp"}[role], {"A": "cd", "B": "03", "AB": "0b"}[role])), role)
        def misc_acts():
            def m0():
                wait_vm(["dbgld"])
                l1, l2 = newlab("dc"), newlab("dc")
                e("s_mov_b32 s101, 0")
                e.label(l1)
                e(f"v_xor_b32 v{T0}, v{T3}, v{VDB}")
                e(f"v_cmp_gt_u32 vcc, 16, v{T0}")
                e("s_cmp_eq_u64 vcc, -1")
                e(f"s_cbranch_scc1 {l2}")
                e("s_add_u32 s101, s101, 1")
                e(f"s_cmp_ge_u32 s101, {SPIN}")
                e(f"s_cbranch_scc1 {l2}")
                e("s_sleep 8")
                e(f"buffer_load_dword v{T3}, v{VPO}, s[{SF}:{SF+3}], 0 offen offset:512 sc1")
                e("s_waitcnt vmcnt(0)")
                e(f"s_branch {l1}")
                e.label(l2)
                e(f"v_cmp_eq_u32 vcc, 0, v{T0}")
                e("s_cmp_eq_u64 vcc, -1")
                e(f"s_cselect_b32 s{S_FAST}, {0 if FORCE_SLOW else 1}, 0")
            def m1():
                e(f"s_lshl_b32 s{S_T0}, s{S_B}, 2"); e(f"s_add_u32 s{S_T0}, s{S_T0}, s{S_HG}"); e(f"s_lshl_b32 s{S_T0}, s{S_T0}, 18")
                e(f"s_lshl_b32 s100, s{S_W}, 13")
                e(f"s_add_u32 s{S_T0}, s{S_T0}, s100")
                srd(e, SOG, 78, 79, S_T0, 7 * 32768 + 8192)
            def m2():
                e(f"s_lshl_b32 s100, s{S_HI}, 15")
                e(f"s_add_u32 s{S_T0}, s{S_T0}, s100")
                srd(e, SO, 78, 79, S_T0, 8192)
                e(f"s_lshl_b32 s{S_T0}, s2, 3"); e(f"s_add_u32 s{S_T0}, s{S_T0}, s{S_W}"); e(f"s_lshl_b32 s{S_T0}, s{S_T0}, 7")
            def m3():
                e(f"v_mov_b32 v{VZ}, s{S_T0}")
                e(f"v_mov_b32 v{T0}, 0x7fffffff")
                e(f"v_cmp_eq_u32 vcc, 0, v{V_L}")
                e(f"v_mov_b32 v{T2}, s{S_TAG}")
                e(f"v_add_u32 v{T3}, s{S_HI}, v{V_L}")
                e(f"v_cndmask_b32 v{VZ}, v{T0}, v{VZ}, vcc")
                e(f"v_and_b32 v{T3}, 7, v{T3}")
            def m4():
                e(f"s_and_b32 s{S_T0}, s2, 31"); e(f"s_lshl_b32 s{S_T0}, s{S_T0}, 3"); e(f"s_add_u32 s{S_T0}, s{S_T0}, s{S_W}"); e(f"s_lshl_b32 s{S_T0}, s{S_T0}, 7")
                e(f"v_lshl_add_u32 v{VPO}, v{T3}, 15, s{S_T0}")
            return [Act(m0, 36), Act(m1, 36), Act(m2, 36), Act(m3, 28), Act(m4, 20)]
        def base_cost(k):
            s = slots[k]
            return 8 + 4 * len(slots[min(N-1, k+LA)]["reads"]) + (2 if PAIRW else 4) + sum(4 * len(x[0]) for x in s["dma"]) + sum(cost(x) for x in s["fill"] + s["fill2"])
        def spread(ops, a, b, dead=None):
            tot = sum(cost(o) for o in ops)
            lo, hi = 0, 400
            def place(level, commit):
                i = 0
                for k in range(a, b):
                    c = base_cost(k)
                    while i < len(ops):
                        if c + cost(ops[i]) <= level:
                            c += cost(ops[i])
                            if commit: slots[k]["fill"].append(ops[i])
                            i += 1
                        else: break
                    if dead and any(oi >= i and sl <= k + 1 for oi, sl in dead): return False
                return i == len(ops)
            while lo < hi:
                mid = (lo + hi) // 2
                if place(mid, False): hi = mid
                else: lo = mid + 1
            assert place(lo, True)
            return lo
        for q in range(4):
            a, b = seg[("qk", q)]
            for sg in range(3):
                base = a + 8 * (sg + 1)
                mo = max_ops(q, sg)
                for i in range(4): slots[base + 4 + i]["fill"] += mo[2*i:2*i+2]
        lv = []
        X0 = opt.get("x0", 13)
        for q in range(1, 4):
            a, b = seg[("pv", q - 1)]
            mo = max_ops(q, 3)
            for i in range(4): slots[a + 3 + i]["fill"] += mo[2*i:2*i+2]
            slots[a + (X0 if q == 1 else 7)]["fill2"].append(check1(q))
        for q in (1, 2):
            slots[seg[("qk", q + 1)][0]]["fill"].append(check2())
        def qconv(t):
            ops = []
            for i in range(0, 16, 2):
                r = Oacc + 16 * t + i
                ops.append(f"v_pk_mul_f32 v[{r}:{r+1}], v[{r}:{r+1}], v[{T1}:{T1+1}] op_sel_hi:[1,0]") if t < 2 else ops.extend([f"v_mul_f32 v{r}, v{r}, v{T1}", f"v_mul_f32 v{r+1}, v{r+1}, v{T1}"])
            ops += [f"v_cvt_pk_bf16_f32 v{Oacc+16*t+i}, v{Oacc+16*t+2*i}, v{Oacc+16*t+2*i+1}" for i in range(8)]
            ops += [f"v_accvgpr_write_b32 a{AQ+8*t+i}, v{Oacc+16*t+i}" for i in range(8)]
            return ops
        a, b = seg[("qk", 0)]
        lv.append(spread(qconv(2) + qconv(3), a, a + 6, dead=[(31, a + 4), (63, a + 6)]))
        a, b = seg[("pv", 2)]
        for i, act in enumerate(misc_acts()):
            slots[a + 18 + 3 * i]["fill"].append(act)
        a, b = seg[("qk", 1)]
        f0 = [frag_ops(0, f) for f in range(8)]
        lv.append(spread([o for x in f0 for o in x], a, b + X0 + 1, dead=[(sum(len(x) for x in f0[:f+1]) - 1, b + 4 * f) for f in range(4)]))
        for q in (1, 2):
            lv.append(spread([o for f in range(8) for o in frag_ops(q, f)], seg[("pv", q-1)][0] + (X0 + 1 if q == 1 else 8), seg[("qk", q+1)][1]))
        a3 = seg[("pv", 3)][0]
        lv.append(spread([o for f in range(8) for o in frag_ops(3, f)], seg[("pv", 2)][0] + 8, a3 + opt.get("x3", 16),
                         dead=[(20 * f + 19, a3 + 4 * f) for f in range(4)]))
        a7 = unit_first[("v", 7)]
        def store_t(t):
            def f():
                d = QF + 8 * t
                l1, l2 = newlab("o"), newlab("o")
                so = f"s{S_SO}" if t >= 2 else "0"
                e(f"s_cmp_eq_u32 s{S_FAST}, 0")
                e(f"s_cbranch_scc1 {l1}")
                for z in range(2):
                    e(f"buffer_store_dwordx4 {vr(d+4*z,4)}, v{VL16}, s[{SO}:{SO+3}], {so} offen offset:{((2*t+z)&3)*1024}{opt.get('osflag', '')}")
                e(f"s_branch {l2}")
                e.label(l1)
                for z in range(2):
                    e(f"buffer_store_dwordx4 {vr(d+4*z,4)}, v{VL16}, s[{SO}:{SO+3}], {so} offen offset:{((2*t+z)&3)*1024} sc1")
                e.label(l2)
                vm_add("Ost"); vm_add("Ost")
            return Act(f, 20)
        def pack_ops(t, pk=False):
            ops = []
            if pk:
                for i in range(0, 16, 2):
                    r = Oacc + 16 * t + i
                    ops.append(f"v_pk_mul_f32 v[{r}:{r+1}], v[{r}:{r+1}], v[{T1}:{T1+1}] op_sel_hi:[1,0]")
            else:
                ops += [f"v_mul_f32 v{Oacc+16*t+i}, v{Oacc+16*t+i}, v{T1}" for i in range(16)]
            d = QF + 8 * t
            for u in range(2):
                b = Oacc + 16 * t + 4 * u
                ops += [f"v_cvt_pk_bf16_f32 v{d+4*u}, v{b}, v{b+1}", f"v_cvt_pk_bf16_f32 v{d+4*u+1}, v{b+2}, v{b+3}",
                        f"v_cvt_pk_bf16_f32 v{d+4*u+2}, v{b+8}, v{b+9}", f"v_cvt_pk_bf16_f32 v{d+4*u+3}, v{b+10}, v{b+11}"]
            ops += [f"v_permlane16_swap_b32 v{d+i}, v{d+4+i}" for i in range(4)]
            ops.append(store_t(t))
            return ops
        slots[a7 + 0]["fill"] += [f"v_add_f32 v{LS}, v{LS}, v{LS+1}", f"v_add_f32 v{LS+2}, v{LS+2}, v{LS+3}", f"s_movk_i32 s{S_SO}, 4096"]
        slots[a7 + 1]["fill"] += [f"v_add_f32 v{LS}, v{LS}, v{LS+2}", f"v_mov_b32 v{T1}, v{LS}"]
        slots[a7 + 2]["fill"] += [f"v_permlane32_swap_b32 v{T1}, v{LS}", f"v_add_f32 v{T1}, v{T1}, v{LS}"]
        slots[a7 + 3]["fill"] += [f"v_rcp_f32 v{T1}, v{T1}"]
        p0, p1, p2 = pack_ops(0), pack_ops(1), pack_ops(2)
        PK0 = opt.get("pk0", 6)
        for i in range(4): slots[a7 + PK0 + i]["fill"] += p0[i*29//4:(i+1)*29//4]
        for i in range(4): slots[a7 + PK0 + 4 + i]["fill"] += p1[i*29//4:(i+1)*29//4]
        n2 = 16 - (PK0 + 8)
        for i in range(n2): slots[a7 + PK0 + 8 + i]["fill"] += p2[i*8:(i+1)*8]
        epi_rest = p2[n2*8:] + pack_ops(3, True)
        EARLY = opt.get("early", 0) and not STOP
        S_PM, S_EARLY = 34, 61
        assert not EARLY
        OB = [None, 64, 96, 128, 0, 32, 160, 192]
        def o_ops(h):
            out = []
            pre = [f"s_add_u32 s100, s{S_HI}, {h}", "s_and_b32 s100, s100, 7", f"s_lshl_b32 s{S_T0}, s100, 15", f"s_add_u32 s{S_T1}, s{S_T0}, 4096"]
            for f in range(8):
                so = S_T0 if f < 4 else S_T1
                out.append((pre if f == 0 else []) + [f"buffer_load_dwordx4 {ar(OB[h]+4*f,4)}, v{VL16}, s[{SOG}:{SOG+3}], s{so} offen offset:{(f&3)*1024}{opt.get('olflag', ' sc1')}"])
            return out
        def early_take():
            wait_vm(["poll0"])
            l1 = newlab("e")
            e(f"v_cmp_eq_u32 vcc, v{T2}, v{T3}")
            e(f"s_mov_b32 s{S_PM}, vcc_lo")
            e(f"s_and_b32 s100, s{S_PM}, 14")
            e("s_cmp_eq_u32 s100, 14")
            e(f"s_cselect_b32 s{S_EARLY}, 1, 0")
            e(f"s_cbranch_scc0 {l1}")
            for gg in o_ops(1) + o_ops(2)[:4]:
                for s_ in gg: e(s_)
            e.label(l1)
        if EARLY:
            slots[a7 + opt.get("et", 9)]["fill"].insert(0, Act(early_take, 40))
        sys.stderr.write(f"filler levels {lv}\n")
        def gap_q_post():
            e(f"v_mov_b32 v{T1}, s{S_C}")
            e(f"v_accvgpr_read_b32 v{VWO[3]}, a{AWO}")
            e(f"s_mov_b32 s{S_RS}, 0")
            for o in qconv(0) + qconv(1): e(o)
        def gap0_pre():
            for o in max_ops(0, 3): e(o)
            e(f"v_mov_b32 v{T0}, v{VM}")
            e(f"v_permlane32_swap_b32 v{T0}, v{VM}")
            e(f"v_max_f32 v{VM}, v{T0}, v{VM}")
            for i in range(16): e(f"v_sub_f32 v{NEGM+i}, 0, v{VM}")
        def gap3_pre():
            check2().fn()
        nop = lambda: None
        gaps = {seg[("qk", 0)][0]: (nop, gap_q_post, True),
                seg[("qk", 1)][0]: (gap0_pre, nop, False),
                seg[("pv", 3)][0]: (gap3_pre, nop, False)}
        def enter_unit(u):
            if u[0] == "s":
                j = u[1]
                wait_vm([("x", j), ("w", j)])
                e("s_barrier")
                if j == 9:
                    e(f"v_add_u32 v{VDB}, 1, v{VDB}")
                    e(f"v_cmp_eq_u32 vcc, 0, v{VDB}")
                    e(f"s_mov_b32 s100, {NONCE_OFF}")
                    e(f"v_cndmask_b32 v{VDB}, v{VDB}, 1, vcc")
                    e(f"buffer_store_dword v{VDB}, v{VZ}, s[{SD}:{SD+3}], 0 offen sc1"); vm_add("nst")
                    e(f"buffer_store_dword v{VDB}, v{VZ}, s[{SF}:{SF+3}], s100 offen sc1"); vm_add("nst")
                e(f"v_add_u32 v{RA}, {slot_of[('w',j)]*16384}, v{VBW}")
                e(f"v_add_u32 v{RA+4}, {slot_of[('x',j)]*16384}, v{VAX}")
                for t in range(1, 4):
                    e(f"v_xor_b32 v{RA+t}, {t<<6}, v{RA}")
                    e(f"v_xor_b32 v{RA+4+t}, {t<<5}, v{RA+4}")
            else:
                if not opt.get("nomem", 0) or u in kvt[:4]: wait_vm([u])
                if opt.get("nomem", 0) < 2: e("s_barrier")
                if u == kvt[4]:
                    e(f"buffer_load_dword v{T3}, off, s[{SD}:{SD+3}], 0 sc1"); vm_add("nld")
                if u == kvt[7]:
                    l1, l2 = newlab("nc"), newlab("nc")
                    e("s_mov_b32 s101, 0")
                    e.label(l1)
                    e(f"v_readfirstlane_b32 s{S_TAG}, v{T3}")
                    e("s_add_u32 s101, s101, 1")
                    e(f"s_cmp_lg_u32 s{S_TAG}, 0")
                    e(f"s_cbranch_scc1 {l2}")
                    e(f"s_cmp_ge_u32 s101, {SPIN}")
                    e(f"s_cbranch_scc1 {l2}")
                    e("s_sleep 8")
                    e(f"buffer_load_dword v{T3}, off, s[{SD}:{SD+3}], 0 sc1")
                    e("s_waitcnt vmcnt(0)")
                    e(f"s_branch {l1}")
                    e.label(l2)
                    e("s_getreg_b32 s100, hwreg(HW_REG_XCC_ID)")
                    e("s_and_b32 s100, s100, 15")
                    e(f"s_lshl_b32 s101, s{S_TAG}, 4")
                    e("s_or_b32 s100, s100, s101")
                    e(f"v_mov_b32 v{VDB}, s100")
                    e("s_lshl_b32 s100, s2, 10")
                    e(f"buffer_store_dword v{VDB}, off, s[{SF}:{SF+3}], s100 offset:512 sc1"); vm_add("xst")
                if u == kvt[11]:
                    e(f"buffer_load_dword v{T3}, v{VPO}, s[{SF}:{SF+3}], 0 offen offset:512 sc1"); vm_add("dbgld")
                if u == kvt[15] and EARLY:
                    e(f"buffer_load_dword v{T3}, v{VPO}, s[{SF}:{SF+3}], 0 offen sc1"); vm_add("poll0")
                so = slot_of[u] * 16384
                if u[0] == "k":
                    e(f"v_add_u32 v{RA}, {so}, v{VAK}")
                    for m in range(1, 8): e(f"v_xor_b32 v{RA+m}, {m<<5}, v{RA}")
                else:
                    e(f"v_add_u32 v{RA}, {so}, v{VBW}")
                    for t in range(1, 4): e(f"v_xor_b32 v{RA+t}, {t<<6}, v{RA}")
        st = dict(rd=0, cur=None, waited=-1)
        lg = []
        def issue_reads(upto):
            while st["rd"] <= upto and st["rd"] < N:
                s = slots[st["rd"]]
                if s["unit"] != st["cur"]:
                    st["cur"] = s["unit"]
                    enter_unit(st["cur"])
                    if diag == 2 and st["cur"][0] == "s": stamp()
                for r in s["reads"]:
                    e(r); lg.append(st["rd"])
                st["rd"] += 1
        def limit(k):
            c = [g for g in gaps if g > k and gaps[g][2]]
            return (min(c) if c else N) - 1
        segstarts = {v[0] for v in seg.values()}
        for k in range(N):
            s = slots[k]
            if k in segstarts and diag not in (3, 4, 5, 6): stamp()
            if k in gaps:
                gaps[k][0]()
                issue_reads(k + LA - 1)
                gaps[k][1]()
            elif k == 0:
                issue_reads(LA - 1)
                stamp()
            if s["reads"] and k > st["waited"]:
                kk = k
                if PAIRW and k + 1 < st["rd"] and slots[k+1]["reads"] and (k + 1) not in gaps: kk = k + 1
                idx = max(i for i, t in enumerate(lg) if t == kk)
                n_after = len(lg) - 1 - idx
                e(f"s_waitcnt lgkmcnt({min(15, n_after)})")
                st["waited"] = kk
            e(s["mf"])
            for p in s["post"]:
                if p == "barrier2": e("s_barrier")
            issue_reads(min(k + LA, limit(k)))
            for gg, tg in s["dma"]:
                if opt.get("nomem", 0) and s["unit"][0] != "s": gg = []
                for s_ in gg: e(s_)
                if tg is None: lg.append(-1)
                else: vm_add(tg)
            for f in s["fill"] + s["fill2"]:
                if isinstance(f, str): e(f)
                else: f.fn()
        stamp()
        for f in epi_rest:
            if isinstance(f, str): e(f)
            else: f.fn()
        if (role == "A" or opt.get("bearly", 0)) and not STOP:
            assert vmbox[0][-1] == "Ost"
            e("s_waitcnt vmcnt(0)")
            flag_raw()
        return dict(OB=OB, S_PM=S_PM)
    def flag_raw():
        l1, l2 = newlab("f"), newlab("f")
        e(f"s_cmp_eq_u32 s{S_FAST}, 0")
        e(f"s_cbranch_scc1 {l1}")
        e(f"buffer_store_dword v{T2}, v{VZ}, s[{SF}:{SF+3}], 0 offen")
        e(f"s_branch {l2}")
        e.label(l1)
        e(f"buffer_store_dword v{T2}, v{VZ}, s[{SF}:{SF+3}], 0 offen sc1")
        e.label(l2)
    vm0 = list(vmbox[0]); st0 = nstamp[0]
    if ROLES:
        e(f"s_cmp_eq_u32 s{S_ROLE}, 0")
        e("s_cbranch_scc1 L_roleA")
        X = attention("B")
        e("s_branch L_tail")
        e.label("L_roleA")
        vmbox[0] = list(vm0); nstamp[0] = st0
        X = attention("A")
        e.label("L_tail")
    else:
        X = attention("AB")
    vmbox[0] = ["Ost"]
    OB, S_PM = X["OB"], X["S_PM"]
    stamp()
    if not STOP:
        tail(e, opt, locals())
    if diag:
        e("s_waitcnt vmcnt(0)")
        stamp()
        e("s_memrealtime s[100:101]")
        e("s_waitcnt lgkmcnt(0)")
        e(f"s_mov_b32 s29, {WS_DIAG}")
        srd(e, 8, 78, 79, 29, 1 << 20)
        e("s_lshl_b32 s29, s2, 2"); e("s_add_u32 s29, s29, s3"); e("s_lshl_b32 s29, s29, 7")
        e("v_mov_b32 v1, s29")
        vals = [f"s{40+k}" for k in range(nstamp[0])] + ["0"] * (24 - nstamp[0])
        if diag == 5:
            vals = vals[:14] + ["s54", "s55", "s56", "s57"] + vals[18:]
        vals = vals + ["s94", "s95", "s100", "s101"]
        e("s_getreg_b32 s30, hwreg(HW_REG_XCC_ID)")
        vals += ["s30", "s62", f"s{S_FAST}", "s37"]
        for q in range(8):
            for i in range(4): e(f"v_mov_b32 v{4+i}, {vals[4*q+i]}")
            e(f"buffer_store_dwordx4 v[4:7], v1, s[8:11], 0 offen offset:{16*q}")
    e("s_endpgm")
    for blk in rare: blk()
    e.label("L_done")
    e("s_endpgm")
    if TICK:
        for t in range(2):
            kernel_header(e, f"tick{t}_kernel")
            e("s_memrealtime s[4:5]")
            e("s_load_dwordx2 s[6:7], s[0:1], 56")
            e("s_waitcnt lgkmcnt(0)")
            e(f"s_mov_b32 s12, {WS_DIAG + 0x80000 + 64 * t}")
            srd(e, 8, 6, 7, 12, 64)
            if t == 0:
                for i in range(40): e("s_sleep 127")
                e("s_memrealtime s[4:5]"); e("s_waitcnt lgkmcnt(0)")
            e("v_mov_b32 v2, s4"); e("v_mov_b32 v3, s5")
            e("buffer_store_dwordx2 v[2:3], off, s[8:11], 0")
            e("s_endpgm")
    e.raw('.section .rodata,"a"')
    kernel_desc(e, kname, 512, 256)
    if TICK:
        for t in range(2): kernel_desc(e, f"tick{t}_kernel", 32, 32)
    sys.stderr.write(f"nops inserted: {e.nnop}, instrs: {sum(1 for x in e.L if x[0])}\n")
    return e.text()

def tail(e, opt, g):
    S_W, S_B, S_HG, S_HI, S_T0, S_T1, S_SO, S_FAST, S_PO = [g[k] for k in "S_W S_B S_HG S_HI S_T0 S_T1 S_SO S_FAST S_PO".split()]
    SOG, SF, SP, QF, V_L, VL16, VPO, VZ, T0, T1, T2, T3 = [g[k] for k in "SOG SF SP QF V_L VL16 VPO VZ T0 T1 T2 T3".split()]
    vm_add, wait_vm, emit_group, newlab, stamp, OB, S_PM, flag_raw = [g[k] for k in "vm_add wait_vm emit_group newlab stamp OB S_PM flag_raw".split()]
    S_TAG, SWO, VWO, WOF = g["S_TAG"], g["SWO"], g["VWO"], g["WOF"]
    LA = opt.get("LA4", 6); R = LA + 2
    ACC = 128; FR = 168; VB = 12
    e(f"v_lshrrev_b32 v{T1}, 2, v{V_L}")
    e(f"v_mul_u32_u24 v{T1}, 160, v{T1}")
    e(f"v_and_b32 v{T0}, 3, v{V_L}")
    e(f"v_lshl_add_u32 v{VB}, v{T0}, 3, v{T1}")
    e(f"v_add_u32 v{VB+1}, {12*5120}, v{VB}")
    e(f"v_add_u32 v{VB+2}, {24*5120}, v{VB}")
    slots = []
    WF = opt.get("wf", 1)
    order4 = [(c, tn) for c in range(24 if WF else 32) for tn in range(5)]
    if WF: order4 += [(c, tn) for tn in range(5) for c in range(24, 32)]
    for c, tn in order4:
        k = len(slots); fb = FR + 4 * (k % R)
        base = VB + c // 12; off = (c % 12) * 5120 + tn * 32
        rd = [f"ds_read_b64_tr_b16 {vr(fb,2)}, v{base} offset:{off}", f"ds_read_b64_tr_b16 {vr(fb+2,2)}, v{base} offset:{off+2560}"]
        mf = []
        for z in range(2):
            d = ACC + 4 * (z * 5 + tn)
            cc = "0" if c == 0 else vr(d, 4)
            b = vr(QF + 8 * c + 4 * z, 4) if c < 4 else ar(OB[c // 4] + ((c & 3) * 2 + z) * 4, 4)
            mf.append(f"v_mfma_f32_16x16x32_bf16 {vr(d,4)}, {vr(fb,4)}, {b}, {cc}")
        slots.append(dict(unit=min(c // 4, 6), reads=rd, mf=mf, gap=[[], []], c=c, tn=tn))
    N = len(slots)
    def put(gi, fn):
        slots[gi // 2]["gap"][gi & 1].append(fn if callable(fn) else (lambda s_=fn: e(s_)))
    def put_free(ops, g0):
        gi = g0
        for o in ops:
            while slots[gi // 2]["gap"][gi & 1] or (gi & 1 == 1 and (gi // 2) % 2 == 1): gi += 1
            put(gi, o); gi += 1
        return gi
    def check_flag(h):
        l1, l2 = newlab("p"), newlab("p")
        e(f"s_bitcmp1_b32 s{S_PM}, {h}")
        e(f"s_cbranch_scc1 {l2}")
        e("s_mov_b32 s38, 0")
        e.label(l1)
        e(f"buffer_load_dword v{T3}, v{VPO}, s[{SF}:{SF+3}], 0 offen sc1")
        e("s_add_u32 s38, s38, 1")
        e("s_waitcnt vmcnt(0)")
        e(f"v_cmp_eq_u32 vcc, v{T2}, v{T3}")
        e(f"s_mov_b32 s{S_PM}, vcc_lo")
        e(f"s_cmp_ge_u32 s38, {SPIN}")
        e(f"s_cbranch_scc1 {l2}")
        e(f"s_bitcmp1_b32 s{S_PM}, {h}")
        e(f"s_cbranch_scc0 {l1}")
        e.label(l2)
    ROLES, S_ROLE = g["ROLES"], g["S_ROLE"]
    def flag_store():
        l3 = newlab("f")
        if ROLES:
            e(f"s_cmp_eq_u32 s{S_ROLE}, 0")
            e(f"s_cbranch_scc1 {l3}")
        e("s_waitcnt vmcnt(0)")
        flag_raw(); vm_add("flag")
        e.label(l3)
        stamp()
    e("s_barrier")
    FS = opt.get("fs", 6); PS = opt.get("ps", 14)
    SOFF = list(range(64, 74)) + [76, 77, 39, 31]
    pre = [f"s_mul_i32 s8, s{S_W}, 5120", f"s_lshl_b32 s100, s{S_HI}, 2", f"s_add_u32 s100, s100, s{S_W}", f"s_add_u32 s8, s8, {16*5120}"]
    for gi in range(4):
        pre += [f"s_add_u32 s101, s100, {16+4*gi}", "s_and_b32 s101, s101, 31", f"s_mul_i32 s{16+gi}, s101, {32*1280}"]
    for s_ in pre[:7]: e(s_)
    rest = pre[7:]
    for h in range(1, 8):
        rest += [f"s_add_u32 s101, s{S_HI}, {h}", "s_and_b32 s101, s101, 7", f"s_lshl_b32 s{SOFF[2*(h-1)]}, s101, 15", f"s_add_u32 s{SOFF[2*(h-1)+1]}, s{SOFF[2*(h-1)]}, 4096"]
    if opt.get("bearly", 0): put(2 * FS + 1, lambda: (vm_add("flag"), stamp()))
    else: put(2 * FS + 1, flag_store)
    def wload(gi, ee):
        def f():
            e(f"s_add_u32 m0, s8, {(gi-4)*20480 + (4096 if ee == 4 else 0)}")
            e(f"buffer_load_dwordx4 v{VWO[ee]}, s[{SWO}:{SWO+3}], s{16+gi-4} offen offset:{1024*ee if ee < 4 else 0}{WOF} lds"); vm_add(("W", gi))
        return f
    def oload(h, f):
        def fn():
            e(f"buffer_load_dwordx4 {ar(OB[h]+4*f,4)}, v{VL16}, s[{SOG}:{SOG+3}], s{SOFF[2*(h-1)+(f>>2)]} offen offset:{(f&3)*1024}{opt.get('olflag', ' sc1')}"); vm_add(("O", h, f // 2))
        return fn
    nw0 = opt.get("nw0", 5); nw1 = opt.get("nw1", 5)
    wl = [(gi, ee) for gi in range(6, 8) for ee in range(5)]
    for i in range(nw0): put(2 * (FS + 1 + i) + 1, wload(*wl.pop(0)))
    def poll_issue():
        e(f"buffer_load_dword v{T3}, v{VPO}, s[{SF}:{SF+3}], 0 offen sc1"); vm_add("poll")
    put(2 * PS, poll_issue)
    for i in range(nw1): put(2 * (PS + i) + 1, wload(*wl.pop(0)))
    gi = 0
    for i, o in enumerate(rest):
        put(min(i // 2, 2 * FS), o) if i < 9 else put(((i - 9) // 2) + 5 if ((i - 9) // 2) + 5 != 2 * FS + 1 else 2 * FS, o)
    d4 = stamp if opt.get("diag", 0) == 4 else (lambda: None)
    def poll_take():
        d4()
        wait_vm(["poll"])
        d4()
        e(f"v_cmp_eq_u32 vcc, v{T2}, v{T3}")
        e(f"s_mov_b32 s{S_PM}, vcc_lo")
        check_flag(1)
        d4()
        for f in range(8): oload(1, f)()
        check_flag(2)
        for f in range(4): oload(2, f)()
        stamp()
    osp = opt.get("osp", 42); o4 = opt.get("o4", 42)
    seq = [("o", 2, f) for f in range(4, 8)]
    wafter = str(opt.get("wafter", "34"))
    for h in range(3, 8):
        seq += [("o", h, f) for f in range(8)]
        for ch in wafter:
            if int(ch) == h:
                for i in range(5):
                    if wl: seq.append(("w",) + wl.pop(0))
    assert not wl
    pos = o4 * 10
    for it in seq:
        gi = (pos // 10) & ~1
        if it[0] == "o":
            if it[2] == 0: put(gi - 2, lambda h=it[1]: check_flag(h))
            put(gi, oload(it[1], it[2])); pos += osp
        else:
            put(gi, wload(it[1], it[2])); pos += opt.get("wsp10", 60)
        last_gap = gi
    lg = []; st = dict(rd=0, cur=-1, waited=-1)
    SOUT = 8
    xs = [f"s_lshl_b32 s100, s{S_B}, 2", f"s_add_u32 s100, s100, s{S_HG}", f"s_mul_i32 s100, s100, {32*1280}",
          f"s_mul_i32 s101, s{S_HI}, 160", "s_add_u32 s100, s100, s101", f"s_sub_u32 s101, {1024*1280}, s100",
          f"v_and_b32 v2, 15, v{V_L}", "v_mul_u32_u24 v2, 1280, v2", f"v_lshrrev_b32 v3, 4, v{V_L}", "v_lshl_add_u32 v2, v3, 3, v2",
          f"s_and_b32 s25, s{S_TAG}, 0xff", "v_mov_b32 v5, s25", f"s_add_u32 s{S_T0}, s{S_PO}, 4096", f"s_add_u32 s{S_T1}, s{S_PO}, 8192",
          "s_mov_b32 s36, 0xffffff00", "s_mov_b32 s37, 0", "s_mov_b32 s26, 0", f"s_lshl_b32 s27, s{S_W}, 10", f"v_add_u32 v3, s27, v{VL16}"]
    gend = put_free(xs, 44)
    xs2 = [[f"s_add_u32 s{SOUT}, s74, s100", f"s_addc_u32 s{SOUT+1}, s75, 0"], f"s_mov_b32 s{SOUT+2}, s101", f"s_mov_b32 s{SOUT+3}, 0x20000"]
    for i in range(1, 4):
        xs2 += [f"s_add_u32 s100, s{S_HG}, {i}", "s_and_b32 s100, s100, 3", "s_lshl_b32 s100, s100, 2", f"s_add_u32 s100, s100, s{S_HG}",
                "s_mul_i32 s100, s100, 10240", f"s_add_u32 s{12+i}, s100, s27", f"s_add_u32 s{16+i}, s{12+i}, 4096", f"s_add_u32 s{20+i}, s{12+i}, 8192"]
    for q in range(3):
        xs2 += [f"s_add_u32 s100, s{S_W}, {4*q}", ["s_cmp_ge_u32 s100, 5", f"s_cselect_b32 s101, {16*1280 - 5*32}, 0"], "s_lshl_b32 s100, s100, 5", f"s_add_u32 s{[12,16,20][q]}, s100, s101"]
    xs2 = [(lambda x=x: [e(s_) for s_ in x]) if isinstance(x, list) else x for x in xs2]
    wlast = max(gi for gi in range(2 * N) if False) if False else None
    gw = max([2 * k + hh for k in range(N) for hh in range(2) if any(getattr(f, "__name__", "") == "f" for f in slots[k]["gap"][hh])])
    gend2 = put_free(xs2, max(gend, gw + 1))
    assert gend <= 2 * 127 and gend2 <= 2 * (N - 1), (gend, gend2)
    def send(tn):
        lown, ljoin = newlab("x"), newlab("x")
        e(f"s_cmp_eq_u32 s{S_W}, s{S_HG}")
        e(f"s_cbranch_scc1 {lown}")
        for tau in (tn, 5 + tn):
            for i in range(4): e(f"v_and_or_b32 v{ACC+4*tau+i}, v{ACC+4*tau+i}, s36, v5")
            so = [S_PO, S_T0, S_T1][tau // 4]
            e(f"buffer_store_dwordx4 {vr(ACC+4*tau,4)}, v{VL16}, s[{SP}:{SP+3}], s{so} offen offset:{(tau&3)*1024}{opt.get('psflag', ' sc1')}")
        e(f"s_branch {ljoin}")
        e.label(lown)
        e("s_nop 7")
        for tau in (tn, 5 + tn):
            e(f"ds_write_b128 v{VL16}, {vr(ACC+4*tau,4)} offset:{tau*1024}")
        e.label(ljoin)
    if WF:
        for tn in range(4):
            slots[120 + 8 * (tn + 1) + 1]["gap"][1].insert(0, lambda tn=tn: send(tn))
    def issue_reads(upto):
        while st["rd"] <= upto and st["rd"] < N:
            s = slots[st["rd"]]
            if s["unit"] != st["cur"]:
                st["cur"] = s["unit"]
                if st["cur"] == 4:
                    wait_vm([("W", 6), ("W", 7)])
                    e("s_barrier")
            for r in s["reads"]:
                if pend is not None and r is s["reads"][1]: pend.append((r, st["rd"]))
                else:
                    e(r); lg.append(st["rd"])
            st["rd"] += 1
    pend = None
    issue_reads(LA - 1)
    for k in range(N):
        if k == opt.get('pt', 20): poll_take()
        if slots[k]["tn"] == 0 and k >= 20:
            wait_vm([("O", slots[k]["c"] // 4, slots[k]["c"] & 3)])
            if k % 20 == 0 and k <= 120 and (opt.get("diag", 0) == 3 or (opt.get("diag", 0) == 4 and k <= 60)): stamp()
        if k > st["waited"]:
            kk = k + 1 if (k + 1 < st["rd"]) else k
            idx = max(i for i, t in enumerate(lg) if t == kk)
            e(f"s_waitcnt lgkmcnt({min(15, len(lg)-1-idx)})")
            st["waited"] = kk
        e(slots[k]["mf"][0])
        pend = []
        issue_reads(k + LA)
        for fn in slots[k]["gap"][0]: fn()
        e(slots[k]["mf"][1])
        for r, t in pend:
            e(r); lg.append(t)
        for fn in slots[k]["gap"][1]: fn()
    stamp()
    if opt.get("wb", 0):
        lw = newlab("wb")
        e("s_lshr_b32 s100, s2, 3"); e(f"s_or_b32 s100, s100, s{S_W}"); e("s_cmp_eq_u32 s100, 0"); e(f"s_cbranch_scc0 {lw}")
        e("buffer_wbl2 sc1")
        e.label(lw)
    for tn in (range(4, 5) if WF else range(5)): send(tn)
    stamp()
    l1, l2 = newlab("q"), newlab("q")
    if opt.get("diag", 0) == 5:
        for t in range(4): e(f"s_mov_b32 s{54+t}, 0")
    if opt.get("ackfirst", 0):
        e("s_waitcnt vmcnt(0)")
        stamp()
    e.label(l1)
    for i in range(3):
        ls = newlab("q")
        e(f"s_bitcmp1_b32 s26, {i}")
        e(f"s_cbranch_scc1 {ls}")
        for q in range(3):
            if q == 2:
                e(f"s_cmp_ge_u32 s{S_W}, 2"); e(f"s_cbranch_scc1 {ls}")
            e(f"buffer_load_dwordx4 {vr(32+12*i+4*q,4)}, v{VL16}, s[{SP}:{SP+3}], s{13+4*q+i} offen sc1")
        e.label(ls)
    e("s_add_u32 s37, s37, 1")
    lfirst = newlab("q")
    e("s_cmp_lg_u32 s37, 1")
    e(f"s_cbranch_scc1 {lfirst}")
    e("s_waitcnt lgkmcnt(0)")
    e("s_barrier")
    for q in range(3):
        e(f"ds_read_b128 {vr(68+4*q,4)}, v3 offset:{q*4096}")
    e.label(lfirst)
    e("s_waitcnt vmcnt(0)")
    if opt.get("diag", 0) == 5:
        e("s_memtime s[92:93]"); e("s_waitcnt lgkmcnt(0)")
        for t in range(4):
            e(f"s_cmp_eq_u32 s37, {t+1}"); e(f"s_cselect_b32 s{54+t}, s92, s{54+t}");
    for i in range(3):
        ls, lt = newlab("q"), newlab("q")
        b = 32 + 12 * i
        e(f"s_bitcmp1_b32 s26, {i}")
        e(f"s_cbranch_scc1 {ls}")
        for j in range(8): e(f"v_xor_b32 v{b+j}, s25, v{b+j}")
        e(f"v_or3_b32 v4, v{b}, v{b+1}, v{b+2}")
        e(f"v_or3_b32 v6, v{b+3}, v{b+4}, v{b+5}")
        e(f"v_or3_b32 v4, v4, v{b+6}, v{b+7}")
        e(f"s_cmp_ge_u32 s{S_W}, 2"); e(f"s_cbranch_scc1 {lt}")
        for j in range(8, 12): e(f"v_xor_b32 v{b+j}, s25, v{b+j}")
        e(f"v_or3_b32 v6, v6, v{b+8}, v{b+9}")
        e(f"v_or3_b32 v4, v4, v{b+10}, v{b+11}")
        e.label(lt)
        e("v_or_b32 v4, v4, v6")
        e("v_and_b32 v4, 0xff, v4")
        e("v_cmp_ne_u32 vcc, 0, v4")
        e("s_cmp_lg_u64 vcc, 0")
        e(f"s_cbranch_scc1 {ls}")
        e(f"s_bitset1_b32 s26, {i}")
        e.label(ls)
    e("s_cmp_eq_u32 s26, 7")
    e(f"s_cbranch_scc1 {l2}")
    e(f"s_cmp_lt_u32 s37, {SPIN}")
    e(f"s_cbranch_scc1 {l1}")
    e.label(l2)
    stamp()
    ldone = newlab("r")
    for q in range(3):
        for j in range(4):
            e(f"v_add_f32 v{32+4*q+j}, v{32+4*q+j}, v{44+4*q+j}")
    e("s_waitcnt lgkmcnt(0)")
    for q in range(3):
        if q == 2:
            e(f"s_cmp_ge_u32 s{S_W}, 2"); e(f"s_cbranch_scc1 {ldone}")
        for j in range(4):
            e(f"v_add_f32 v{56+4*q+j}, v{56+4*q+j}, v{68+4*q+j}")
        for j in range(4):
            e(f"v_add_f32 v{32+4*q+j}, v{32+4*q+j}, v{56+4*q+j}")
        e(f"v_cvt_pk_bf16_f32 v{80+2*q}, v{32+4*q}, v{33+4*q}")
        e(f"v_cvt_pk_bf16_f32 v{81+2*q}, v{34+4*q}, v{35+4*q}")
        e(f"buffer_store_dwordx2 {vr(80+2*q,2)}, v2, s[{SOUT}:{SOUT+3}], s{[12,16,20][q]} offen")
    e.label(ldone)

if __name__ == "__main__":
    out = sys.argv[1]
    opt = {}
    for a in sys.argv[2:]:
        k, v = a.split("=")
        if k not in ("kmix", "wpl", "wsp", "wspa", "wspb", "wafter", "pfu"):
            try: v = int(v)
            except:
                try: v = float(v)
                except: pass
        if k.endswith("flag"): v = (" " + v.replace("+", " ")) if v not in ("none", 0) else ""
        opt[k] = v
    open(out, "w").write(gen(opt))
```

```python
import sys, math
sys.path.insert(0, "gen")
from asmlib import *
NAME = "standalone__gqa_block_cached__near_ridge"
WS_O = 0
WS_P = 16 << 20
WS_F = 28 << 20
WS_DIAG = 32 << 20
SCALE = math.log2(math.e) / math.sqrt(128.0)
SPIN = 0x40000
NONCE_OFF = 256 * 1024

def cost(s):
    if not isinstance(s, str): return s.cost
    op = s.split()[0]
    if op in ("v_exp_f32", "v_rcp_f32"): return 8
    if op.startswith("v_mfma"): return 8
    return 4

class Act:
    def __init__(self, fn, cost): self.fn = fn; self.cost = cost

def gen(opt):
    e = Asm()
    kname = NAME + "_kernel"
    TICK = opt.get("tick", 0)
    if TICK:
        e.raw("; @launch kernel=tick0_kernel grid=(1,1,1) block=(64,1,1) lds=0")
        e.raw(f"; @launch kernel={kname} grid=(256,1,1) block=(256,1,1) lds=163840")
        e.raw("; @launch kernel=tick1_kernel grid=(1,1,1) block=(64,1,1) lds=0")
    else:
        e.raw("; @launch grid=(256,1,1) block=(256,1,1) lds=163840")
    e.raw('.amdgcn_target "amdgcn-amd-amdhsa--gfx950"')
    e.raw(".text")
    kernel_header(e, kname)
    LA = opt.get("LA", 6)
    D = opt.get("d", 3)
    KVF = opt.get("kvflag", " nt")
    XWF = opt.get("xwflag", "")
    WOF = opt.get("woflag", "")
    diag = opt.get("diag", 0)
    FORCE_SLOW = opt.get("slow", 0)
    STOP = opt.get("stop", 0)
    PAIRW = opt.get("pairw", 1)
    ROLES = opt.get("roles", 1)
    NST = opt.get("nst", 0) if ROLES else 0
    S_ROLE = 62
    AKV = 68
    lab = [0]
    def newlab(p):
        lab[0] += 1
        return f"L_{p}{lab[0]}"
    nstamp = [0]
    def stamp():
        if not diag or diag == 9: return
        k = nstamp[0]; nstamp[0] += 1
        assert k < 21
        e("s_memtime s[92:93]")
        e("s_waitcnt lgkmcnt(0)")
        e(f"s_mov_b32 s{40+k}, s92")
    S_W, S_B, S_HG, S_HI, S_H = 3, 4, 5, 6, 7
    SX, SW, SK, SV, SO = 8, 12, 16, 20, 24
    S_W4K, S_T0, S_T1, S_SO, S_C = 28, 29, 30, 31, 32
    S_PO, S_KT, S_FAST, S_SX, S_SW2 = 33, 34, 35, 36, 37
    S_WL, S_WG = 38, 39
    SWO, SOG, SF, SP = 80, 84, 88, 96
    SD = SOG
    VK, VV, VAX, VBW, VAK = 2, 6, 7, 8, 9
    VL16, VDB = 10, 11
    RA = 12
    VM, VMC, VAL = 20, 21, 22
    VWO = [0, 1, 23, 7, 29]
    V_L, T0, T1, T2, T3 = 24, 25, 26, 27, 28
    T4 = 29
    VZ, VPO = 30, 31
    S_TAG = 63
    QF = 32
    Oacc, Sreg = 64, 128
    VX, VW = 128, 132
    R = LA + 2
    AF = 0; XF = 4 * R; XR = 3
    ONES = 44; LACC = 48
    assert XF + 4 * XR <= ONES
    AWO = 64
    SPEC = opt.get('spec', 0)
    SO2 = 56
    assert not (SPEC and diag and diag != 9) or opt.get('fewstamps', 0)
    KOFF = opt.get('koff', 0)
    AQ = 32; NEGM = 32; LS = 48; S_RS = 61
    THR = opt.get('thr', 8.0)
    rare = []
    assert R == 8

    e("s_cmp_ge_u32 s2, 256")
    e("s_cbranch_scc1 L_done")
    if diag: e("s_memrealtime s[94:95]")
    if diag: e("s_mov_b32 s60, 0")
    e("s_load_dwordx16 s[64:79], s[0:1], 0")
    if opt.get("pf", 1):
        e("s_getpc_b64 s[100:101]")
        e("s_and_b32 s100, s100, 0xffffff00")
        e("s_lshr_b32 s99, s2, 3")
        e("s_lshl_b32 s99, s99, 10")
        e("v_and_b32 v3, 63, v0")
        e("v_lshlrev_b32 v3, 4, v3")
        e("v_lshrrev_b32 v4, 6, v0")
        e("v_lshl_add_u32 v3, v4, 15, v3")
        e("v_add_u32 v3, s99, v3")
        e(f"v_min_u32 v3, (L_done-{kname}-16)&0xfffffff0, v3")
        e("v_mov_b32 v5, s101")
        e("v_add_co_u32 v4, vcc, s100, v3")
        e("v_addc_co_u32 v5, vcc, 0, v5, vcc")
        e("global_load_dwordx4 a[252:255], v[4:5], off")
    e("v_lshrrev_b32 v1, 6, v0")
    e(f"v_and_b32 v{V_L}, 63, v0")
    e(f"v_readfirstlane_b32 s{S_W}, v1")
    e("s_and_b32 s100, s2, 1")
    e("s_lshl_b32 s100, s100, 2")
    e("s_bfe_u32 s101, s2, 0x20003")
    e(f"s_add_u32 s{S_B}, s100, s101")
    e(f"s_bfe_u32 s{S_HG}, s2, 0x20001")
    e(f"s_lshr_b32 s{S_HI}, s2, 5")
    e(f"s_lshl_b32 s{S_H}, s{S_HG}, 3")
    e(f"s_add_u32 s{S_H}, s{S_H}, s{S_HI}")
    if opt.get("homo", 1): e(f"s_mov_b32 s{S_ROLE}, s101")
    else: e(f"s_add_u32 s{S_ROLE}, s101, s{S_HI}")
    e(f"s_and_b32 s{S_ROLE}, s{S_ROLE}, {1 if ROLES else 0}")
    e("s_lshl_b32 s100, s101, 2")
    e(f"s_lshr_b32 s{S_KT}, 0x8530, s100")
    e(f"s_and_b32 s{S_KT}, s{S_KT}, 15")
    e(f"s_add_u32 s{S_KT}, s{S_KT}, s{S_HI}")
    e(f"s_cmp_ge_u32 s{S_KT}, 10")
    e("s_cselect_b32 s100, 10, 0")
    e(f"s_sub_u32 s{S_KT}, s{S_KT}, s100")
    XPF = opt.get("xpf", 1) and ROLES
    NBL = opt.get("nbl", 3)
    if XPF and not opt.get("arot", 0): e(f"s_mov_b32 s{S_KT}, 0")
    e(f"s_lshl_b32 s{S_W4K}, s{S_W}, 12")
    e(f"v_lshrrev_b32 v{T0}, 4, v{V_L}")
    e(f"v_and_b32 v{T1}, 15, v{V_L}")
    e(f"v_lshrrev_b32 v{T2}, 3, v{V_L}")
    e(f"s_lshl_b32 s{S_T0}, s{S_W}, 5")
    e(f"v_add_u32 v{T2}, s{S_T0}, v{T2}")
    e(f"v_mul_u32_u24 v{T2}, 1280, v{T2}")
    e(f"v_and_b32 v{T3}, 7, v{V_L}")
    e(f"v_xor_b32 v{T4}, v{T0}, v{T3}")
    e(f"v_lshl_add_u32 v{VX}, v{T4}, 4, v{T2}")
    e(f"v_add_u32 v{VX+2}, {2*9216}, v{VX}")
    e(f"v_xor_b32 v{T4}, 64, v{VX}")
    e(f"v_add_u32 v{VX+1}, 9216, v{T4}")
    e(f"v_add_u32 v{VX+3}, {3*9216}, v{T4}")
    e(f"v_lshlrev_b32 v{T2}, 2, v{T0}")
    e(f"v_xor_b32 v{T2}, v{T2}, v{T1}")
    e(f"v_lshlrev_b32 v{T2}, 4, v{T2}")
    e(f"s_lshl_b32 s{S_T0}, s{S_W}, 17")
    e(f"v_lshl_add_u32 v{VW}, v{T0}, 13, s{S_T0}")
    e(f"v_add_u32 v{VW}, v{VW}, v{T2}")
    for jj in range(1, 4):
        e(f"v_add_u32 v{VW+jj}, {jj*(32768-1024)}, v{VW}")
    e(f"v_lshl_add_u32 v{T3}, v{T0}, 8, s{S_W4K}")
    e(f"v_add_u32 v{VV}, v{T2}, v{T3}")
    e("s_waitcnt lgkmcnt(0)")
    e(f"s_mul_i32 s{S_T0}, s{S_B}, 163840")
    srd(e, SX, 64, 65, S_T0, 163840)
    e(f"s_lshl_b32 s{S_T0}, s{S_H}, 8")
    e(f"s_sub_u32 s{S_T1}, {640*8192}, s{S_T0}")
    srd(e, SW, 70, 71, S_T0, f"s{S_T1}")
    stamp()
    vmbox = [[]]
    def vm_add(tag, roles=None): vmbox[0].append(tag)
    def wait_vm(tags):
        vm = vmbox[0]
        idx = max(i for i, t in enumerate(vm) if t in tags)
        e(f"s_waitcnt vmcnt({min(63, len(vm) - 1 - idx)})")
    slot_of = {}
    for j in range(10):
        slot_of[("x", j)] = j % 3
        slot_of[("w", j)] = [3, 4, 8][j % 3]
    kvt = [("k",0),("k",1),("k",2),("k",3),("v",0),("v",1),("k",4),("k",5),("v",2),("v",3),("k",6),("k",7),("v",4),("v",5),("v",6),("v",7)]
    for i, t in enumerate(kvt): slot_of[t] = 5 + (i + 4) % 5
    assert D == 3 and NST <= 3
    def dma_ops(t):
        kind, j = t
        so = slot_of[t] * 16384
        out = []
        for jj in range(4):
            g = []
            if jj == 0:
                g.append(f"s_add_u32 m0, s{S_W4K}, {so}")
                if kind == "x":
                    g += [f"s_lshl_b32 s{S_SX}, s{S_KT}, 7", f"s_lshl_b32 s{S_SW2}, s{S_KT}, 19", f"s_add_u32 s{S_KT}, s{S_KT}, 1",
                          f"s_cmp_ge_u32 s{S_KT}, 10", f"s_cselect_b32 s{S_KT}, 0, s{S_KT}"]
                elif kind in "kv":
                    g.append(f"s_mov_b32 s{S_SO}, {16384*j}")
            elif kind in "kv" and t in kvt[:4]:
                g.append(f"s_add_u32 m0, s{S_W4K}, {so}")
            if kind == "x":
                g.append(f"buffer_load_dwordx4 v{VX+jj}, s[{SX}:{SX+3}], s{S_SX} offen offset:{1024*jj}{XWF} lds")
            elif kind == "w":
                g.append(f"buffer_load_dwordx4 v{VW+jj}, s[{SW}:{SW+3}], s{S_SW2} offen offset:{1024*jj}{XWF} lds")
            elif kind == "k":
                g.append(f"buffer_load_dwordx4 v{VK+jj}, s[{SK}:{SK+3}], s{S_SO} offen offset:{1024*jj}{KVF} lds")
            else:
                g.append(f"buffer_load_dwordx4 v{VV}, s[{SV}:{SV+3}], s{S_SO} offen offset:{1024*jj}{KVF} lds")
            out.append(g)
        return out
    def emit_group(g, tag, roles="AB"):
        for s in g: e(s)
        vm_add(tag, roles)
    def kv_setup():
        for jj in range(4):
            e(f"v_add_u32 v{T2}, {4*jj}, v{T0}")
            e(f"v_xor_b32 v{T2}, v{T2}, v{T1}")
            e(f"v_lshl_add_u32 v{VK+jj}, v{T2}, 4, v{T3}")
        e(f"s_lshl_b32 s{S_T1}, s{S_B}, 5")
        e(f"s_add_u32 s{S_T1}, s{S_T1}, s{S_H}")
        e(f"s_lshl_b32 s{S_T0}, s{S_T1}, 17")
        srd(e, SK, 66, 67, S_T0, 131072)
        srd(e, SV, 68, 69, S_T0, 131072)
    def burst():
        for n in range(NBL):
            for g in dma_ops(kvt[n]): emit_group(g, kvt[n])
        for n in range(4, 4 + NST):
            kind, j = kvt[n]
            e(f"s_mov_b32 s{S_SO}, {16384*j}")
            for jj in range(4):
                vo, sr_ = (VK + jj, SK) if kind == "k" else (VV, SV)
                e(f"buffer_load_dwordx4 {ar(AKV+16*(n-4)+4*jj,4)}, v{vo}, s[{sr_}:{sr_+3}], s{S_SO} offen offset:{1024*jj}{KVF}"); vm_add(kvt[n])
    vmB_pre = []
    if XPF:
        e(f"s_cmp_eq_u32 s{S_ROLE}, 0")
        e("s_cbranch_scc1 L_noxpf")
        e(f"s_lshl_b32 s100, s{S_HI}, 1"); e("s_bfe_u32 s101, s2, 0x10004"); e("s_add_u32 s100, s100, s101")
        e(f"s_lshl_b32 s100, s100, 2"); e(f"s_add_u32 s100, s100, s{S_W}")
        e(f"s_lshl_b32 s101, s100, 13")
        e(f"v_lshl_add_u32 v140, v{V_L}, 4, s101")
        e("s_mul_i32 s101, s100, 10240")
        e(f"v_lshrrev_b32 v141, 3, v{V_L}"); e("v_mul_u32_u24 v141, 1280, v141")
        e(f"v_and_b32 v142, 7, v{V_L}"); e("v_lshl_add_u32 v141, v142, 4, v141"); e("v_add_u32 v141, s101, v141")
        e("s_and_b32 s100, s2, 1"); e(f"s_mul_i32 s100, s100, {4*163840}")
        srd(e, SK, 64, 65, 100, 4 * 163840)
        e(f"s_lshl_b32 s100, s{S_HG}, 11"); e(f"s_sub_u32 s101, {640*8192}, s100")
        srd(e, SV, 70, 71, 100, "s101")
        for j in range(opt.get("nxpf", 10)):
            e(f"s_movk_i32 s100, {128*j}"); e(f"s_mov_b32 s101, {524288*j}")
            e(f"buffer_load_dwordx4 a[248:251], v140, s[{SV}:{SV+3}], s101 offen{XWF}")
            e(f"buffer_load_dwordx4 a[248:251], v141, s[{SK}:{SK+3}], s100 offen{XWF}")
            e(f"buffer_load_dwordx4 a[248:251], v140, s[{SV}:{SV+3}], s101 offen offset:1024{XWF}")
        kv_setup()
        burst()
        vmB_pre = list(vmbox[0]); vmbox[0] = []
        e.label("L_noxpf")
    ini = [dma_ops(("x", 0)), dma_ops(("w", 0)), dma_ops(("x", 1)), dma_ops(("w", 1))]
    for i, t in enumerate((("x", 0), ("w", 0), ("x", 1))):
        for g in ini[i]: emit_group(g, t)
    stamp()
    kv_setup()
    e(f"s_mul_i32 s{S_T0}, s{S_HG}, {1024*1280}")
    if opt.get("pfb", 4) == 5:
        e("s_lshr_b32 s100, s2, 3"); e(f"s_lshl_b32 s100, s100, 2"); e(f"s_add_u32 s100, s100, s{S_W}"); e("s_mul_i32 s100, s100, 10240")
    else:
        e(f"s_lshl_b32 s100, s{S_HI}, 1"); e("s_bfe_u32 s101, s2, 0x10004"); e("s_add_u32 s100, s100, s101")
        e(f"s_lshl_b32 s100, s100, 2"); e(f"s_add_u32 s100, s100, s{S_W}"); e("s_mul_i32 s100, s100, 20480")
    e(f"s_add_u32 s{S_T0}, s{S_T0}, s100")
    srd(e, SO, 72, 73, S_T0, 20480)
    srd(e, SD, 76, 77, None, 256)
    if SPEC:
        e(f"s_lshl_b32 s100, s{S_B}, 5"); e(f"s_add_u32 s100, s100, s{S_H}"); e("s_lshl_b32 s100, s100, 2"); e(f"s_add_u32 s100, s100, s{S_W}"); e("s_lshl_b32 s100, s100, 13")
        srd(e, SO2, 78, 79, 100, 8192)
    e(f"s_mul_i32 s{S_T0}, s{S_HG}, {1024*1280}")
    e(f"s_mul_i32 s{S_T1}, s{S_HI}, 160")
    e(f"s_add_u32 s{S_T0}, s{S_T0}, s{S_T1}")
    e(f"s_sub_u32 s{S_T1}, {4096*1280}, s{S_T0}")
    srd(e, SWO, 72, 73, S_T0, f"s{S_T1}")
    e(f"s_mov_b32 s{S_T0}, {WS_F}")
    srd(e, SF, 78, 79, S_T0, 256 * 1024 + 128)
    e(f"s_lshl_b32 s{S_T0}, s{S_B}, 3"); e(f"s_add_u32 s{S_T0}, s{S_T0}, s{S_HI}")
    e(f"s_mul_i32 s{S_T0}, s{S_T0}, 81920"); e(f"s_add_u32 s{S_T0}, s{S_T0}, {WS_P}")
    srd(e, SP, 78, 79, S_T0, 81920)
    e(f"s_lshl_b32 s{S_PO}, s{S_HG}, 2"); e(f"s_add_u32 s{S_PO}, s{S_PO}, s{S_W}"); e(f"s_mul_i32 s{S_PO}, s{S_PO}, 5120")

    e(f"v_and_b32 v{T0}, 31, v{V_L}")
    e(f"v_lshrrev_b32 v{T1}, 5, v{V_L}")
    e(f"v_bfe_u32 v{T2}, v{V_L}, 1, 3")
    e(f"v_xor_b32 v{T2}, v{T2}, v{T1}")
    e(f"v_lshlrev_b32 v{T2}, 4, v{T2}")
    e(f"v_lshl_add_u32 v{T3}, v{T0}, 7, s{S_W4K}")
    e(f"v_add_u32 v{VAX}, v{T2}, v{T3}")
    e(f"v_and_b32 v{T2}, 19, v{T0}")
    e(f"v_bfe_u32 v{T3}, v{T0}, 2, 1")
    e(f"v_lshl_or_b32 v{T2}, v{T3}, 3, v{T2}")
    e(f"v_bfe_u32 v{T3}, v{T0}, 3, 1")
    e(f"v_lshl_or_b32 v{T2}, v{T3}, 2, v{T2}")
    e(f"v_and_b32 v{T3}, 15, v{T2}")
    e(f"v_xor_b32 v{T3}, v{T3}, v{T1}")
    e(f"v_lshlrev_b32 v{T3}, 4, v{T3}")
    e(f"v_lshl_add_u32 v{VAK}, v{T2}, 8, v{T3}")
    e(f"v_bfe_u32 v{T2}, v{V_L}, 2, 2")
    e(f"v_mul_u32_u24 v{T2}, 320, v{T2}")
    e(f"v_lshl_add_u32 v{T2}, v{T1}, 11, v{T2}")
    e(f"v_bfe_u32 v{T3}, v{V_L}, 4, 1")
    e(f"v_lshl_add_u32 v{T2}, v{T3}, 5, v{T2}")
    e(f"v_and_b32 v{T3}, 1, v{V_L}")
    e(f"v_lshl_add_u32 v{T2}, v{T3}, 4, v{T2}")
    e(f"v_bfe_u32 v{T3}, v{V_L}, 1, 1")
    e(f"v_lshl_add_u32 v{VBW}, v{T3}, 3, v{T2}")
    e(f"v_lshlrev_b32 v{VL16}, 4, v{V_L}")
    e(f"s_mov_b32 s{S_C}, {f32bits(SCALE)}")
    for g in ini[3]: emit_group(g, ("w", 1))
    e(f"s_mov_b32 s100, {NONCE_OFF}")
    e(f"buffer_load_dword v{VDB}, off, s[{SF}:{SF+3}], s100 sc1"); vm_add("oldn")
    e("v_or_b32 v1, s2, v0")
    e(f"v_mov_b32 v{T0}, 0x7fffffff")
    e("v_cmp_eq_u32 vcc, 0, v1")
    e(f"v_cndmask_b32 v{VZ}, v{T0}, 0, vcc")
    e(f"v_and_b32 v{T0}, 7, v{V_L}")
    e("s_and_b32 s100, s2, 31"); e("s_lshl_b32 s100, s100, 10")
    e(f"v_lshl_add_u32 v{VPO}, v{T0}, 15, s100")
    for ee in range(5):
        e(f"v_add_u32 v{T0}, {64*ee}, v{V_L}")
        e(f"v_mul_u32_u24 v{T1}, 6554, v{T0}")
        e(f"v_lshrrev_b32 v{T1}, 16, v{T1}")
        e(f"v_mul_u32_u24 v{T2}, 10, v{T1}")
        e(f"v_sub_u32 v{T2}, v{T0}, v{T2}")
        e(f"v_mul_u32_u24 v{T1}, 1280, v{T1}")
        if ee == 3:
            e(f"v_lshl_add_u32 v{T1}, v{T2}, 4, v{T1}")
            e(f"v_subrev_u32 v{T1}, {1024*ee}, v{T1}")
            e(f"v_accvgpr_write_b32 a{AWO}, v{T1}")
        elif 0 < ee < 4:
            e(f"v_lshl_add_u32 v{T1}, v{T2}, 4, v{T1}")
            e(f"v_subrev_u32 v{VWO[ee]}, {1024*ee}, v{T1}")
        else:
            e(f"v_lshl_add_u32 v{VWO[ee]}, v{T2}, 4, v{T1}")

    def attention(role):
        slots = []
        def add_slot(unit, reads, mf, tag=None):
            slots.append(dict(unit=unit, reads=reads, mf=mf, fill=[], fill2=[], dma=[], post=[], tag=tag))
        ring = [0]
        def newbuf():
            b = AF + 4 * (ring[0] % R); ring[0] += 1
            return b
        for j in range(10):
            for s in range(4):
                xi = (j * 4 + s) % XR
                for t in range(4):
                    ab = newbuf()
                    rd = []
                    if t == 0: rd.append(f"ds_read_b128 {ar(XF+4*xi,4)}, v{RA+4+s}")
                    rd.append(f"ds_read_b64_tr_b16 {ar(ab,2)}, v{RA+t} offset:{s*4096}")
                    rd.append(f"ds_read_b64_tr_b16 {ar(ab+2,2)}, v{RA+t} offset:{s*4096+1024}")
                    c = "0" if (j == 0 and s == 0) else vr(Oacc+16*t, 16)
                    add_slot(("s", j), rd, f"v_mfma_f32_32x32x16_bf16 {vr(Oacc+16*t,16)}, {ar(ab,4)}, {ar(XF+4*xi,4)}, {c}")
        def sbuf(q): return Sreg + 64 * (q & 1)
        def frag_ops(q, f):
            b = sbuf(q) + 8 * f
            ops = [f"v_add_f32 v{b+i}, v{b+i}, v{NEGM}" for i in range(8)] if q == 0 else []
            ops += [f"v_exp_f32 v{b+i}, v{b+i}" for i in range(8)]
            if q == 0 and f == 0:
                ops += [f"v_add_f32 v{LS+i}, v{b+i}, v{b+4+i}" for i in range(4)]
            else:
                ops += [f"v_add_f32 v{LS+(i&3)}, v{LS+(i&3)}, v{b+i}" for i in range(8)]
            ops += [f"v_cvt_pk_bf16_f32 v{b+i}, v{b+2*i}, v{b+2*i+1}" for i in range(4)]
            return ops
        def max_ops(q, sg):
            b = sbuf(q) + 16 * sg
            ops = []
            for i in range(8):
                if sg == 0 and i == 0:
                    ops.append(f"v_max_f32 v{VM}, v{b}, v{b+1}")
                else:
                    ops.append(f"v_max3_f32 v{VM}, v{VM}, v{b+2*i}, v{b+2*i+1}")
            return ops
        def check1(q):
            def f():
                lr, lb = newlab("rr"), newlab("rb")
                e(f"v_cmp_lt_f32 vcc, {f32bits(float(THR))}, v{VM}")
                e("s_cmp_lg_u64 vcc, 0")
                e(f"s_cbranch_scc1 {lr}")
                e.label(lb)
                def blk():
                    e.label(lr)
                    e(f"v_mov_b32 v{T0}, v{VM}")
                    e("s_nop 1")
                    e(f"v_permlane32_swap_b32 v{T0}, v{VM}")
                    e(f"v_max3_f32 v{VM}, v{T0}, v{VM}, 0")
                    e(f"v_exp_f32 v{VAL}, -v{VM}")
                    for i in range(64): e(f"v_sub_f32 v{sbuf(q)+i}, v{sbuf(q)+i}, v{VM}")
                    for i in range(4): e(f"v_mul_f32 v{LS+i}, v{LS+i}, v{VAL}")
                    for i in range(16): e(f"v_sub_f32 v{NEGM+i}, v{NEGM+i}, v{VM}")
                    e(f"s_mov_b32 s{S_RS}, 1")
                    e("s_nop 1")
                    e(f"s_branch {lb}")
                rare.append(blk)
            return Act(f, 12)
        def check2():
            def f():
                lr, lb = newlab("rr"), newlab("rb")
                e(f"s_cmp_lg_u32 s{S_RS}, 0")
                e(f"s_cbranch_scc1 {lr}")
                e.label(lb)
                def blk():
                    e.label(lr)
                    e("s_nop 15")
                    for i in range(64): e(f"v_mul_f32 v{Oacc+i}, v{Oacc+i}, v{VAL}")
                    e(f"s_mov_b32 s{S_RS}, 0")
                    e("s_nop 1")
                    e(f"s_branch {lb}")
                rare.append(blk)
            return Act(f, 8)
        seg = {}
        def add_qk(q):
            a = len(slots)
            for jl in range(2):
                unit = ("k", 2*q + jl)
                for u in range(2):
                    sg = 2 * jl + u
                    sb = sbuf(q) + 16 * sg
                    for m in range(8):
                        ab = newbuf()
                        c = ("0" if q == 0 else vr(NEGM, 16)) if m == 0 else vr(sb, 16)
                        add_slot(unit, [f"ds_read_b128 {ar(ab,4)}, v{RA+m} offset:{u*8192}"],
                                 f"v_mfma_f32_32x32x16_bf16 {vr(sb,16)}, {ar(ab,4)}, {ar(AQ+4*m,4)}, {c}")
            seg[("qk", q)] = (a, len(slots))
        def add_pv(q):
            a = len(slots)
            def lslot(unit, f):
                first = (q == 0 and f == 0)
                add_slot(unit, [], f"v_mfma_f32_32x32x16_bf16 {ar(LACC,16)}, {ar(ONES,4)}, {vr(sbuf(q)+8*f,4)}, {'0' if first else ar(LACC,16)}")
            def oslot(unit, f, t):
                first = (q == 0 and f == 0); m = f & 3
                ab = newbuf()
                rd = [f"ds_read_b64_tr_b16 {ar(ab,2)}, v{RA+t} offset:{m*4096}",
                      f"ds_read_b64_tr_b16 {ar(ab+2,2)}, v{RA+t} offset:{m*4096+1024}"]
                add_slot(unit, rd, f"v_mfma_f32_32x32x16_bf16 {vr(Oacc+16*t,16)}, {ar(ab,4)}, {vr(sbuf(q)+8*f,4)}, {'0' if first else vr(Oacc+16*t,16)}")
            for jl in range(2):
                unit = ("v", 2*q + jl)
                if q == 3 and jl == 1:
                    for t in range(4):
                        for m in range(4): oslot(unit, 4 + m, t)
                    continue
                for m in range(4):
                    f = 4 * jl + m
                    for t in range(4): oslot(unit, f, t)
            seg[("pv", q)] = (a, len(slots))
        add_qk(0); add_qk(1); add_pv(0); add_qk(2); add_pv(1); add_qk(3); add_pv(2); add_pv(3)
        N = len(slots)
        unit_first = {}
        for k, s in enumerate(slots): unit_first.setdefault(s["unit"], k)
        def unit_range(u):
            ks = [k for k, s in enumerate(slots) if s["unit"] == u]
            return ks[0], ks[-1] + 1
        for j in range(8):
            k0 = unit_first[("s", j)]
            if j >= 1: slots[k0]["post"].append("barrier2")
            ops = [(g, ("x", j+2)) for g in dma_ops(("x", j+2))] + [(g, ("w", j+2)) for g in dma_ops(("w", j+2))]
            for i, (g, t) in enumerate(ops):
                slots[k0 + 2 * i]["dma"].append((g, t))
        def b_prefetch():
            for n in range(4):
                for g in dma_ops(kvt[n]): emit_group(g, kvt[n])
            for n in range(4, 4 + NST):
                kind, j = kvt[n]
                e(f"s_mov_b32 s{S_SO}, {16384*j}")
                for jj in range(4):
                    vo, sr_ = (VK + jj, SK) if kind == "k" else (VV, SV)
                    e(f"buffer_load_dwordx4 {ar(AKV+16*(n-4)+4*jj,4)}, v{vo}, s[{sr_}:{sr_+3}], s{S_SO} offen offset:{1024*jj}{KVF}"); vm_add(kvt[n])
        PFB = opt.get("pfb", 4)
        def pf_ops(n):
            return [([f"s_movk_i32 s{S_T0}, {(i>>2)*4096}"] if i % 4 == 0 else []) + [f"buffer_load_dwordx4 a[252:255], v{VL16}, s[{SO}:{SO+3}], s{S_T0} offen offset:{(i&3)*1024}{WOF}"] for i in range(n)]
        def b_all():
            if PFB == 1:
                for gg in pf_ops(20): emit_group(gg, "pf")
            b_prefetch()
            if PFB == 2:
                for gg in pf_ops(20): emit_group(gg, "pf")
        if role == "B" and not XPF:
            slots[unit_first[("s", opt.get("bst", 1))] + 15]["fill"].append(Act(b_all, 0))
        if role == "B" and XPF and NBL < 4:
            kops = [(g, kvt[n]) for n in range(NBL, 4) for g in dma_ops(kvt[n])]
            k0 = unit_first[("s", 8)]
            for i, it in enumerate(kops): slots[k0 + (2 * i + 1) * 32 // (2 * len(kops))]["dma"].append(it)
        if SPEC and not STOP:
            a, b = unit_range(kvt[opt.get("pfillu", 2)])
            for i in range(8):
                gg = ([f"s_movk_i32 s{S_T1}, {(i>>2)*4096}"] if i % 4 == 0 else []) + [f"buffer_store_dwordx4 v[52:55], v{VL16}, s[{SO2}:{SO2+3}], s{S_T1} offen offset:{(i&3)*1024}{opt.get('pfillflag', '')}"]
                if opt.get("nopfill", 0): gg = []
                slots[a + 8 + i]["dma"].append((gg, "pfill"))
        if PFB == 5:
            a, b = unit_range(kvt[int(str(opt.get("pfa" if role == "A" else "pfu", "c")), 16)])
            for i, gg in enumerate(pf_ops(10)):
                slots[a + 8 + i * 8 // 10]["dma"].append((gg, "pf"))
        if role == "A" and PFB == 4:
            lo_u, hi_u = [int(c, 16) for c in str(opt.get("pfu", "18"))]
            nu = hi_u - lo_u + 1
            for i, gg in enumerate(pf_ops(20)):
                a, b = unit_range(kvt[lo_u + i * nu // 20])
                j = i - min(ii for ii in range(20) if ii * nu // 20 == i * nu // 20)
                slots[a + 9 + 2 * j]["dma"].append((gg, "pf"))
        if role == "B" and PFB == 3:
            lo_u, hi_u = [int(c, 16) for c in str(opt.get("pfu", "03"))]
            a = unit_range(kvt[lo_u])[0] + 6; b = unit_range(kvt[hi_u])[1]
            for i, gg in enumerate(pf_ops(20)):
                slots[a + i * (b - a) // 20]["dma"].append((gg, "pf"))
        if role != "B":
            kops = [(g, kvt[n]) for n in range(4) for g in dma_ops(kvt[n])]
            npf = opt.get("npf", 20) if role == "A" and not STOP and not PFB else 0
            pfo = [([f"s_movk_i32 s{S_T0}, {(i>>2)*4096}"] if i % 4 == 0 else []) + [f"buffer_load_dwordx4 a[252:255], v{VL16}, s[{SO}:{SO+3}], s{S_T0} offen offset:{(i&3)*1024}{WOF}"] for i in range(npf)]
            pfo = [(g, "pf") for g in pfo]
            if opt.get("pffirst", 1): kops = pfo + kops
            else: kops = kops + pfo
            kmix = str(opt.get("kmix", ("0000000088" if PFB else "00000006ff") if role == "A" else "0002222224")).zfill(10)
            assert sum(int(c, 16) for c in kmix) == len(kops), len(kops)
            for j in range(10):
                c = int(kmix[j], 16); k0 = unit_first[("s", j)]
                for i in range(c):
                    if j < 8: pos = 7 if i < c // 2 else 15
                    else: pos = (2 * i + 1) * 16 // (2 * c)
                    slots[k0 + pos]["dma"].append(kops.pop(0))
        NB2 = opt.get("nb2", 0) if role == "B" else 0
        for n in range(4, 16):
            a, b = unit_range(kvt[n - D])
            if n < NB2 and n not in (4, 7):
                a, b = unit_range(kvt[n - D + 1]) if n + 1 < NB2 and n + 1 not in (7,) else (a + 8, b)
            L = 16
            for i, g in enumerate(dma_ops(kvt[n])):
                if role == "B" and n < 4 + NST:
                    alt = [f"v_add_u32 v{T3}, s{S_W4K}, v{VL16}", f"v_add_u32 v{T3}, {slot_of[kvt[n]]*16384}, v{T3}"] if i == 0 else []
                    alt.append(f"ds_write_b128 v{T3}, {ar(AKV+16*(n-4)+4*i,4)} offset:{1024*i}")
                    slots[a + (2 * i) * L // 16 + 1 + KOFF]["dma"].append((alt, None))
                else:
                    slots[a + (2 * i) * L // 16 + 1 + KOFF]["dma"].append((g, kvt[n]))
        NS0 = opt.get('ns0', 4)
        AST = 256 - 20 * (8 - NS0)
        WROT = opt.get("wrot", 1)
        def w_grp(g):
            if not WROT or g >= 4: return [f"s_add_u32 s100, s{S_W}, {4*g}"]
            return ["s_bfe_u32 s100, s2, 0x20003", f"s_add_u32 s100, s100, {g & 3}", "s_and_b32 s100, s100, 3", "s_lshl_b32 s100, s100, 2",
                    f"s_add_u32 s100, s100, s{S_W}"] + ([f"s_add_u32 s100, s100, 16"] if g >= 4 else [])
        def w_lds(g, dst):
            return w_grp(g) + [f"s_mul_i32 s{dst}, s100, 5120"]
        def w_ops(g, stage=False):
            glob = [f"s_lshl_b32 s101, s{S_HI}, 2", "s_add_u32 s100, s100, s101", "s_and_b32 s100, s100, 31", f"s_mul_i32 s{S_WG}, s100, {32*1280}"]
            out = []
            if stage:
                pre = w_grp(g) + glob
                for ee in range(5):
                    out.append((pre if ee == 0 else []) + [f"buffer_load_dwordx4 {ar(AST+20*(g-NS0)+4*ee,4)}, v{VWO[ee]}, s[{SWO}:{SWO+3}], s{S_WG} offen offset:{1024*ee if ee<4 else 0}{WOF}"])
                return out
            pre = w_lds(g, S_WL) + [f"s_mov_b32 m0, s{S_WL}"] + glob
            for ee in range(4):
                out.append((pre if ee == 0 else [f"s_mov_b32 m0, s{S_WL}", "s_nop 0"]) + [f"buffer_load_dwordx4 v{VWO[ee]}, s[{SWO}:{SWO+3}], s{S_WG} offen offset:{1024*ee}{WOF} lds"])
            out.append([f"s_add_u32 m0, s{S_WL}, 4096", "s_nop 0", f"buffer_load_dwordx4 v{VWO[4]}, s[{SWO}:{SWO+3}], s{S_WG} offen{WOF} lds"])
            return out
        def pmap(c): return c
        assert NS0 == 4
        def place_w(rng, role):
            lo_u, hi_u = [int(c, 16) for c in rng]
            sp = [(gg, ("W", g)) for g in range(4) for gg in w_ops(g, False)]
            nu = hi_u - lo_u + 1
            byu = {}
            for i, it in enumerate(sp): byu.setdefault(lo_u + i * nu // len(sp), []).append(it)
            for n, ops in byu.items():
                a, b = unit_range(kvt[n]); L = b - a
                nokv = n + D > 15 or n == 0 or (role == "B" and n + D < 4 + NST)
                lo = a + 1 if nokv else a + L // 2 + 1 + KOFF
                if n == 15: b = a + 8
                for i, it in enumerate(ops):
                    slots[lo + i * (b - lo) // len(ops)]["dma"].append(it)
        if not STOP:
            for gi, n in ((4, 14), (5, 15)):
                a, b = unit_range(kvt[n])
                for i, gg in enumerate(w_ops(gi, False)):
                    slots[a + (8 if n == 14 else 0) + i]["dma"].append((gg, ("W", gi)))
            place_w(str(opt.get({"A": "wspa", "B": "wspb", "AB": "wsp"}[role], {"A": "cd", "B": "cd", "AB": "0b"}[role])), role)
        def misc_acts():
            def m0():
                wait_vm(["dbgld"])
                l1, l2 = newlab("dc"), newlab("dc")
                e("s_mov_b32 s101, 0")
                e.label(l1)
                e(f"v_xor_b32 v{T0}, v{T3}, v{VDB}")
                e(f"v_cmp_gt_u32 vcc, 16, v{T0}")
                e("s_cmp_eq_u64 vcc, -1")
                e(f"s_cbranch_scc1 {l2}")
                e("s_add_u32 s101, s101, 1")
                e(f"s_cmp_ge_u32 s101, {SPIN}")
                e(f"s_cbranch_scc1 {l2}")
                e("s_sleep 8")
                e(f"buffer_load_dword v{T3}, v{VPO}, s[{SF}:{SF+3}], 0 offen offset:512 sc1")
                e("s_waitcnt vmcnt(0)")
                e(f"s_branch {l1}")
                e.label(l2)
                e(f"v_cmp_eq_u32 vcc, 0, v{T0}")
                e("s_cmp_eq_u64 vcc, -1")
                e(f"s_cselect_b32 s{S_FAST}, {0 if FORCE_SLOW else 1}, 0")
            def m1():
                e(f"s_lshl_b32 s{S_T0}, s{S_B}, 2"); e(f"s_add_u32 s{S_T0}, s{S_T0}, s{S_HG}"); e(f"s_lshl_b32 s{S_T0}, s{S_T0}, 18")
                e(f"s_lshl_b32 s100, s{S_W}, 13")
                e(f"s_add_u32 s{S_T0}, s{S_T0}, s100")
                srd(e, SOG, 78, 79, S_T0, 7 * 32768 + 8192)
            def m2():
                e(f"s_lshl_b32 s100, s{S_HI}, 15")
                e(f"s_add_u32 s{S_T0}, s{S_T0}, s100")
                srd(e, SO, 78, 79, S_T0, 8192)
                e(f"s_lshl_b32 s{S_T0}, s2, 3"); e(f"s_add_u32 s{S_T0}, s{S_T0}, s{S_W}"); e(f"s_lshl_b32 s{S_T0}, s{S_T0}, 7")
            def m3():
                e(f"v_mov_b32 v{VZ}, s{S_T0}")
                e(f"v_mov_b32 v{T0}, 0x7fffffff")
                e(f"v_cmp_eq_u32 vcc, 0, v{V_L}")
                e(f"v_mov_b32 v{T2}, s{S_TAG}")
                e(f"v_add_u32 v{T3}, s{S_HI}, v{V_L}")
                e(f"v_cndmask_b32 v{VZ}, v{T0}, v{VZ}, vcc")
                e(f"v_and_b32 v{T3}, 7, v{T3}")
            def m4():
                e(f"s_and_b32 s{S_T0}, s2, 31"); e(f"s_lshl_b32 s{S_T0}, s{S_T0}, 3"); e(f"s_add_u32 s{S_T0}, s{S_T0}, s{S_W}"); e(f"s_lshl_b32 s{S_T0}, s{S_T0}, 7")
                e(f"v_lshl_add_u32 v{VPO}, v{T3}, 15, s{S_T0}")
            return [Act(m0, 36), Act(m1, 36), Act(m2, 36), Act(m3, 28), Act(m4, 20)]
        def base_cost(k):
            s = slots[k]
            return 8 + 4 * len(slots[min(N-1, k+LA)]["reads"]) + (2 if PAIRW else 4) + sum(4 * len(x[0]) for x in s["dma"]) + sum(cost(x) for x in s["fill"] + s["fill2"])
        def spread(ops, a, b, dead=None):
            tot = sum(cost(o) for o in ops)
            lo, hi = 0, 400
            def place(level, commit):
                i = 0
                for k in range(a, b):
                    c = base_cost(k)
                    while i < len(ops):
                        if c + cost(ops[i]) <= level:
                            c += cost(ops[i])
                            if commit: slots[k]["fill"].append(ops[i])
                            i += 1
                        else: break
                    if dead and any(oi >= i and sl <= k + 1 for oi, sl in dead): return False
                return i == len(ops)
            while lo < hi:
                mid = (lo + hi) // 2
                if place(mid, False): hi = mid
                else: lo = mid + 1
            assert place(lo, True)
            return lo
        for q in range(4):
            a, b = seg[("qk", q)]
            for sg in range(3):
                base = a + 8 * (sg + 1)
                mo = max_ops(q, sg)
                for i in range(4): slots[base + 4 + i]["fill"] += mo[2*i:2*i+2]
        lv = []
        X0 = opt.get("x0", 13)
        for q in range(1, 4):
            a, b = seg[("pv", q - 1)]
            mo = max_ops(q, 3)
            for i in range(4): slots[a + 3 + i]["fill"] += mo[2*i:2*i+2]
            slots[a + (X0 if q == 1 else 7)]["fill2"].append(check1(q))
        for q in (1, 2):
            slots[seg[("qk", q + 1)][0]]["fill"].append(check2())
        def qconv(t):
            ops = []
            for i in range(0, 16, 2):
                r = Oacc + 16 * t + i
                ops.append(f"v_pk_mul_f32 v[{r}:{r+1}], v[{r}:{r+1}], v[{T1}:{T1+1}] op_sel_hi:[1,0]") if t < 2 else ops.extend([f"v_mul_f32 v{r}, v{r}, v{T1}", f"v_mul_f32 v{r+1}, v{r+1}, v{T1}"])
            ops += [f"v_cvt_pk_bf16_f32 v{Oacc+16*t+i}, v{Oacc+16*t+2*i}, v{Oacc+16*t+2*i+1}" for i in range(8)]
            ops += [f"v_accvgpr_write_b32 a{AQ+8*t+i}, v{Oacc+16*t+i}" for i in range(8)]
            return ops
        a, b = seg[("qk", 0)]
        lv.append(spread(qconv(2) + qconv(3), a, a + 6, dead=[(31, a + 4), (63, a + 6)]))
        a, b = seg[("pv", 2)]
        for i, act in enumerate(misc_acts()):
            slots[a + 18 + 3 * i]["fill"].append(act)
        a, b = seg[("qk", 1)]
        f0 = [frag_ops(0, f) for f in range(8)]
        lv.append(spread([o for x in f0 for o in x], a, b + X0 + 1, dead=[(sum(len(x) for x in f0[:f+1]) - 1, b + 4 * f) for f in range(4)]))
        for q in (1, 2):
            lv.append(spread([o for f in range(8) for o in frag_ops(q, f)], seg[("pv", q-1)][0] + (X0 + 1 if q == 1 else 8), seg[("qk", q+1)][1]))
        a3 = seg[("pv", 3)][0]
        lv.append(spread([o for f in range(8) for o in frag_ops(3, f)], seg[("pv", 2)][0] + 8, a3 + opt.get("x3", 16),
                         dead=[(20 * f + 19, a3 + 4 * f) for f in range(4)]))
        a7 = unit_first[("v", 7)]
        def store_t(t):
            def f():
                d = QF + 8 * t
                l1, l2 = newlab("o"), newlab("o")
                so = f"s{S_SO}" if t >= 2 else "0"
                e(f"s_cmp_eq_u32 s{S_FAST}, 0")
                e(f"s_cbranch_scc1 {l1}")
                for z in range(2):
                    e(f"buffer_store_dwordx4 {vr(d+4*z,4)}, v{VL16}, s[{SO}:{SO+3}], {so} offen offset:{((2*t+z)&3)*1024}{opt.get('osflag', '')}")
                e(f"s_branch {l2}")
                e.label(l1)
                for z in range(2):
                    e(f"buffer_store_dwordx4 {vr(d+4*z,4)}, v{VL16}, s[{SO}:{SO+3}], {so} offen offset:{((2*t+z)&3)*1024} sc1")
                e.label(l2)
                vm_add("Ost"); vm_add("Ost")
            return Act(f, 20)
        def pack_ops(t, pk=False):
            ops = []
            if pk:
                for i in range(0, 16, 2):
                    r = Oacc + 16 * t + i
                    ops.append(f"v_pk_mul_f32 v[{r}:{r+1}], v[{r}:{r+1}], v[{T1}:{T1+1}] op_sel_hi:[1,0]")
            else:
                ops += [f"v_mul_f32 v{Oacc+16*t+i}, v{Oacc+16*t+i}, v{T1}" for i in range(16)]
            d = QF + 8 * t
            for u in range(2):
                b = Oacc + 16 * t + 4 * u
                ops += [f"v_cvt_pk_bf16_f32 v{d+4*u}, v{b}, v{b+1}", f"v_cvt_pk_bf16_f32 v{d+4*u+1}, v{b+2}, v{b+3}",
                        f"v_cvt_pk_bf16_f32 v{d+4*u+2}, v{b+8}, v{b+9}", f"v_cvt_pk_bf16_f32 v{d+4*u+3}, v{b+10}, v{b+11}"]
            ops += [f"v_permlane16_swap_b32 v{d+i}, v{d+4+i}" for i in range(4)]
            ops.append(store_t(t))
            return ops
        slots[a7 + 0]["fill"] += [f"v_add_f32 v{LS}, v{LS}, v{LS+1}", f"v_add_f32 v{LS+2}, v{LS+2}, v{LS+3}", f"s_movk_i32 s{S_SO}, 4096"]
        slots[a7 + 1]["fill"] += [f"v_add_f32 v{LS}, v{LS}, v{LS+2}", f"v_mov_b32 v{T1}, v{LS}"]
        slots[a7 + 2]["fill"] += [f"v_permlane32_swap_b32 v{T1}, v{LS}", f"v_add_f32 v{T1}, v{T1}, v{LS}"]
        slots[a7 + 3]["fill"] += [f"v_rcp_f32 v{T1}, v{T1}"]
        p0, p1, p2 = pack_ops(0), pack_ops(1), pack_ops(2)
        PK0 = opt.get("pk0", 6)
        for i in range(4): slots[a7 + PK0 + i]["fill"] += p0[i*29//4:(i+1)*29//4]
        for i in range(4): slots[a7 + PK0 + 4 + i]["fill"] += p1[i*29//4:(i+1)*29//4]
        n2 = 16 - (PK0 + 8)
        for i in range(n2): slots[a7 + PK0 + 8 + i]["fill"] += p2[i*8:(i+1)*8]
        epi_rest = p2[n2*8:] + pack_ops(3, True)
        EARLY = opt.get("early", 0) and not STOP
        S_PM, S_EARLY = 34, 61
        assert not EARLY
        OB = [None, 64, 96, 128, 0, 32, 160, 192]
        def o_ops(h):
            out = []
            pre = [f"s_add_u32 s100, s{S_HI}, {h}", "s_and_b32 s100, s100, 7", f"s_lshl_b32 s{S_T0}, s100, 15", f"s_add_u32 s{S_T1}, s{S_T0}, 4096"]
            for f in range(8):
                so = S_T0 if f < 4 else S_T1
                out.append((pre if f == 0 else []) + [f"buffer_load_dwordx4 {ar(OB[h]+4*f,4)}, v{VL16}, s[{SOG}:{SOG+3}], s{so} offen offset:{(f&3)*1024}{opt.get('olflag', ' sc1')}"])
            return out
        def early_take():
            wait_vm(["poll0"])
            l1 = newlab("e")
            e(f"v_cmp_eq_u32 vcc, v{T2}, v{T3}")
            e(f"s_mov_b32 s{S_PM}, vcc_lo")
            e(f"s_and_b32 s100, s{S_PM}, 14")
            e("s_cmp_eq_u32 s100, 14")
            e(f"s_cselect_b32 s{S_EARLY}, 1, 0")
            e(f"s_cbranch_scc0 {l1}")
            for gg in o_ops(1) + o_ops(2)[:4]:
                for s_ in gg: e(s_)
            e.label(l1)
        if EARLY:
            slots[a7 + opt.get("et", 9)]["fill"].insert(0, Act(early_take, 40))
        sys.stderr.write(f"filler levels {lv}\n")
        def gap_q_post():
            e(f"v_mov_b32 v{T1}, s{S_C}")
            e(f"v_accvgpr_read_b32 v{VWO[3]}, a{AWO}")
            e(f"s_mov_b32 s{S_RS}, 0")
            for i in range(4): e(f"v_mov_b32 v{52+i}, -1")
            for o in qconv(0) + qconv(1): e(o)
        def gap0_pre():
            for o in max_ops(0, 3): e(o)
            e(f"v_mov_b32 v{T0}, v{VM}")
            e(f"v_permlane32_swap_b32 v{T0}, v{VM}")
            e(f"v_max_f32 v{VM}, v{T0}, v{VM}")
            for i in range(16): e(f"v_sub_f32 v{NEGM+i}, 0, v{VM}")
        def gap3_pre():
            check2().fn()
        nop = lambda: None
        gaps = {seg[("qk", 0)][0]: (nop, gap_q_post, True),
                seg[("qk", 1)][0]: (gap0_pre, nop, False),
                seg[("pv", 3)][0]: (gap3_pre, nop, False)}
        def enter_unit(u):
            if u[0] == "s":
                j = u[1]
                wait_vm([("x", j), ("w", j)])
                e("s_barrier")
                if j == 9:
                    e(f"v_add_u32 v{VDB}, 1, v{VDB}")
                    e(f"v_cmp_eq_u32 vcc, 0, v{VDB}")
                    e(f"s_mov_b32 s100, {NONCE_OFF}")
                    e(f"v_cndmask_b32 v{VDB}, v{VDB}, 1, vcc")
                    e(f"buffer_store_dword v{VDB}, v{VZ}, s[{SD}:{SD+3}], 0 offen sc1"); vm_add("nst")
                    e(f"buffer_store_dword v{VDB}, v{VZ}, s[{SF}:{SF+3}], s100 offen sc1"); vm_add("nst")
                e(f"v_add_u32 v{RA}, {slot_of[('w',j)]*16384}, v{VBW}")
                e(f"v_add_u32 v{RA+4}, {slot_of[('x',j)]*16384}, v{VAX}")
                for t in range(1, 4):
                    e(f"v_xor_b32 v{RA+t}, {t<<6}, v{RA}")
                    e(f"v_xor_b32 v{RA+4+t}, {t<<5}, v{RA+4}")
            else:
                if not opt.get("nomem", 0) or u in kvt[:4]: wait_vm([u])
                if opt.get("nomem", 0) < 2: e("s_barrier")
                if u == kvt[4]:
                    e(f"buffer_load_dword v{T3}, off, s[{SD}:{SD+3}], 0 sc1"); vm_add("nld")
                if u == kvt[7]:
                    l1, l2 = newlab("nc"), newlab("nc")
                    e("s_mov_b32 s101, 0")
                    e.label(l1)
                    e(f"v_readfirstlane_b32 s{S_TAG}, v{T3}")
                    e("s_add_u32 s101, s101, 1")
                    e(f"s_cmp_lg_u32 s{S_TAG}, 0")
                    e(f"s_cbranch_scc1 {l2}")
                    e(f"s_cmp_ge_u32 s101, {SPIN}")
                    e(f"s_cbranch_scc1 {l2}")
                    e("s_sleep 8")
                    e(f"buffer_load_dword v{T3}, off, s[{SD}:{SD+3}], 0 sc1")
                    e("s_waitcnt vmcnt(0)")
                    e(f"s_branch {l1}")
                    e.label(l2)
                    e("s_getreg_b32 s100, hwreg(HW_REG_XCC_ID)")
                    e("s_and_b32 s100, s100, 15")
                    e(f"s_lshl_b32 s101, s{S_TAG}, 4")
                    e("s_or_b32 s100, s100, s101")
                    e(f"v_mov_b32 v{VDB}, s100")
                    e("s_lshl_b32 s100, s2, 10")
                    e(f"buffer_store_dword v{VDB}, off, s[{SF}:{SF+3}], s100 offset:512 sc1"); vm_add("xst")
                if u == kvt[11]:
                    e(f"buffer_load_dword v{T3}, v{VPO}, s[{SF}:{SF+3}], 0 offen offset:512 sc1"); vm_add("dbgld")
                if u == kvt[15] and EARLY:
                    e(f"buffer_load_dword v{T3}, v{VPO}, s[{SF}:{SF+3}], 0 offen sc1"); vm_add("poll0")
                so = slot_of[u] * 16384
                if u[0] == "k":
                    e(f"v_add_u32 v{RA}, {so}, v{VAK}")
                    for m in range(1, 8): e(f"v_xor_b32 v{RA+m}, {m<<5}, v{RA}")
                else:
                    e(f"v_add_u32 v{RA}, {so}, v{VBW}")
                    for t in range(1, 4): e(f"v_xor_b32 v{RA+t}, {t<<6}, v{RA}")
        st = dict(rd=0, cur=None, waited=-1)
        lg = []
        def issue_reads(upto):
            while st["rd"] <= upto and st["rd"] < N:
                s = slots[st["rd"]]
                if s["unit"] != st["cur"]:
                    st["cur"] = s["unit"]
                    enter_unit(st["cur"])
                    if diag == 2 and st["cur"][0] == "s": stamp()
                for r in s["reads"]:
                    e(r); lg.append(st["rd"])
                st["rd"] += 1
        def limit(k):
            c = [g for g in gaps if g > k and gaps[g][2]]
            return (min(c) if c else N) - 1
        segstarts = {v[0] for v in seg.values()}
        for k in range(N):
            s = slots[k]
            if k in segstarts and diag not in (3, 4, 5, 6): stamp()
            if k in gaps:
                gaps[k][0]()
                issue_reads(k + LA - 1)
                gaps[k][1]()
            elif k == 0:
                issue_reads(LA - 1)
                stamp()
            if s["reads"] and k > st["waited"]:
                kk = k
                if PAIRW and k + 1 < st["rd"] and slots[k+1]["reads"] and (k + 1) not in gaps: kk = k + 1
                idx = max(i for i, t in enumerate(lg) if t == kk)
                n_after = len(lg) - 1 - idx
                e(f"s_waitcnt lgkmcnt({min(15, n_after)})")
                st["waited"] = kk
            e(s["mf"])
            for p in s["post"]:
                if p == "barrier2": e("s_barrier")
            issue_reads(min(k + LA, limit(k)))
            for gg, tg in s["dma"]:
                if opt.get("now", 0) and (tg == "pf" or (isinstance(tg, tuple) and tg[0] == "W")): gg = []
                if opt.get("nomem", 0) and s["unit"][0] != "s": gg = []
                for s_ in gg: e(s_)
                if tg is None: lg.append(-1)
                else: vm_add(tg)
            for f in s["fill"] + s["fill2"]:
                if isinstance(f, str): e(f)
                else: f.fn()
        stamp()
        for f in epi_rest:
            if isinstance(f, str): e(f)
            else: f.fn()
        if not STOP:
            assert vmbox[0][-1] == "Ost"
            wait_vm([("W", gi) for gi in range(4)])
        return dict(OB=OB, S_PM=S_PM)
    def flag_raw():
        l1, l2 = newlab("f"), newlab("f")
        e(f"s_cmp_eq_u32 s{S_FAST}, 0")
        e(f"s_cbranch_scc1 {l1}")
        e(f"buffer_store_dword v{T2}, v{VZ}, s[{SF}:{SF+3}], 0 offen")
        e(f"s_branch {l2}")
        e.label(l1)
        e(f"buffer_store_dword v{T2}, v{VZ}, s[{SF}:{SF+3}], 0 offen sc1")
        e.label(l2)
    vm0 = list(vmbox[0]); st0 = nstamp[0]
    if ROLES:
        e(f"s_cmp_eq_u32 s{S_ROLE}, 0")
        e("s_cbranch_scc1 L_roleA")
        vmbox[0] = vmB_pre + vm0
        X = attention("B")
        e("s_branch L_tail")
        e.label("L_roleA")
        vmbox[0] = list(vm0); nstamp[0] = st0
        X = attention("A")
        e.label("L_tail")
    else:
        X = attention("AB")
    vmbox[0] = ["Ost"]
    OB, S_PM = X["OB"], X["S_PM"]
    stamp()
    if not STOP:
        tail(e, opt, locals())
    if diag:
        e("s_waitcnt vmcnt(0)")
        stamp()
        e("s_memrealtime s[100:101]")
        e("s_waitcnt lgkmcnt(0)")
        e(f"s_mov_b32 s29, {WS_DIAG}")
        srd(e, 8, 78, 79, 29, 1 << 20)
        e("s_lshl_b32 s29, s2, 2"); e("s_add_u32 s29, s29, s3"); e("s_lshl_b32 s29, s29, 7")
        e("v_mov_b32 v1, s29")
        vals = [f"s{40+k}" for k in range(nstamp[0])] + ["0"] * (24 - nstamp[0])
        if diag == 5:
            vals = vals[:14] + ["s54", "s55", "s56", "s57"] + vals[18:]
        vals = vals + ["s94", "s95", "s100", "s101"]
        e("s_getreg_b32 s30, hwreg(HW_REG_XCC_ID)")
        vals += ["s30", "s62", f"s{S_FAST}", "s37" if not SPEC else "s60"]
        for q in range(8):
            for i in range(4): e(f"v_mov_b32 v{4+i}, {vals[4*q+i]}")
            e(f"buffer_store_dwordx4 v[4:7], v1, s[8:11], 0 offen offset:{16*q}")
    e("s_endpgm")
    for blk in rare: blk()
    e.label("L_done")
    e("s_endpgm")
    if TICK:
        for t in range(2):
            kernel_header(e, f"tick{t}_kernel")
            e("s_memrealtime s[4:5]")
            e("s_load_dwordx2 s[6:7], s[0:1], 56")
            e("s_waitcnt lgkmcnt(0)")
            e(f"s_mov_b32 s12, {WS_DIAG + 0x80000 + 64 * t}")
            srd(e, 8, 6, 7, 12, 64)
            if t == 0:
                for i in range(40): e("s_sleep 127")
                e("s_memrealtime s[4:5]"); e("s_waitcnt lgkmcnt(0)")
            e("v_mov_b32 v2, s4"); e("v_mov_b32 v3, s5")
            e("buffer_store_dwordx2 v[2:3], off, s[8:11], 0")
            e("s_endpgm")
    e.raw('.section .rodata,"a"')
    kernel_desc(e, kname, 512, 256)
    if TICK:
        for t in range(2): kernel_desc(e, f"tick{t}_kernel", 32, 32)
    sys.stderr.write(f"nops inserted: {e.nnop}, instrs: {sum(1 for x in e.L if x[0])}\n")
    return e.text()

def tail(e, opt, g):
    S_W, S_B, S_HG, S_HI, S_T0, S_T1, S_SO, S_FAST, S_PO = [g[k] for k in "S_W S_B S_HG S_HI S_T0 S_T1 S_SO S_FAST S_PO".split()]
    SOG, SF, SP, QF, V_L, VL16, VPO, VZ, T0, T1, T2, T3 = [g[k] for k in "SOG SF SP QF V_L VL16 VPO VZ T0 T1 T2 T3".split()]
    vm_add, wait_vm, emit_group, newlab, stamp, OB, S_PM, flag_raw = [g[k] for k in "vm_add wait_vm emit_group newlab stamp OB S_PM flag_raw".split()]
    S_TAG, SWO, VWO, WOF = g["S_TAG"], g["SWO"], g["VWO"], g["WOF"]
    LA = opt.get("LA4", 6); R = LA + 2
    ACC = 128; FR = 168; VB = 12
    e(f"v_lshrrev_b32 v{T1}, 2, v{V_L}")
    e(f"v_mul_u32_u24 v{T1}, 160, v{T1}")
    e(f"v_and_b32 v{T0}, 3, v{V_L}")
    e(f"v_lshl_add_u32 v{VB}, v{T0}, 3, v{T1}")
    e(f"v_add_u32 v{VB+1}, {12*5120}, v{VB}")
    e(f"v_add_u32 v{VB+2}, {24*5120}, v{VB}")
    SPEC = g["SPEC"]; rare = g["rare"]
    def odst(h, f):
        return vr(64 + 32 * (h - 1) + 4 * f, 4) if (SPEC and h <= 2) else ar(OB[h] + 4 * f, 4)
    slots = []
    WF = opt.get("wf", 1)
    order4 = [(c, tn) for c in range(24 if WF else 32) for tn in range(5)]
    if WF: order4 += [(c, tn) for tn in range(5) for c in range(24, 32)]
    for c, tn in order4:
        k = len(slots); fb = FR + 4 * (k % R)
        base = VB + c // 12; off = (c % 12) * 5120 + tn * 32
        rd = [f"ds_read_b64_tr_b16 {vr(fb,2)}, v{base} offset:{off}", f"ds_read_b64_tr_b16 {vr(fb+2,2)}, v{base} offset:{off+2560}"]
        mf = []
        for z in range(2):
            d = ACC + 4 * (z * 5 + tn)
            cc = "0" if c == 0 else vr(d, 4)
            b = vr(QF + 8 * c + 4 * z, 4) if c < 4 else odst(c // 4, (c & 3) * 2 + z)
            mf.append(f"v_mfma_f32_16x16x32_bf16 {vr(d,4)}, {vr(fb,4)}, {b}, {cc}")
        slots.append(dict(unit=min(c // 4, 6), reads=rd, mf=mf, gap=[[], []], c=c, tn=tn))
    N = len(slots)
    def put(gi, fn):
        slots[gi // 2]["gap"][gi & 1].append(fn if callable(fn) else (lambda s_=fn: e(s_)))
    def put_free(ops, g0):
        gi = g0
        for o in ops:
            while slots[gi // 2]["gap"][gi & 1] or (gi & 1 == 1 and (gi // 2) % 2 == 1): gi += 1
            put(gi, o); gi += 1
        return gi
    def check_flag(h):
        l1, l2 = newlab("p"), newlab("p")
        e(f"s_bitcmp1_b32 s{S_PM}, {h}")
        e(f"s_cbranch_scc1 {l2}")
        e("s_mov_b32 s38, 0")
        e.label(l1)
        e(f"buffer_load_dword v{T3}, v{VPO}, s[{SF}:{SF+3}], 0 offen sc1")
        e("s_add_u32 s38, s38, 1")
        e("s_waitcnt vmcnt(0)")
        e(f"v_cmp_eq_u32 vcc, v{T2}, v{T3}")
        e(f"s_mov_b32 s{S_PM}, vcc_lo")
        e(f"s_cmp_ge_u32 s38, {SPIN}")
        e(f"s_cbranch_scc1 {l2}")
        e(f"s_bitcmp1_b32 s{S_PM}, {h}")
        e(f"s_cbranch_scc0 {l1}")
        e.label(l2)
    ROLES, S_ROLE = g["ROLES"], g["S_ROLE"]
    def flag_store():
        wait_vm(["Ost"])
        flag_raw(); vm_add("flag")
        stamp()
    e("s_barrier")
    FS = opt.get("fs", 6); PS = opt.get("ps", 14)
    SOFF = list(range(64, 74)) + [76, 77, 39, 31]
    pre = [f"s_mul_i32 s8, s{S_W}, 5120", f"s_lshl_b32 s100, s{S_HI}, 2", f"s_add_u32 s100, s100, s{S_W}", f"s_add_u32 s8, s8, {16*5120}"]
    for gi in range(4):
        pre += [f"s_add_u32 s101, s100, {16+4*gi}", "s_and_b32 s101, s101, 31", f"s_mul_i32 s{16+gi}, s101, {32*1280}"]
    for s_ in pre[:7]: e(s_)
    rest = pre[7:]
    for h in range(1, 8):
        rest += [f"s_add_u32 s101, s{S_HI}, {h}", "s_and_b32 s101, s101, 7", f"s_lshl_b32 s{SOFF[2*(h-1)]}, s101, 15", f"s_add_u32 s{SOFF[2*(h-1)+1]}, s{SOFF[2*(h-1)]}, 4096"]
    put(2 * FS + 1, flag_store)
    def wload(gi, ee):
        def f():
            if opt.get("now", 0):
                vm_add(("W", gi)); return
            e(f"s_add_u32 m0, s8, {(gi-4)*20480 + (4096 if ee == 4 else 0)}")
            e(f"buffer_load_dwordx4 v{VWO[ee]}, s[{SWO}:{SWO+3}], s{16+gi-4} offen offset:{1024*ee if ee < 4 else 0}{WOF} lds"); vm_add(("W", gi))
        return f
    def oload(h, f):
        def fn():
            e(f"buffer_load_dwordx4 {odst(h, f)}, v{VL16}, s[{SOG}:{SOG+3}], s{SOFF[2*(h-1)+(f>>2)]} offen offset:{(f&3)*1024}{opt.get('olflag', ' sc1')}"); vm_add(("O", h, f // 2))
        return fn
    wl = [(gi, ee) for gi in range(6, 8) for ee in range(5)]
    def poll_issue():
        e(f"buffer_load_dword v{T3}, v{VPO}, s[{SF}:{SF+3}], 0 offen sc1"); vm_add("poll")
    def poll_use():
        wait_vm(["poll"])
        e(f"v_cmp_eq_u32 vcc, v{T2}, v{T3}")
        e(f"s_mov_b32 s{S_PM}, vcc_lo")
    rest = rest[9:17] + rest[:9] + rest[17:]
    for i, o in enumerate(rest): put(i // 2 if i // 2 < 2 * FS + 1 else i // 2 + 1, o)
    if SPEC:
        SI = opt.get("si", 9)
        for i in range(16): put(2 * SI + i, oload(1 + i // 8, i % 8))
        def spec_check(h):
            def f():
                lr, lb = newlab("sr"), newlab("sb")
                wait_vm([("O", h, 3)])
                b = 64 + 32 * (h - 1)
                e(f"v_max3_u32 v{T0}, v{b}, v{b+4}, v{b+8}")
                e(f"v_max3_u32 v{T1}, v{b+12}, v{b+16}, v{b+20}")
                e(f"v_max3_u32 v{T0}, v{T0}, v{b+24}, v{b+28}")
                e(f"v_max_u32 v{T0}, v{T0}, v{T1}")
                e(f"v_cmp_eq_u32 vcc, -1, v{T0}")
                e(f"s_cmp_eq_u32 s{S_FAST}, 0")
                e(f"s_cbranch_scc1 {lr}")
                e("s_cmp_lg_u64 vcc, 0")
                e(f"s_cbranch_scc1 {lr}")
                e.label(lb)
                def blk():
                    e.label(lr)
                    e("s_waitcnt vmcnt(0)")
                    e(f"s_mov_b32 s{S_PM}, 0")
                    if opt.get("diag", 0): e(f"s_add_u32 s60, s60, 1")
                    check_flag(h)
                    for ff in range(8):
                        e(f"buffer_load_dwordx4 {odst(h, ff)}, v{VL16}, s[{SOG}:{SOG+3}], s{SOFF[2*(h-1)+(ff>>2)]} offen offset:{(ff&3)*1024} sc1")
                    e("s_waitcnt vmcnt(0)")
                    e(f"s_branch {lb}")
                rare.append(blk)
            return f
        pre_slot = {20: spec_check(1), 40: spec_check(2)}
        put(2 * PS, poll_issue)
        PU = opt.get("pu", 24)
        put(2 * PU, poll_use)
        seq = []
        o4 = opt.get("o4", 2 * PU + 4)
        wfirst = opt.get("wfirst", 5)
        for i in range(wfirst): put(2 * (PS + 1 + i) + 1, wload(*wl.pop(0)))
    else:
        nw0 = opt.get("nw0", 5); nw1 = opt.get("nw1", 5)
        for i in range(nw0): put(2 * (FS + 1 + i) + 1, wload(*wl.pop(0)))
        put(2 * PS, poll_issue)
        for i in range(nw1): put(2 * (PS + i) + 1, wload(*wl.pop(0)))
        def poll_take():
            poll_use()
            check_flag(1)
            for f in range(8): oload(1, f)()
            check_flag(2)
            for f in range(4): oload(2, f)()
            stamp()
        pre_slot = {20: poll_take}
        seq = [("o", 2, f) for f in range(4, 8)]
        o4 = opt.get("o4", 42)
    osp = opt.get("osp", 42)
    wafter = str(opt.get("wafter", "34"))
    for h in range(3, 8):
        seq += [("o", h, f) for f in range(8)]
        for ch in wafter:
            if int(ch) == h:
                for i in range(5):
                    if wl: seq.append(("w",) + wl.pop(0))
    assert not wl
    pos = o4 * 10
    for it in seq:
        gi = (pos // 10) & ~1
        if it[0] == "o":
            if it[2] == 0: put(gi - 2, lambda h=it[1]: check_flag(h))
            put(gi, oload(it[1], it[2])); pos += osp
        else:
            put(gi, wload(it[1], it[2])); pos += opt.get("wsp10", 60)
    lg = []; st = dict(rd=0, cur=-1, waited=-1)
    SOUT = 8
    HR = opt.get("hr", 15); UR = opt.get("ur", 8)
    xs = [f"s_lshl_b32 s100, s{S_B}, 2", f"s_add_u32 s100, s100, s{S_HG}", f"s_mul_i32 s100, s100, {32*1280}",
          f"s_mul_i32 s101, s{S_HI}, 160", "s_add_u32 s100, s100, s101", f"s_sub_u32 s101, {1024*1280}, s100",
          f"v_and_b32 v2, 15, v{V_L}", "v_mul_u32_u24 v2, 1280, v2", f"v_lshrrev_b32 v3, 4, v{V_L}", "v_lshl_add_u32 v2, v3, 3, v2",
          "v_mov_b32 v5, 0xfffcfffc", f"s_add_u32 s{S_T0}, s{S_PO}, 4096",
          "s_mov_b32 s36, 0x00020002", "s_mov_b32 s37, 0", "s_mov_b32 s26, 0", f"s_lshl_b32 s27, s{S_W}, 10", f"v_add_u32 v3, s27, v{VL16}"]
    gend = put_free(xs, 44)
    xs2 = [[f"s_add_u32 s{SOUT}, s74, s100", f"s_addc_u32 s{SOUT+1}, s75, 0"], f"s_mov_b32 s{SOUT+2}, s101", f"s_mov_b32 s{SOUT+3}, 0x20000"]
    xs2 += [f"s_bfe_u32 s{80+j}, s{S_TAG}, {0x20000 + 2*j}" for j in range(4)]
    for i in range(1, 4):
        xs2 += [f"s_add_u32 s100, s{S_HG}, {i}", "s_and_b32 s100, s100, 3", "s_lshl_b32 s100, s100, 2", f"s_add_u32 s100, s100, s{S_HG}",
                "s_mul_i32 s100, s100, 5120", f"s_add_u32 s{12+i}, s100, s27", f"s_add_u32 s{16+i}, s100, 4096"]
    xs2 += [f"s_lshl_b32 s12, s{S_W}, 5", f"s_add_u32 s16, s12, {16*1280}", f"s_movk_i32 s20, {16*1280}"]
    xs2 = [(lambda x=x: [e(s_) for s_ in x]) if isinstance(x, list) else x for x in xs2]
    gw = max([2 * k + hh for k in range(N) for hh in range(2) if any(getattr(f, "__name__", "") == "f" for f in slots[k]["gap"][hh])])
    gend2 = put_free(xs2, max(gend, gw + 1))
    assert gend2 <= 2 * 118, (gend, gend2)
    def scale_ops():
        ops = ["s_lshr_b32 s71, s71, 23", "s_max_u32 s71, s71, 1", "s_min_u32 s71, s71, 239",
               "s_sub_u32 s64, 254, s71", "s_lshl_b32 s64, s64, 23", f"s_add_u32 s65, s71, {HR}", "s_lshl_b32 s65, s65, 23",
               f"s_sub_i32 s66, s71, {UR}", "s_max_i32 s66, s66, 0", "s_lshl_b32 s66, s66, 23"]
        for j in range(4):
            ops += [f"s_bfe_u32 s72, s71, {0x20000 + 2*j}", "s_lshl_b32 s72, s72, 16", f"s_or_b32 s{67+j}, s72, s{80+j}"]
        return ops
    def amax_ops(tn, dst):
        a, b = ACC + 4 * tn, ACC + 20 + 4 * tn
        return [f"v_max3_f32 v{dst}, |v{a}|, |v{a+1}|, |v{a+2}|", f"v_max3_f32 v{dst}, v{dst}, |v{a+3}|, |v{b}|",
                f"v_max3_f32 v{dst}, v{dst}, |v{b+1}|, |v{b+2}|", f"v_max_f32_e64 v{dst}, v{dst}, |v{b+3}|"]
    assert WF
    so = amax_ops(1, T0) + [f"v_readlane_b32 s71, v{T0}, 0", f"v_readlane_b32 s72, v{T0}, 21", f"v_readlane_b32 s73, v{T0}, 42", f"v_readlane_b32 s100, v{T0}, 63",
                            "s_max_u32 s71, s71, s72", "s_max_u32 s73, s73, s100", "s_max_u32 s71, s71, s73"] + scale_ops()
    for i, o in enumerate(so): put(2 * 120 + 1 + i * 16 // len(so), o)
    def send(tn):
        lown, ljoin, lr, lb = newlab("x"), newlab("x"), newlab("xr"), newlab("xb")
        d = 200 + 4 * tn
        e(f"s_cmp_eq_u32 s{S_W}, s{S_HG}")
        e(f"s_cbranch_scc1 {lown}")
        for o in amax_ops(tn, T0): e(o)
        e(f"v_cmp_le_f32 vcc, s65, v{T0}")
        e(f"v_cmp_le_f32 s[72:73], s66, v{T0}")
        e("s_cmp_lg_u64 vcc, 0")
        e(f"s_cbranch_scc1 {lr}")
        e("s_cmp_eq_u64 s[72:73], 0")
        e(f"s_cbranch_scc1 {lr}")
        e.label(lb)
        vals = [ACC + 4 * tn + i for i in range(4)] + [ACC + 20 + 4 * tn + i for i in range(4)]
        for j in range(4): e(f"v_fma_mixlo_f16 v{d+j}, v{vals[2*j]}, s64, 0")
        for j in range(4): e(f"v_fma_mixhi_f16 v{d+j}, v{vals[2*j+1]}, s64, 0")
        for j in range(4): e(f"v_and_or_b32 v{d+j}, v{d+j}, v5, s{67+j}")
        e(f"buffer_store_dwordx4 {vr(d,4)}, v{VL16}, s[{SP}:{SP+3}], s{S_PO if tn < 4 else S_T0} offen offset:{(tn&3)*1024}{opt.get('psflag', ' sc1')}")
        e(f"s_branch {ljoin}")
        e.label(lown)
        e("s_nop 7")
        for tau in (tn, 5 + tn):
            e(f"ds_write_b128 v{VL16}, {vr(ACC+4*tau,4)} offset:{tau*1024}")
        e.label(ljoin)
        def blk():
            e.label(lr)
            e(f"v_mov_b32 v{T1}, v{T0}"); e("s_nop 1"); e(f"v_permlane32_swap_b32 v{T1}, v{T0}"); e(f"v_max_f32 v{T0}, v{T0}, v{T1}")
            e(f"v_mov_b32 v{T1}, v{T0}"); e("s_nop 1"); e(f"v_permlane16_swap_b32 v{T1}, v{T0}"); e(f"v_max_f32 v{T0}, v{T0}, v{T1}")
            for r in (8, 4, 2, 1):
                e(f"v_max_f32_dpp v{T0}, v{T0}, v{T0} row_ror:{r} row_mask:0xf bank_mask:0xf")
            e(f"v_readfirstlane_b32 s71, v{T0}")
            for o in scale_ops(): e(o)
            e(f"s_branch {lb}")
        rare.append(blk)
    for tn in range(4):
        slots[120 + 8 * (tn + 1) + 1]["gap"][1].insert(0, lambda tn=tn: send(tn))
    def issue_reads(upto):
        while st["rd"] <= upto and st["rd"] < N:
            s = slots[st["rd"]]
            if s["unit"] != st["cur"]:
                st["cur"] = s["unit"]
                if st["cur"] == 4 and not opt.get("onebar", 0):
                    e("s_barrier")
                if st["cur"] == (4 if opt.get("onebar", 0) else 6):
                    wait_vm([("W", 6), ("W", 7)])
                    e("s_barrier")
            for r in s["reads"]:
                if pend is not None and r is s["reads"][1]: pend.append((r, st["rd"]))
                else:
                    e(r); lg.append(st["rd"])
            st["rd"] += 1
    pend = None
    issue_reads(LA - 1)
    for k in range(N):
        if k in pre_slot: pre_slot[k]()
        if slots[k]["tn"] == 0 and k >= (60 if SPEC else 20):
            wait_vm([("O", slots[k]["c"] // 4, slots[k]["c"] & 3)])
            if k % 20 == 0 and k <= 120 and (opt.get("diag", 0) == 3 or (opt.get("diag", 0) == 4 and k <= 60)): stamp()
        if k > st["waited"]:
            kk = k + 1 if (k + 1 < st["rd"]) else k
            idx = max(i for i, t in enumerate(lg) if t == kk)
            e(f"s_waitcnt lgkmcnt({min(15, len(lg)-1-idx)})")
            st["waited"] = kk
        e(slots[k]["mf"][0])
        pend = []
        issue_reads(k + LA)
        for fn in slots[k]["gap"][0]: fn()
        e(slots[k]["mf"][1])
        for r, t in pend:
            e(r); lg.append(t)
        for fn in slots[k]["gap"][1]: fn()
    stamp()
    send(4)
    stamp()
    l1, l2 = newlab("q"), newlab("q")
    e.label(l1)
    for i in range(3):
        ls = newlab("q")
        e(f"s_bitcmp1_b32 s26, {i}")
        e(f"s_cbranch_scc1 {ls}")
        e(f"buffer_load_dwordx4 {vr(32+8*i,4)}, v{VL16}, s[{SP}:{SP+3}], s{13+i} offen sc1")
        e(f"s_cmp_lg_u32 s{S_W}, s{S_HG}"); e(f"s_cbranch_scc1 {ls}")
        e(f"buffer_load_dwordx4 {vr(36+8*i,4)}, v{VL16}, s[{SP}:{SP+3}], s{17+i} offen sc1")
        e.label(ls)
    e("s_add_u32 s37, s37, 1")
    lfirst = newlab("q")
    e("s_cmp_lg_u32 s37, 1")
    e(f"s_cbranch_scc1 {lfirst}")
    e("s_waitcnt lgkmcnt(0)")
    e("s_barrier")
    e(f"ds_read_b128 v[64:67], v3")
    e(f"ds_read_b128 v[68:71], v3 offset:5120")
    e.label(lfirst)
    e("s_waitcnt vmcnt(0)")
    for i in range(3):
        ls, lt = newlab("q"), newlab("q")
        b = 32 + 8 * i
        e(f"s_bitcmp1_b32 s26, {i}")
        e(f"s_cbranch_scc1 {ls}")
        e(f"v_xor_b32 v4, s80, v{b}")
        for jj in range(1, 4): e(f"v_bitop3_b32 v4, v4, v{b+jj}, s{80+jj} bitop3:0xf6")
        e(f"s_cmp_lg_u32 s{S_W}, s{S_HG}"); e(f"s_cbranch_scc1 {lt}")
        for jj in range(4): e(f"v_bitop3_b32 v4, v4, v{b+4+jj}, s{80+jj} bitop3:0xf6")
        e.label(lt)
        e("v_and_b32 v4, 3, v4")
        e("v_cmp_ne_u32 vcc, 0, v4")
        e("s_cmp_lg_u64 vcc, 0")
        e(f"s_cbranch_scc1 {ls}")
        e(f"s_bitset1_b32 s26, {i}")
        e.label(ls)
    e("s_cmp_eq_u32 s26, 7")
    e(f"s_cbranch_scc1 {l2}")
    e(f"s_cmp_lt_u32 s37, {SPIN}")
    e(f"s_cbranch_scc1 {l1}")
    e.label(l2)
    stamp()
    def decode(off, acc, so0, so1, imm):
        for i in range(3):
            b = 32 + 8 * i + off
            for jj in range(4): e(f"v_readfirstlane_b32 s{64+4*i+jj}, v{b+jj}")
        for i in range(3):
            b = 32 + 8 * i + off
            for jj in range(4): e(f"v_and_or_b32 v{b+jj}, v{b+jj}, v5, s36")
            for jj in range(4): e(f"s_bfe_u32 s{64+4*i+jj}, s{64+4*i+jj}, 0x20010")
            e(f"s_lshl2_add_u32 s{64+4*i+2}, s{64+4*i+3}, s{64+4*i+2}")
            e(f"s_lshl2_add_u32 s{64+4*i+1}, s{64+4*i+2}, s{64+4*i+1}")
            e(f"s_lshl2_add_u32 s{64+4*i}, s{64+4*i+1}, s{64+4*i}")
            e(f"s_lshl_b32 s{64+4*i}, s{64+4*i}, 23")
        e("s_waitcnt lgkmcnt(0)")
        for i in range(3):
            b = 32 + 8 * i + off
            for v_ in range(8):
                e(f"v_fma_mix_f32 v{acc[v_]}, v{b+v_//2}, s{64+4*i}, v{acc[v_]} op_sel:[{v_&1},0,0] op_sel_hi:[1,0,0]")
        for z in range(2):
            e(f"v_cvt_pk_bf16_f32 v{80+off+2*z}, v{acc[4*z]}, v{acc[4*z+1]}")
            e(f"v_cvt_pk_bf16_f32 v{81+off+2*z}, v{acc[4*z+2]}, v{acc[4*z+3]}")
            e(f"buffer_store_dwordx2 {vr(80+off+2*z,2)}, v2, s[{SOUT}:{SOUT+3}], {[so0, so1][z]} offen offset:{imm}")
    ldone = newlab("r")
    decode(0, list(range(64, 72)), "s12", "s16", 0)
    e(f"s_cmp_lg_u32 s{S_W}, s{S_HG}"); e(f"s_cbranch_scc1 {ldone}")
    decode(4, [ACC + 16 + i for i in range(4)] + [ACC + 36 + i for i in range(4)], "0", "s20", 128)
    e.label(ldone)

if __name__ == "__main__":
    out = sys.argv[1]
    opt = {}
    for a in sys.argv[2:]:
        k, v = a.split("=")
        if k not in ("kmix", "wpl", "wsp", "wspa", "wspb", "wafter", "pfu", "pfa"):
            try: v = int(v)
            except:
                try: v = float(v)
                except: pass
        if k.endswith("flag"): v = (" " + v.replace("+", " ")) if v not in ("none", 0) else ""
        opt[k] = v
    open(out, "w").write(gen(opt))
```

```python
import sys, math
sys.path.insert(0, "gen")
from asmlib import *
NAME = "standalone__gqa_block_cached__near_ridge"
WS_O = 0
WS_P = 16 << 20
WS_F = 28 << 20
WS_DIAG = 32 << 20
SCALE = math.log2(math.e) / math.sqrt(128.0)
SPIN = 0x40000
NONCE_OFF = 256 * 1024

def cost(s):
    if not isinstance(s, str): return s.cost
    op = s.split()[0]
    if op in ("v_exp_f32", "v_rcp_f32"): return 8
    if op.startswith("v_mfma"): return 8
    return 4

class Act:
    def __init__(self, fn, cost): self.fn = fn; self.cost = cost

def gen(opt):
    e = Asm()
    kname = NAME + "_kernel"
    TICK = opt.get("tick", 0)
    if TICK:
        e.raw("; @launch kernel=tick0_kernel grid=(1,1,1) block=(64,1,1) lds=0")
        e.raw(f"; @launch kernel={kname} grid=(256,1,1) block=(256,1,1) lds=163840")
        e.raw("; @launch kernel=tick1_kernel grid=(1,1,1) block=(64,1,1) lds=0")
    else:
        e.raw("; @launch grid=(256,1,1) block=(256,1,1) lds=163840")
    e.raw('.amdgcn_target "amdgcn-amd-amdhsa--gfx950"')
    e.raw(".text")
    kernel_header(e, kname)
    LA = opt.get("LA", 6)
    D = opt.get("d", 3)
    KVF = opt.get("kvflag", " nt")
    XWF = opt.get("xwflag", "")
    WOF = opt.get("woflag", "")
    diag = opt.get("diag", 0)
    FORCE_SLOW = opt.get("slow", 0)
    STOP = opt.get("stop", 0)
    PAIRW = opt.get("pairw", 1)
    ROLES = opt.get("roles", 1)
    NST = opt.get("nst", 0) if ROLES else 0
    S_ROLE = 62
    AKV = 68
    lab = [0]
    def newlab(p):
        lab[0] += 1
        return f"L_{p}{lab[0]}"
    nstamp = [0]
    def stamp():
        if not diag or diag == 9: return
        k = nstamp[0]; nstamp[0] += 1
        assert k < 21
        e("s_memtime s[92:93]")
        e("s_waitcnt lgkmcnt(0)")
        e(f"s_mov_b32 s{40+k}, s92")
    S_W, S_B, S_HG, S_HI, S_H = 3, 4, 5, 6, 7
    SX, SW, SK, SV, SO = 8, 12, 16, 20, 24
    S_W4K, S_T0, S_T1, S_SO, S_C = 28, 29, 30, 31, 32
    S_PO, S_KT, S_FAST, S_SX, S_SW2 = 33, 34, 35, 36, 37
    S_WL, S_WG = 38, 39
    SWO, SOG, SF, SP = 80, 84, 88, 96
    SD = SOG
    VK, VV, VAX, VBW, VAK = 2, 6, 7, 8, 9
    VL16, VDB = 10, 11
    RA = 12
    VM, VMC, VAL = 20, 21, 22
    VWO = [0, 1, 23, 7, 29]
    V_L, T0, T1, T2, T3 = 24, 25, 26, 27, 28
    T4 = 29
    VZ, VPO = 30, 31
    S_TAG = 63
    QF = 32
    Oacc, Sreg = 64, 128
    VX, VW = 128, 132
    R = LA + 2
    AF = 0; XF = 4 * R; XR = 3
    ONES = 44; LACC = 48
    assert XF + 4 * XR <= ONES
    AWO = 64
    SPEC = opt.get('spec', 0)
    SO2 = 56
    assert not (SPEC and diag and diag != 9) or opt.get('fewstamps', 0)
    KOFF = opt.get('koff', 0)
    AQ = 32; NEGM = 32; LS = 48; S_RS = 61
    THR = opt.get('thr', 8.0)
    rare = []
    assert R == 8

    e("s_cmp_ge_u32 s2, 256")
    e("s_cbranch_scc1 L_done")
    if diag or opt.get("pad", 0): e("s_memrealtime s[94:95]")
    if diag: e("s_mov_b32 s60, 0")
    e("s_load_dwordx16 s[64:79], s[0:1], 0")
    if opt.get("pf", 1):
        e("s_getpc_b64 s[100:101]")
        e("s_and_b32 s100, s100, 0xffffff00")
        e("s_lshr_b32 s99, s2, 3")
        e("s_lshl_b32 s99, s99, 10")
        e("v_and_b32 v3, 63, v0")
        e("v_lshlrev_b32 v3, 4, v3")
        e("v_lshrrev_b32 v4, 6, v0")
        e("v_lshl_add_u32 v3, v4, 15, v3")
        e("v_add_u32 v3, s99, v3")
        e(f"v_min_u32 v3, (L_done-{kname}-16)&0xfffffff0, v3")
        e("v_mov_b32 v5, s101")
        e("v_add_co_u32 v4, vcc, s100, v3")
        e("v_addc_co_u32 v5, vcc, 0, v5, vcc")
        e("global_load_dwordx4 a[252:255], v[4:5], off")
    e("v_lshrrev_b32 v1, 6, v0")
    e(f"v_and_b32 v{V_L}, 63, v0")
    e(f"v_readfirstlane_b32 s{S_W}, v1")
    e("s_and_b32 s100, s2, 1")
    e("s_lshl_b32 s100, s100, 2")
    e("s_bfe_u32 s101, s2, 0x20003")
    e(f"s_add_u32 s{S_B}, s100, s101")
    e(f"s_bfe_u32 s{S_HG}, s2, 0x20001")
    e(f"s_lshr_b32 s{S_HI}, s2, 5")
    e(f"s_lshl_b32 s{S_H}, s{S_HG}, 3")
    e(f"s_add_u32 s{S_H}, s{S_H}, s{S_HI}")
    if opt.get("homo", 1): e(f"s_mov_b32 s{S_ROLE}, s101")
    else: e(f"s_add_u32 s{S_ROLE}, s101, s{S_HI}")
    e(f"s_and_b32 s{S_ROLE}, s{S_ROLE}, {1 if ROLES else 0}")
    e("s_lshl_b32 s100, s101, 2")
    e(f"s_lshr_b32 s{S_KT}, 0x8530, s100")
    e(f"s_and_b32 s{S_KT}, s{S_KT}, 15")
    e(f"s_add_u32 s{S_KT}, s{S_KT}, s{S_HI}")
    e(f"s_cmp_ge_u32 s{S_KT}, 10")
    e("s_cselect_b32 s100, 10, 0")
    e(f"s_sub_u32 s{S_KT}, s{S_KT}, s100")
    XPF = opt.get("xpf", 1) and ROLES
    NBL = opt.get("nbl", 3)
    if XPF and not opt.get("arot", 0): e(f"s_mov_b32 s{S_KT}, 0")
    e(f"s_lshl_b32 s{S_W4K}, s{S_W}, 12")
    e(f"v_lshrrev_b32 v{T0}, 4, v{V_L}")
    e(f"v_and_b32 v{T1}, 15, v{V_L}")
    e(f"v_lshrrev_b32 v{T2}, 3, v{V_L}")
    e(f"s_lshl_b32 s{S_T0}, s{S_W}, 5")
    e(f"v_add_u32 v{T2}, s{S_T0}, v{T2}")
    e(f"v_mul_u32_u24 v{T2}, 1280, v{T2}")
    e(f"v_and_b32 v{T3}, 7, v{V_L}")
    e(f"v_xor_b32 v{T4}, v{T0}, v{T3}")
    e(f"v_lshl_add_u32 v{VX}, v{T4}, 4, v{T2}")
    e(f"v_add_u32 v{VX+2}, {2*9216}, v{VX}")
    e(f"v_xor_b32 v{T4}, 64, v{VX}")
    e(f"v_add_u32 v{VX+1}, 9216, v{T4}")
    e(f"v_add_u32 v{VX+3}, {3*9216}, v{T4}")
    e(f"v_lshlrev_b32 v{T2}, 2, v{T0}")
    e(f"v_xor_b32 v{T2}, v{T2}, v{T1}")
    e(f"v_lshlrev_b32 v{T2}, 4, v{T2}")
    e(f"s_lshl_b32 s{S_T0}, s{S_W}, 17")
    e(f"v_lshl_add_u32 v{VW}, v{T0}, 13, s{S_T0}")
    e(f"v_add_u32 v{VW}, v{VW}, v{T2}")
    for jj in range(1, 4):
        e(f"v_add_u32 v{VW+jj}, {jj*(32768-1024)}, v{VW}")
    e(f"v_lshl_add_u32 v{T3}, v{T0}, 8, s{S_W4K}")
    e(f"v_add_u32 v{VV}, v{T2}, v{T3}")
    e("s_waitcnt lgkmcnt(0)")
    e(f"s_mul_i32 s{S_T0}, s{S_B}, 163840")
    srd(e, SX, 64, 65, S_T0, 163840)
    e(f"s_lshl_b32 s{S_T0}, s{S_H}, 8")
    e(f"s_sub_u32 s{S_T1}, {640*8192}, s{S_T0}")
    srd(e, SW, 70, 71, S_T0, f"s{S_T1}")
    stamp()
    vmbox = [[]]
    def vm_add(tag, roles=None): vmbox[0].append(tag)
    def wait_vm(tags):
        vm = vmbox[0]
        idx = max(i for i, t in enumerate(vm) if t in tags)
        e(f"s_waitcnt vmcnt({min(63, len(vm) - 1 - idx)})")
    slot_of = {}
    for j in range(10):
        slot_of[("x", j)] = j % 3
        slot_of[("w", j)] = [3, 4, 8][j % 3]
    kvt = [("k",0),("k",1),("k",2),("k",3),("v",0),("v",1),("k",4),("k",5),("v",2),("v",3),("k",6),("k",7),("v",4),("v",5),("v",6),("v",7)]
    for i, t in enumerate(kvt): slot_of[t] = 5 + (i + 4) % 5
    assert D == 3 and NST <= 3
    def dma_ops(t):
        kind, j = t
        so = slot_of[t] * 16384
        out = []
        for jj in range(4):
            g = []
            if jj == 0:
                g.append(f"s_add_u32 m0, s{S_W4K}, {so}")
                if kind == "x":
                    g += [f"s_lshl_b32 s{S_SX}, s{S_KT}, 7", f"s_lshl_b32 s{S_SW2}, s{S_KT}, 19", f"s_add_u32 s{S_KT}, s{S_KT}, 1",
                          f"s_cmp_ge_u32 s{S_KT}, 10", f"s_cselect_b32 s{S_KT}, 0, s{S_KT}"]
                elif kind in "kv":
                    g.append(f"s_mov_b32 s{S_SO}, {16384*j}")
            elif kind in "kv" and t in kvt[:4]:
                g.append(f"s_add_u32 m0, s{S_W4K}, {so}")
            if kind == "x":
                g.append(f"buffer_load_dwordx4 v{VX+jj}, s[{SX}:{SX+3}], s{S_SX} offen offset:{1024*jj}{XWF} lds")
            elif kind == "w":
                g.append(f"buffer_load_dwordx4 v{VW+jj}, s[{SW}:{SW+3}], s{S_SW2} offen offset:{1024*jj}{XWF} lds")
            elif kind == "k":
                g.append(f"buffer_load_dwordx4 v{VK+jj}, s[{SK}:{SK+3}], s{S_SO} offen offset:{1024*jj}{KVF} lds")
            else:
                g.append(f"buffer_load_dwordx4 v{VV}, s[{SV}:{SV+3}], s{S_SO} offen offset:{1024*jj}{KVF} lds")
            out.append(g)
        return out
    def emit_group(g, tag, roles="AB"):
        for s in g: e(s)
        vm_add(tag, roles)
    def kv_setup():
        for jj in range(4):
            e(f"v_add_u32 v{T2}, {4*jj}, v{T0}")
            e(f"v_xor_b32 v{T2}, v{T2}, v{T1}")
            e(f"v_lshl_add_u32 v{VK+jj}, v{T2}, 4, v{T3}")
        e(f"s_lshl_b32 s{S_T1}, s{S_B}, 5")
        e(f"s_add_u32 s{S_T1}, s{S_T1}, s{S_H}")
        e(f"s_lshl_b32 s{S_T0}, s{S_T1}, 17")
        srd(e, SK, 66, 67, S_T0, 131072)
        srd(e, SV, 68, 69, S_T0, 131072)
    def burst():
        for n in range(NBL):
            for g in dma_ops(kvt[n]): emit_group(g, kvt[n])
        for n in range(4, 4 + NST):
            kind, j = kvt[n]
            e(f"s_mov_b32 s{S_SO}, {16384*j}")
            for jj in range(4):
                vo, sr_ = (VK + jj, SK) if kind == "k" else (VV, SV)
                e(f"buffer_load_dwordx4 {ar(AKV+16*(n-4)+4*jj,4)}, v{vo}, s[{sr_}:{sr_+3}], s{S_SO} offen offset:{1024*jj}{KVF}"); vm_add(kvt[n])
    vmB_pre = []
    if XPF:
        e(f"s_cmp_eq_u32 s{S_ROLE}, 0")
        e("s_cbranch_scc1 L_noxpf")
        e(f"s_lshl_b32 s100, s{S_HI}, 1"); e("s_bfe_u32 s101, s2, 0x10004"); e("s_add_u32 s100, s100, s101")
        e(f"s_lshl_b32 s100, s100, 2"); e(f"s_add_u32 s100, s100, s{S_W}")
        e(f"s_lshl_b32 s101, s100, 13")
        e(f"v_lshl_add_u32 v140, v{V_L}, 4, s101")
        e("s_mul_i32 s101, s100, 10240")
        e(f"v_lshrrev_b32 v141, 3, v{V_L}"); e("v_mul_u32_u24 v141, 1280, v141")
        e(f"v_and_b32 v142, 7, v{V_L}"); e("v_lshl_add_u32 v141, v142, 4, v141"); e("v_add_u32 v141, s101, v141")
        e("s_and_b32 s100, s2, 1"); e(f"s_mul_i32 s100, s100, {4*163840}")
        srd(e, SK, 64, 65, 100, 4 * 163840)
        e(f"s_lshl_b32 s100, s{S_HG}, 11"); e(f"s_sub_u32 s101, {640*8192}, s100")
        srd(e, SV, 70, 71, 100, "s101")
        for j in range(opt.get("nxpf", 10)):
            e(f"s_movk_i32 s100, {128*j}"); e(f"s_mov_b32 s101, {524288*j}")
            e(f"buffer_load_dwordx4 a[248:251], v140, s[{SV}:{SV+3}], s101 offen{XWF}")
            e(f"buffer_load_dwordx4 a[248:251], v141, s[{SK}:{SK+3}], s100 offen{XWF}")
            e(f"buffer_load_dwordx4 a[248:251], v140, s[{SV}:{SV+3}], s101 offen offset:1024{XWF}")
        kv_setup()
        burst()
        vmB_pre = list(vmbox[0]); vmbox[0] = []
        e.label("L_noxpf")
    ini = [dma_ops(("x", 0)), dma_ops(("w", 0)), dma_ops(("x", 1)), dma_ops(("w", 1))]
    for i, t in enumerate((("x", 0), ("w", 0), ("x", 1))):
        for g in ini[i]: emit_group(g, t)
    stamp()
    kv_setup()
    e(f"s_mul_i32 s{S_T0}, s{S_HG}, {1024*1280}")
    if opt.get("pfb", 4) == 5:
        e("s_lshr_b32 s100, s2, 3"); e(f"s_lshl_b32 s100, s100, 2"); e(f"s_add_u32 s100, s100, s{S_W}"); e("s_mul_i32 s100, s100, 10240")
    else:
        e(f"s_lshl_b32 s100, s{S_HI}, 1"); e("s_bfe_u32 s101, s2, 0x10004"); e("s_add_u32 s100, s100, s101")
        e(f"s_lshl_b32 s100, s100, 2"); e(f"s_add_u32 s100, s100, s{S_W}"); e("s_mul_i32 s100, s100, 20480")
    e(f"s_add_u32 s{S_T0}, s{S_T0}, s100")
    srd(e, SO, 72, 73, S_T0, 20480)
    srd(e, SD, 76, 77, None, 256)
    if SPEC:
        e(f"s_lshl_b32 s100, s{S_B}, 5"); e(f"s_add_u32 s100, s100, s{S_H}"); e("s_lshl_b32 s100, s100, 2"); e(f"s_add_u32 s100, s100, s{S_W}"); e("s_lshl_b32 s100, s100, 13")
        srd(e, SO2, 78, 79, 100, 8192)
    e(f"s_mul_i32 s{S_T0}, s{S_HG}, {1024*1280}")
    e(f"s_mul_i32 s{S_T1}, s{S_HI}, 160")
    e(f"s_add_u32 s{S_T0}, s{S_T0}, s{S_T1}")
    e(f"s_sub_u32 s{S_T1}, {4096*1280}, s{S_T0}")
    srd(e, SWO, 72, 73, S_T0, f"s{S_T1}")
    e(f"s_mov_b32 s{S_T0}, {WS_F}")
    srd(e, SF, 78, 79, S_T0, 256 * 1024 + 128)
    e(f"s_lshl_b32 s{S_T0}, s{S_B}, 3"); e(f"s_add_u32 s{S_T0}, s{S_T0}, s{S_HI}")
    e(f"s_mul_i32 s{S_T0}, s{S_T0}, 81920"); e(f"s_add_u32 s{S_T0}, s{S_T0}, {WS_P}")
    srd(e, SP, 78, 79, S_T0, 81920)
    e(f"s_lshl_b32 s{S_PO}, s{S_HG}, 2"); e(f"s_add_u32 s{S_PO}, s{S_PO}, s{S_W}"); e(f"s_mul_i32 s{S_PO}, s{S_PO}, 5120")

    e(f"v_and_b32 v{T0}, 31, v{V_L}")
    e(f"v_lshrrev_b32 v{T1}, 5, v{V_L}")
    e(f"v_bfe_u32 v{T2}, v{V_L}, 1, 3")
    e(f"v_xor_b32 v{T2}, v{T2}, v{T1}")
    e(f"v_lshlrev_b32 v{T2}, 4, v{T2}")
    e(f"v_lshl_add_u32 v{T3}, v{T0}, 7, s{S_W4K}")
    e(f"v_add_u32 v{VAX}, v{T2}, v{T3}")
    e(f"v_and_b32 v{T2}, 19, v{T0}")
    e(f"v_bfe_u32 v{T3}, v{T0}, 2, 1")
    e(f"v_lshl_or_b32 v{T2}, v{T3}, 3, v{T2}")
    e(f"v_bfe_u32 v{T3}, v{T0}, 3, 1")
    e(f"v_lshl_or_b32 v{T2}, v{T3}, 2, v{T2}")
    e(f"v_and_b32 v{T3}, 15, v{T2}")
    e(f"v_xor_b32 v{T3}, v{T3}, v{T1}")
    e(f"v_lshlrev_b32 v{T3}, 4, v{T3}")
    e(f"v_lshl_add_u32 v{VAK}, v{T2}, 8, v{T3}")
    e(f"v_bfe_u32 v{T2}, v{V_L}, 2, 2")
    e(f"v_mul_u32_u24 v{T2}, 320, v{T2}")
    e(f"v_lshl_add_u32 v{T2}, v{T1}, 11, v{T2}")
    e(f"v_bfe_u32 v{T3}, v{V_L}, 4, 1")
    e(f"v_lshl_add_u32 v{T2}, v{T3}, 5, v{T2}")
    e(f"v_and_b32 v{T3}, 1, v{V_L}")
    e(f"v_lshl_add_u32 v{T2}, v{T3}, 4, v{T2}")
    e(f"v_bfe_u32 v{T3}, v{V_L}, 1, 1")
    e(f"v_lshl_add_u32 v{VBW}, v{T3}, 3, v{T2}")
    e(f"v_lshlrev_b32 v{VL16}, 4, v{V_L}")
    e(f"s_mov_b32 s{S_C}, {f32bits(SCALE)}")
    for g in ini[3]: emit_group(g, ("w", 1))
    e(f"s_mov_b32 s100, {NONCE_OFF}")
    e(f"buffer_load_dword v{VDB}, off, s[{SF}:{SF+3}], s100 sc1"); vm_add("oldn")
    e("v_or_b32 v1, s2, v0")
    e(f"v_mov_b32 v{T0}, 0x7fffffff")
    e("v_cmp_eq_u32 vcc, 0, v1")
    e(f"v_cndmask_b32 v{VZ}, v{T0}, 0, vcc")
    e(f"v_and_b32 v{T0}, 7, v{V_L}")
    e("s_and_b32 s100, s2, 31"); e("s_lshl_b32 s100, s100, 10")
    e(f"v_lshl_add_u32 v{VPO}, v{T0}, 15, s100")
    for ee in range(5):
        e(f"v_add_u32 v{T0}, {64*ee}, v{V_L}")
        e(f"v_mul_u32_u24 v{T1}, 6554, v{T0}")
        e(f"v_lshrrev_b32 v{T1}, 16, v{T1}")
        e(f"v_mul_u32_u24 v{T2}, 10, v{T1}")
        e(f"v_sub_u32 v{T2}, v{T0}, v{T2}")
        e(f"v_mul_u32_u24 v{T1}, 1280, v{T1}")
        if ee == 3:
            e(f"v_lshl_add_u32 v{T1}, v{T2}, 4, v{T1}")
            e(f"v_subrev_u32 v{T1}, {1024*ee}, v{T1}")
            e(f"v_accvgpr_write_b32 a{AWO}, v{T1}")
        elif 0 < ee < 4:
            e(f"v_lshl_add_u32 v{T1}, v{T2}, 4, v{T1}")
            e(f"v_subrev_u32 v{VWO[ee]}, {1024*ee}, v{T1}")
        else:
            e(f"v_lshl_add_u32 v{VWO[ee]}, v{T2}, 4, v{T1}")

    def attention(role):
        slots = []
        def add_slot(unit, reads, mf, tag=None):
            slots.append(dict(unit=unit, reads=reads, mf=mf, fill=[], fill2=[], dma=[], post=[], tag=tag))
        ring = [0]
        def newbuf():
            b = AF + 4 * (ring[0] % R); ring[0] += 1
            return b
        for j in range(10):
            for s in range(4):
                xi = (j * 4 + s) % XR
                for t in range(4):
                    ab = newbuf()
                    rd = []
                    if t == 0: rd.append(f"ds_read_b128 {ar(XF+4*xi,4)}, v{RA+4+s}")
                    rd.append(f"ds_read_b64_tr_b16 {ar(ab,2)}, v{RA+t} offset:{s*4096}")
                    rd.append(f"ds_read_b64_tr_b16 {ar(ab+2,2)}, v{RA+t} offset:{s*4096+1024}")
                    c = "0" if (j == 0 and s == 0) else vr(Oacc+16*t, 16)
                    add_slot(("s", j), rd, f"v_mfma_f32_32x32x16_bf16 {vr(Oacc+16*t,16)}, {ar(ab,4)}, {ar(XF+4*xi,4)}, {c}")
        def sbuf(q): return Sreg + 64 * (q & 1)
        def frag_ops(q, f):
            b = sbuf(q) + 8 * f
            ops = [f"v_add_f32 v{b+i}, v{b+i}, v{NEGM}" for i in range(8)] if q == 0 else []
            ops += [f"v_exp_f32 v{b+i}, v{b+i}" for i in range(8)]
            if q == 0 and f == 0:
                ops += [f"v_add_f32 v{LS+i}, v{b+i}, v{b+4+i}" for i in range(4)]
            else:
                ops += [f"v_add_f32 v{LS+(i&3)}, v{LS+(i&3)}, v{b+i}" for i in range(8)]
            ops += [f"v_cvt_pk_bf16_f32 v{b+i}, v{b+2*i}, v{b+2*i+1}" for i in range(4)]
            return ops
        def max_ops(q, sg):
            b = sbuf(q) + 16 * sg
            ops = []
            for i in range(8):
                if sg == 0 and i == 0:
                    ops.append(f"v_max_f32 v{VM}, v{b}, v{b+1}")
                else:
                    ops.append(f"v_max3_f32 v{VM}, v{VM}, v{b+2*i}, v{b+2*i+1}")
            return ops
        def check1(q):
            def f():
                lr, lb = newlab("rr"), newlab("rb")
                e(f"v_cmp_lt_f32 vcc, {f32bits(float(THR))}, v{VM}")
                e("s_cmp_lg_u64 vcc, 0")
                e(f"s_cbranch_scc1 {lr}")
                e.label(lb)
                def blk():
                    e.label(lr)
                    e(f"v_mov_b32 v{T0}, v{VM}")
                    e("s_nop 1")
                    e(f"v_permlane32_swap_b32 v{T0}, v{VM}")
                    e(f"v_max3_f32 v{VM}, v{T0}, v{VM}, 0")
                    e(f"v_exp_f32 v{VAL}, -v{VM}")
                    for i in range(64): e(f"v_sub_f32 v{sbuf(q)+i}, v{sbuf(q)+i}, v{VM}")
                    for i in range(4): e(f"v_mul_f32 v{LS+i}, v{LS+i}, v{VAL}")
                    for i in range(16): e(f"v_sub_f32 v{NEGM+i}, v{NEGM+i}, v{VM}")
                    e(f"s_mov_b32 s{S_RS}, 1")
                    e("s_nop 1")
                    e(f"s_branch {lb}")
                rare.append(blk)
            return Act(f, 12)
        def check2():
            def f():
                lr, lb = newlab("rr"), newlab("rb")
                e(f"s_cmp_lg_u32 s{S_RS}, 0")
                e(f"s_cbranch_scc1 {lr}")
                e.label(lb)
                def blk():
                    e.label(lr)
                    e("s_nop 15")
                    for i in range(64): e(f"v_mul_f32 v{Oacc+i}, v{Oacc+i}, v{VAL}")
                    e(f"s_mov_b32 s{S_RS}, 0")
                    e("s_nop 1")
                    e(f"s_branch {lb}")
                rare.append(blk)
            return Act(f, 8)
        seg = {}
        def add_qk(q):
            a = len(slots)
            for jl in range(2):
                unit = ("k", 2*q + jl)
                for u in range(2):
                    sg = 2 * jl + u
                    sb = sbuf(q) + 16 * sg
                    for m in range(8):
                        ab = newbuf()
                        c = ("0" if q == 0 else vr(NEGM, 16)) if m == 0 else vr(sb, 16)
                        add_slot(unit, [f"ds_read_b128 {ar(ab,4)}, v{RA+m} offset:{u*8192}"],
                                 f"v_mfma_f32_32x32x16_bf16 {vr(sb,16)}, {ar(ab,4)}, {ar(AQ+4*m,4)}, {c}")
            seg[("qk", q)] = (a, len(slots))
        def add_pv(q):
            a = len(slots)
            def lslot(unit, f):
                first = (q == 0 and f == 0)
                add_slot(unit, [], f"v_mfma_f32_32x32x16_bf16 {ar(LACC,16)}, {ar(ONES,4)}, {vr(sbuf(q)+8*f,4)}, {'0' if first else ar(LACC,16)}")
            def oslot(unit, f, t):
                first = (q == 0 and f == 0); m = f & 3
                ab = newbuf()
                rd = [f"ds_read_b64_tr_b16 {ar(ab,2)}, v{RA+t} offset:{m*4096}",
                      f"ds_read_b64_tr_b16 {ar(ab+2,2)}, v{RA+t} offset:{m*4096+1024}"]
                add_slot(unit, rd, f"v_mfma_f32_32x32x16_bf16 {vr(Oacc+16*t,16)}, {ar(ab,4)}, {vr(sbuf(q)+8*f,4)}, {'0' if first else vr(Oacc+16*t,16)}")
            for jl in range(2):
                unit = ("v", 2*q + jl)
                if q == 3 and jl == 1:
                    for t in range(4):
                        for m in range(4): oslot(unit, 4 + m, t)
                    continue
                for m in range(4):
                    f = 4 * jl + m
                    for t in range(4): oslot(unit, f, t)
            seg[("pv", q)] = (a, len(slots))
        add_qk(0); add_qk(1); add_pv(0); add_qk(2); add_pv(1); add_qk(3); add_pv(2); add_pv(3)
        N = len(slots)
        unit_first = {}
        for k, s in enumerate(slots): unit_first.setdefault(s["unit"], k)
        def unit_range(u):
            ks = [k for k, s in enumerate(slots) if s["unit"] == u]
            return ks[0], ks[-1] + 1
        for j in range(8):
            k0 = unit_first[("s", j)]
            if j >= 1: slots[k0]["post"].append("barrier2")
            ops = [(g, ("x", j+2)) for g in dma_ops(("x", j+2))] + [(g, ("w", j+2)) for g in dma_ops(("w", j+2))]
            for i, (g, t) in enumerate(ops):
                slots[k0 + 2 * i]["dma"].append((g, t))
        def b_prefetch():
            for n in range(4):
                for g in dma_ops(kvt[n]): emit_group(g, kvt[n])
            for n in range(4, 4 + NST):
                kind, j = kvt[n]
                e(f"s_mov_b32 s{S_SO}, {16384*j}")
                for jj in range(4):
                    vo, sr_ = (VK + jj, SK) if kind == "k" else (VV, SV)
                    e(f"buffer_load_dwordx4 {ar(AKV+16*(n-4)+4*jj,4)}, v{vo}, s[{sr_}:{sr_+3}], s{S_SO} offen offset:{1024*jj}{KVF}"); vm_add(kvt[n])
        PFB = opt.get("pfb", 4)
        def pf_ops(n):
            return [([f"s_movk_i32 s{S_T0}, {(i>>2)*4096}"] if i % 4 == 0 else []) + [f"buffer_load_dwordx4 a[252:255], v{VL16}, s[{SO}:{SO+3}], s{S_T0} offen offset:{(i&3)*1024}{WOF}"] for i in range(n)]
        def b_all():
            if PFB == 1:
                for gg in pf_ops(20): emit_group(gg, "pf")
            b_prefetch()
            if PFB == 2:
                for gg in pf_ops(20): emit_group(gg, "pf")
        if role == "B" and not XPF:
            slots[unit_first[("s", opt.get("bst", 1))] + 15]["fill"].append(Act(b_all, 0))
        if role == "B" and XPF and NBL < 4:
            kops = [(g, kvt[n]) for n in range(NBL, 4) for g in dma_ops(kvt[n])]
            k0 = unit_first[("s", 8)]
            for i, it in enumerate(kops): slots[k0 + (2 * i + 1) * 32 // (2 * len(kops))]["dma"].append(it)
        if SPEC and not STOP:
            a, b = unit_range(kvt[opt.get("pfillu", 2)])
            for i in range(8):
                gg = ([f"s_movk_i32 s{S_T1}, {(i>>2)*4096}"] if i % 4 == 0 else []) + [f"buffer_store_dwordx4 v[52:55], v{VL16}, s[{SO2}:{SO2+3}], s{S_T1} offen offset:{(i&3)*1024}{opt.get('pfillflag', '')}"]
                if opt.get("nopfill", 0): gg = []
                slots[a + 8 + i]["dma"].append((gg, "pfill"))
        if PFB == 5:
            a, b = unit_range(kvt[int(str(opt.get("pfa" if role == "A" else "pfu", "c")), 16)])
            for i, gg in enumerate(pf_ops(10)):
                slots[a + 8 + i * 8 // 10]["dma"].append((gg, "pf"))
        if role == "A" and PFB == 4:
            lo_u, hi_u = [int(c, 16) for c in str(opt.get("pfu", "18"))]
            nu = hi_u - lo_u + 1
            for i, gg in enumerate(pf_ops(20)):
                a, b = unit_range(kvt[lo_u + i * nu // 20])
                j = i - min(ii for ii in range(20) if ii * nu // 20 == i * nu // 20)
                slots[a + 9 + 2 * j]["dma"].append((gg, "pf"))
        if role == "B" and PFB == 3:
            lo_u, hi_u = [int(c, 16) for c in str(opt.get("pfu", "03"))]
            a = unit_range(kvt[lo_u])[0] + 6; b = unit_range(kvt[hi_u])[1]
            for i, gg in enumerate(pf_ops(20)):
                slots[a + i * (b - a) // 20]["dma"].append((gg, "pf"))
        if role != "B":
            kops = [(g, kvt[n]) for n in range(4) for g in dma_ops(kvt[n])]
            npf = opt.get("npf", 20) if role == "A" and not STOP and not PFB else 0
            pfo = [([f"s_movk_i32 s{S_T0}, {(i>>2)*4096}"] if i % 4 == 0 else []) + [f"buffer_load_dwordx4 a[252:255], v{VL16}, s[{SO}:{SO+3}], s{S_T0} offen offset:{(i&3)*1024}{WOF}"] for i in range(npf)]
            pfo = [(g, "pf") for g in pfo]
            if opt.get("pffirst", 1): kops = pfo + kops
            else: kops = kops + pfo
            kmix = str(opt.get("kmix", ("0000000088" if PFB else "00000006ff") if role == "A" else "0002222224")).zfill(10)
            assert sum(int(c, 16) for c in kmix) == len(kops), len(kops)
            for j in range(10):
                c = int(kmix[j], 16); k0 = unit_first[("s", j)]
                for i in range(c):
                    if j < 8: pos = 7 if i < c // 2 else 15
                    else: pos = (2 * i + 1) * 16 // (2 * c)
                    slots[k0 + pos]["dma"].append(kops.pop(0))
        NB2 = opt.get("nb2", 0) if role == "B" else 0
        for n in range(4, 16):
            a, b = unit_range(kvt[n - D])
            if n < NB2 and n not in (4, 7):
                a, b = unit_range(kvt[n - D + 1]) if n + 1 < NB2 and n + 1 not in (7,) else (a + 8, b)
            L = 16
            for i, g in enumerate(dma_ops(kvt[n])):
                if role == "B" and n < 4 + NST:
                    alt = [f"v_add_u32 v{T3}, s{S_W4K}, v{VL16}", f"v_add_u32 v{T3}, {slot_of[kvt[n]]*16384}, v{T3}"] if i == 0 else []
                    alt.append(f"ds_write_b128 v{T3}, {ar(AKV+16*(n-4)+4*i,4)} offset:{1024*i}")
                    slots[a + (2 * i) * L // 16 + 1 + KOFF]["dma"].append((alt, None))
                else:
                    slots[a + (2 * i) * L // 16 + 1 + KOFF]["dma"].append((g, kvt[n]))
        NS0 = opt.get('ns0', 4)
        AST = 256 - 20 * (8 - NS0)
        WROT = opt.get("wrot", 1)
        def w_grp(g):
            if not WROT or g >= 4: return [f"s_add_u32 s100, s{S_W}, {4*g}"]
            return ["s_bfe_u32 s100, s2, 0x20003", f"s_add_u32 s100, s100, {g & 3}", "s_and_b32 s100, s100, 3", "s_lshl_b32 s100, s100, 2",
                    f"s_add_u32 s100, s100, s{S_W}"] + ([f"s_add_u32 s100, s100, 16"] if g >= 4 else [])
        def w_lds(g, dst):
            return w_grp(g) + [f"s_mul_i32 s{dst}, s100, 5120"]
        def w_ops(g, stage=False):
            glob = [f"s_lshl_b32 s101, s{S_HI}, 2", "s_add_u32 s100, s100, s101", "s_and_b32 s100, s100, 31", f"s_mul_i32 s{S_WG}, s100, {32*1280}"]
            out = []
            if stage:
                pre = w_grp(g) + glob
                for ee in range(5):
                    out.append((pre if ee == 0 else []) + [f"buffer_load_dwordx4 {ar(AST+20*(g-NS0)+4*ee,4)}, v{VWO[ee]}, s[{SWO}:{SWO+3}], s{S_WG} offen offset:{1024*ee if ee<4 else 0}{WOF}"])
                return out
            pre = w_lds(g, S_WL) + [f"s_mov_b32 m0, s{S_WL}"] + glob
            for ee in range(4):
                out.append((pre if ee == 0 else [f"s_mov_b32 m0, s{S_WL}", "s_nop 0"]) + [f"buffer_load_dwordx4 v{VWO[ee]}, s[{SWO}:{SWO+3}], s{S_WG} offen offset:{1024*ee}{WOF} lds"])
            out.append([f"s_add_u32 m0, s{S_WL}, 4096", "s_nop 0", f"buffer_load_dwordx4 v{VWO[4]}, s[{SWO}:{SWO+3}], s{S_WG} offen{WOF} lds"])
            return out
        def pmap(c): return c
        assert NS0 == 4
        def place_w(rng, role):
            lo_u, hi_u = [int(c, 16) for c in rng]
            sp = [(gg, ("W", g)) for g in range(4) for gg in w_ops(g, False)]
            nu = hi_u - lo_u + 1
            byu = {}
            for i, it in enumerate(sp): byu.setdefault(lo_u + i * nu // len(sp), []).append(it)
            for n, ops in byu.items():
                a, b = unit_range(kvt[n]); L = b - a
                nokv = n + D > 15 or n == 0 or (role == "B" and n + D < 4 + NST)
                lo = a + 1 if nokv else a + L // 2 + 1 + KOFF
                if n == 15: b = a + 8
                for i, it in enumerate(ops):
                    slots[lo + i * (b - lo) // len(ops)]["dma"].append(it)
        if not STOP:
            for gi, n in ((4, 14), (5, 15)):
                a, b = unit_range(kvt[n])
                for i, gg in enumerate(w_ops(gi, False)):
                    slots[a + (8 if n == 14 else 0) + i]["dma"].append((gg, ("W", gi)))
            place_w(str(opt.get({"A": "wspa", "B": "wspb", "AB": "wsp"}[role], {"A": "cd", "B": "cd", "AB": "0b"}[role])), role)
        def misc_acts():
            def m0():
                wait_vm(["dbgld"])
                l1, l2 = newlab("dc"), newlab("dc")
                e("s_mov_b32 s101, 0")
                e.label(l1)
                e(f"v_xor_b32 v{T0}, v{T3}, v{VDB}")
                e(f"v_cmp_gt_u32 vcc, 16, v{T0}")
                e("s_cmp_eq_u64 vcc, -1")
                e(f"s_cbranch_scc1 {l2}")
                e("s_add_u32 s101, s101, 1")
                e(f"s_cmp_ge_u32 s101, {SPIN}")
                e(f"s_cbranch_scc1 {l2}")
                e("s_sleep 8")
                e(f"buffer_load_dword v{T3}, v{VPO}, s[{SF}:{SF+3}], 0 offen offset:512 sc1")
                e("s_waitcnt vmcnt(0)")
                e(f"s_branch {l1}")
                e.label(l2)
                e(f"v_cmp_eq_u32 vcc, 0, v{T0}")
                e("s_cmp_eq_u64 vcc, -1")
                e(f"s_cselect_b32 s{S_FAST}, {0 if FORCE_SLOW else 1}, 0")
            def m1():
                e(f"s_lshl_b32 s{S_T0}, s{S_B}, 2"); e(f"s_add_u32 s{S_T0}, s{S_T0}, s{S_HG}"); e(f"s_lshl_b32 s{S_T0}, s{S_T0}, 18")
                e(f"s_lshl_b32 s100, s{S_W}, 13")
                e(f"s_add_u32 s{S_T0}, s{S_T0}, s100")
                srd(e, SOG, 78, 79, S_T0, 7 * 32768 + 8192)
            def m2():
                e(f"s_lshl_b32 s100, s{S_HI}, 15")
                e(f"s_add_u32 s{S_T0}, s{S_T0}, s100")
                srd(e, SO, 78, 79, S_T0, 8192)
                e(f"s_lshl_b32 s{S_T0}, s2, 3"); e(f"s_add_u32 s{S_T0}, s{S_T0}, s{S_W}"); e(f"s_lshl_b32 s{S_T0}, s{S_T0}, 7")
            def m3():
                e(f"v_mov_b32 v{VZ}, s{S_T0}")
                e(f"v_mov_b32 v{T0}, 0x7fffffff")
                e(f"v_cmp_eq_u32 vcc, 0, v{V_L}")
                e(f"v_mov_b32 v{T2}, s{S_TAG}")
                e(f"v_add_u32 v{T3}, s{S_HI}, v{V_L}")
                e(f"v_cndmask_b32 v{VZ}, v{T0}, v{VZ}, vcc")
                e(f"v_and_b32 v{T3}, 7, v{T3}")
            def m4():
                e(f"s_and_b32 s{S_T0}, s2, 31"); e(f"s_lshl_b32 s{S_T0}, s{S_T0}, 3"); e(f"s_add_u32 s{S_T0}, s{S_T0}, s{S_W}"); e(f"s_lshl_b32 s{S_T0}, s{S_T0}, 7")
                e(f"v_lshl_add_u32 v{VPO}, v{T3}, 15, s{S_T0}")
            return [Act(m0, 36), Act(m1, 36), Act(m2, 36), Act(m3, 28), Act(m4, 20)]
        def base_cost(k):
            s = slots[k]
            return 8 + 4 * len(slots[min(N-1, k+LA)]["reads"]) + (2 if PAIRW else 4) + sum(4 * len(x[0]) for x in s["dma"]) + sum(cost(x) for x in s["fill"] + s["fill2"])
        def spread(ops, a, b, dead=None):
            tot = sum(cost(o) for o in ops)
            lo, hi = 0, 400
            def place(level, commit):
                i = 0
                for k in range(a, b):
                    c = base_cost(k)
                    while i < len(ops):
                        if c + cost(ops[i]) <= level:
                            c += cost(ops[i])
                            if commit: slots[k]["fill"].append(ops[i])
                            i += 1
                        else: break
                    if dead and any(oi >= i and sl <= k + 1 for oi, sl in dead): return False
                return i == len(ops)
            while lo < hi:
                mid = (lo + hi) // 2
                if place(mid, False): hi = mid
                else: lo = mid + 1
            assert place(lo, True)
            return lo
        for q in range(4):
            a, b = seg[("qk", q)]
            for sg in range(3):
                base = a + 8 * (sg + 1)
                mo = max_ops(q, sg)
                for i in range(4): slots[base + 4 + i]["fill"] += mo[2*i:2*i+2]
        lv = []
        X0 = opt.get("x0", 13)
        for q in range(1, 4):
            a, b = seg[("pv", q - 1)]
            mo = max_ops(q, 3)
            for i in range(4): slots[a + 3 + i]["fill"] += mo[2*i:2*i+2]
            slots[a + (X0 if q == 1 else 7)]["fill2"].append(check1(q))
        for q in (1, 2):
            slots[seg[("qk", q + 1)][0]]["fill"].append(check2())
        def qconv(t):
            ops = []
            for i in range(0, 16, 2):
                r = Oacc + 16 * t + i
                ops.append(f"v_pk_mul_f32 v[{r}:{r+1}], v[{r}:{r+1}], v[{T1}:{T1+1}] op_sel_hi:[1,0]") if t < 2 else ops.extend([f"v_mul_f32 v{r}, v{r}, v{T1}", f"v_mul_f32 v{r+1}, v{r+1}, v{T1}"])
            ops += [f"v_cvt_pk_bf16_f32 v{Oacc+16*t+i}, v{Oacc+16*t+2*i}, v{Oacc+16*t+2*i+1}" for i in range(8)]
            ops += [f"v_accvgpr_write_b32 a{AQ+8*t+i}, v{Oacc+16*t+i}" for i in range(8)]
            return ops
        a, b = seg[("qk", 0)]
        lv.append(spread(qconv(2) + qconv(3), a, a + 6, dead=[(31, a + 4), (63, a + 6)]))
        a, b = seg[("pv", 2)]
        for i, act in enumerate(misc_acts()):
            slots[a + 18 + 3 * i]["fill"].append(act)
        a, b = seg[("qk", 1)]
        f0 = [frag_ops(0, f) for f in range(8)]
        lv.append(spread([o for x in f0 for o in x], a, b + X0 + 1, dead=[(sum(len(x) for x in f0[:f+1]) - 1, b + 4 * f) for f in range(4)]))
        for q in (1, 2):
            lv.append(spread([o for f in range(8) for o in frag_ops(q, f)], seg[("pv", q-1)][0] + (X0 + 1 if q == 1 else 8), seg[("qk", q+1)][1]))
        a3 = seg[("pv", 3)][0]
        lv.append(spread([o for f in range(8) for o in frag_ops(3, f)], seg[("pv", 2)][0] + 8, a3 + opt.get("x3", 16),
                         dead=[(20 * f + 19, a3 + 4 * f) for f in range(4)]))
        a7 = unit_first[("v", 7)]
        def store_t(t):
            def f():
                d = QF + 8 * t
                l1, l2 = newlab("o"), newlab("o")
                so = f"s{S_SO}" if t >= 2 else "0"
                e(f"s_cmp_eq_u32 s{S_FAST}, 0")
                e(f"s_cbranch_scc1 {l1}")
                for z in range(2):
                    e(f"buffer_store_dwordx4 {vr(d+4*z,4)}, v{VL16}, s[{SO}:{SO+3}], {so} offen offset:{((2*t+z)&3)*1024}{opt.get('osflag', '')}")
                e(f"s_branch {l2}")
                e.label(l1)
                for z in range(2):
                    e(f"buffer_store_dwordx4 {vr(d+4*z,4)}, v{VL16}, s[{SO}:{SO+3}], {so} offen offset:{((2*t+z)&3)*1024} sc1")
                e.label(l2)
                vm_add("Ost"); vm_add("Ost")
            return Act(f, 20)
        def pack_ops(t, pk=False):
            ops = []
            if pk:
                for i in range(0, 16, 2):
                    r = Oacc + 16 * t + i
                    ops.append(f"v_pk_mul_f32 v[{r}:{r+1}], v[{r}:{r+1}], v[{T1}:{T1+1}] op_sel_hi:[1,0]")
            else:
                ops += [f"v_mul_f32 v{Oacc+16*t+i}, v{Oacc+16*t+i}, v{T1}" for i in range(16)]
            d = QF + 8 * t
            for u in range(2):
                b = Oacc + 16 * t + 4 * u
                ops += [f"v_cvt_pk_bf16_f32 v{d+4*u}, v{b}, v{b+1}", f"v_cvt_pk_bf16_f32 v{d+4*u+1}, v{b+2}, v{b+3}",
                        f"v_cvt_pk_bf16_f32 v{d+4*u+2}, v{b+8}, v{b+9}", f"v_cvt_pk_bf16_f32 v{d+4*u+3}, v{b+10}, v{b+11}"]
            ops += [f"v_permlane16_swap_b32 v{d+i}, v{d+4+i}" for i in range(4)]
            ops.append(store_t(t))
            return ops
        slots[a7 + 0]["fill"] += [f"v_add_f32 v{LS}, v{LS}, v{LS+1}", f"v_add_f32 v{LS+2}, v{LS+2}, v{LS+3}", f"s_movk_i32 s{S_SO}, 4096"]
        slots[a7 + 1]["fill"] += [f"v_add_f32 v{LS}, v{LS}, v{LS+2}", f"v_mov_b32 v{T1}, v{LS}"]
        slots[a7 + 2]["fill"] += [f"v_permlane32_swap_b32 v{T1}, v{LS}", f"v_add_f32 v{T1}, v{T1}, v{LS}"]
        slots[a7 + 3]["fill"] += [f"v_rcp_f32 v{T1}, v{T1}"]
        p0, p1, p2 = pack_ops(0), pack_ops(1), pack_ops(2)
        PK0 = opt.get("pk0", 6)
        for i in range(4): slots[a7 + PK0 + i]["fill"] += p0[i*29//4:(i+1)*29//4]
        for i in range(4): slots[a7 + PK0 + 4 + i]["fill"] += p1[i*29//4:(i+1)*29//4]
        n2 = 16 - (PK0 + 8)
        for i in range(n2): slots[a7 + PK0 + 8 + i]["fill"] += p2[i*8:(i+1)*8]
        epi_rest = p2[n2*8:] + pack_ops(3, True)
        EARLY = opt.get("early", 0) and not STOP
        S_PM, S_EARLY = 34, 61
        assert not EARLY
        OB = [None, 64, 96, 128, 0, 32, 160, 192]
        def o_ops(h):
            out = []
            pre = [f"s_add_u32 s100, s{S_HI}, {h}", "s_and_b32 s100, s100, 7", f"s_lshl_b32 s{S_T0}, s100, 15", f"s_add_u32 s{S_T1}, s{S_T0}, 4096"]
            for f in range(8):
                so = S_T0 if f < 4 else S_T1
                out.append((pre if f == 0 else []) + [f"buffer_load_dwordx4 {ar(OB[h]+4*f,4)}, v{VL16}, s[{SOG}:{SOG+3}], s{so} offen offset:{(f&3)*1024}{opt.get('olflag', ' sc1')}"])
            return out
        def early_take():
            wait_vm(["poll0"])
            l1 = newlab("e")
            e(f"v_cmp_eq_u32 vcc, v{T2}, v{T3}")
            e(f"s_mov_b32 s{S_PM}, vcc_lo")
            e(f"s_and_b32 s100, s{S_PM}, 14")
            e("s_cmp_eq_u32 s100, 14")
            e(f"s_cselect_b32 s{S_EARLY}, 1, 0")
            e(f"s_cbranch_scc0 {l1}")
            for gg in o_ops(1) + o_ops(2)[:4]:
                for s_ in gg: e(s_)
            e.label(l1)
        if EARLY:
            slots[a7 + opt.get("et", 9)]["fill"].insert(0, Act(early_take, 40))
        sys.stderr.write(f"filler levels {lv}\n")
        def gap_q_post():
            e(f"v_mov_b32 v{T1}, s{S_C}")
            e(f"v_accvgpr_read_b32 v{VWO[3]}, a{AWO}")
            e(f"s_mov_b32 s{S_RS}, 0")
            for i in range(4): e(f"v_mov_b32 v{52+i}, -1")
            for o in qconv(0) + qconv(1): e(o)
        def gap0_pre():
            for o in max_ops(0, 3): e(o)
            e(f"v_mov_b32 v{T0}, v{VM}")
            e(f"v_permlane32_swap_b32 v{T0}, v{VM}")
            e(f"v_max_f32 v{VM}, v{T0}, v{VM}")
            for i in range(16): e(f"v_sub_f32 v{NEGM+i}, 0, v{VM}")
        def gap3_pre():
            check2().fn()
        nop = lambda: None
        gaps = {seg[("qk", 0)][0]: (nop, gap_q_post, True),
                seg[("qk", 1)][0]: (gap0_pre, nop, False),
                seg[("pv", 3)][0]: (gap3_pre, nop, False)}
        def enter_unit(u):
            if u[0] == "s":
                j = u[1]
                wait_vm([("x", j), ("w", j)])
                e("s_barrier")
                if j == 9:
                    e(f"v_add_u32 v{VDB}, 1, v{VDB}")
                    e(f"v_cmp_eq_u32 vcc, 0, v{VDB}")
                    e(f"s_mov_b32 s100, {NONCE_OFF}")
                    e(f"v_cndmask_b32 v{VDB}, v{VDB}, 1, vcc")
                    e(f"buffer_store_dword v{VDB}, v{VZ}, s[{SD}:{SD+3}], 0 offen sc1"); vm_add("nst")
                    e(f"buffer_store_dword v{VDB}, v{VZ}, s[{SF}:{SF+3}], s100 offen sc1"); vm_add("nst")
                e(f"v_add_u32 v{RA}, {slot_of[('w',j)]*16384}, v{VBW}")
                e(f"v_add_u32 v{RA+4}, {slot_of[('x',j)]*16384}, v{VAX}")
                for t in range(1, 4):
                    e(f"v_xor_b32 v{RA+t}, {t<<6}, v{RA}")
                    e(f"v_xor_b32 v{RA+4+t}, {t<<5}, v{RA+4}")
            else:
                if not opt.get("nomem", 0) or u in kvt[:4]: wait_vm([u])
                if opt.get("nomem", 0) < 2: e("s_barrier")
                if u == kvt[4]:
                    e(f"buffer_load_dword v{T3}, off, s[{SD}:{SD+3}], 0 sc1"); vm_add("nld")
                if u == kvt[7]:
                    l1, l2 = newlab("nc"), newlab("nc")
                    e("s_mov_b32 s101, 0")
                    e.label(l1)
                    e(f"v_readfirstlane_b32 s{S_TAG}, v{T3}")
                    e("s_add_u32 s101, s101, 1")
                    e(f"s_cmp_lg_u32 s{S_TAG}, 0")
                    e(f"s_cbranch_scc1 {l2}")
                    e(f"s_cmp_ge_u32 s101, {SPIN}")
                    e(f"s_cbranch_scc1 {l2}")
                    e("s_sleep 8")
                    e(f"buffer_load_dword v{T3}, off, s[{SD}:{SD+3}], 0 sc1")
                    e("s_waitcnt vmcnt(0)")
                    e(f"s_branch {l1}")
                    e.label(l2)
                    e("s_getreg_b32 s100, hwreg(HW_REG_XCC_ID)")
                    e("s_and_b32 s100, s100, 15")
                    e(f"s_lshl_b32 s101, s{S_TAG}, 4")
                    e("s_or_b32 s100, s100, s101")
                    e(f"v_mov_b32 v{VDB}, s100")
                    e("s_lshl_b32 s100, s2, 10")
                    e(f"buffer_store_dword v{VDB}, off, s[{SF}:{SF+3}], s100 offset:512 sc1"); vm_add("xst")
                if u == kvt[11]:
                    e(f"buffer_load_dword v{T3}, v{VPO}, s[{SF}:{SF+3}], 0 offen offset:512 sc1"); vm_add("dbgld")
                if u == kvt[15] and EARLY:
                    e(f"buffer_load_dword v{T3}, v{VPO}, s[{SF}:{SF+3}], 0 offen sc1"); vm_add("poll0")
                so = slot_of[u] * 16384
                if u[0] == "k":
                    e(f"v_add_u32 v{RA}, {so}, v{VAK}")
                    for m in range(1, 8): e(f"v_xor_b32 v{RA+m}, {m<<5}, v{RA}")
                else:
                    e(f"v_add_u32 v{RA}, {so}, v{VBW}")
                    for t in range(1, 4): e(f"v_xor_b32 v{RA+t}, {t<<6}, v{RA}")
        st = dict(rd=0, cur=None, waited=-1)
        lg = []
        def issue_reads(upto):
            while st["rd"] <= upto and st["rd"] < N:
                s = slots[st["rd"]]
                if s["unit"] != st["cur"]:
                    st["cur"] = s["unit"]
                    enter_unit(st["cur"])
                    if diag == 2 and st["cur"][0] == "s": stamp()
                for r in s["reads"]:
                    e(r); lg.append(st["rd"])
                st["rd"] += 1
        def limit(k):
            c = [g for g in gaps if g > k and gaps[g][2]]
            return (min(c) if c else N) - 1
        segstarts = {v[0] for v in seg.values()}
        for k in range(N):
            s = slots[k]
            if k in segstarts and diag not in (3, 4, 5, 6): stamp()
            if k in gaps:
                gaps[k][0]()
                issue_reads(k + LA - 1)
                gaps[k][1]()
            elif k == 0:
                issue_reads(LA - 1)
                stamp()
            if s["reads"] and k > st["waited"]:
                kk = k
                if PAIRW and k + 1 < st["rd"] and slots[k+1]["reads"] and (k + 1) not in gaps: kk = k + 1
                idx = max(i for i, t in enumerate(lg) if t == kk)
                n_after = len(lg) - 1 - idx
                e(f"s_waitcnt lgkmcnt({min(15, n_after)})")
                st["waited"] = kk
            e(s["mf"])
            for p in s["post"]:
                if p == "barrier2": e("s_barrier")
            issue_reads(min(k + LA, limit(k)))
            for gg, tg in s["dma"]:
                if opt.get("now", 0) and (tg == "pf" or (isinstance(tg, tuple) and tg[0] == "W")): gg = []
                if opt.get("nomem", 0) and s["unit"][0] != "s": gg = []
                for s_ in gg: e(s_)
                if tg is None: lg.append(-1)
                else: vm_add(tg)
            for f in s["fill"] + s["fill2"]:
                if isinstance(f, str): e(f)
                else: f.fn()
        stamp()
        for f in epi_rest:
            if isinstance(f, str): e(f)
            else: f.fn()
        if not STOP:
            assert vmbox[0][-1] == "Ost"
            wait_vm([("W", gi) for gi in range(4)])
        return dict(OB=OB, S_PM=S_PM)
    def flag_raw():
        l1, l2 = newlab("f"), newlab("f")
        e(f"s_cmp_eq_u32 s{S_FAST}, 0")
        e(f"s_cbranch_scc1 {l1}")
        e(f"buffer_store_dword v{T2}, v{VZ}, s[{SF}:{SF+3}], 0 offen")
        e(f"s_branch {l2}")
        e.label(l1)
        e(f"buffer_store_dword v{T2}, v{VZ}, s[{SF}:{SF+3}], 0 offen sc1")
        e.label(l2)
    vm0 = list(vmbox[0]); st0 = nstamp[0]
    if ROLES:
        e(f"s_cmp_eq_u32 s{S_ROLE}, 0")
        e("s_cbranch_scc1 L_roleA")
        vmbox[0] = vmB_pre + vm0
        X = attention("B")
        e("s_branch L_tail")
        e.label("L_roleA")
        vmbox[0] = list(vm0); nstamp[0] = st0
        X = attention("A")
        e.label("L_tail")
    else:
        X = attention("AB")
    vmbox[0] = ["Ost"]
    OB, S_PM = X["OB"], X["S_PM"]
    stamp()
    if not STOP:
        tail(e, opt, locals())
    if diag:
        e("s_waitcnt vmcnt(0)")
        stamp()
        e("s_memrealtime s[100:101]")
        e("s_waitcnt lgkmcnt(0)")
        e(f"s_mov_b32 s29, {WS_DIAG}")
        srd(e, 8, 78, 79, 29, 1 << 20)
        e("s_lshl_b32 s29, s2, 2"); e("s_add_u32 s29, s29, s3"); e("s_lshl_b32 s29, s29, 7")
        e("v_mov_b32 v1, s29")
        vals = [f"s{40+k}" for k in range(nstamp[0])] + ["0"] * (24 - nstamp[0])
        if diag == 5:
            vals = vals[:14] + ["s54", "s55", "s56", "s57"] + vals[18:]
        vals = vals + ["s94", "s95", "s100", "s101"]
        e("s_getreg_b32 s30, hwreg(HW_REG_XCC_ID)")
        vals += ["s30", "s62", f"s{S_FAST}", "s37" if not SPEC else "s60"]
        for q in range(8):
            for i in range(4): e(f"v_mov_b32 v{4+i}, {vals[4*q+i]}")
            e(f"buffer_store_dwordx4 v[4:7], v1, s[8:11], 0 offen offset:{16*q}")
    if opt.get("pad", 0):
        e("s_waitcnt vmcnt(0)")
        e.label("L_pad")
        e("s_memrealtime s[92:93]")
        e("s_waitcnt lgkmcnt(0)")
        e("s_sub_u32 s92, s92, s94")
        e(f"s_cmp_lt_u32 s92, {opt['pad']}")
        e("s_cbranch_scc1 L_pad")
    e("s_endpgm")
    for blk in rare: blk()
    e.label("L_done")
    e("s_endpgm")
    if TICK:
        for t in range(2):
            kernel_header(e, f"tick{t}_kernel")
            e("s_memrealtime s[4:5]")
            e("s_load_dwordx2 s[6:7], s[0:1], 56")
            e("s_waitcnt lgkmcnt(0)")
            e(f"s_mov_b32 s12, {WS_DIAG + 0x80000 + 64 * t}")
            srd(e, 8, 6, 7, 12, 64)
            if t == 0:
                for i in range(40): e("s_sleep 127")
                e("s_memrealtime s[4:5]"); e("s_waitcnt lgkmcnt(0)")
            e("v_mov_b32 v2, s4"); e("v_mov_b32 v3, s5")
            e("buffer_store_dwordx2 v[2:3], off, s[8:11], 0")
            e("s_endpgm")
    e.raw('.section .rodata,"a"')
    kernel_desc(e, kname, 512, 256)
    if TICK:
        for t in range(2): kernel_desc(e, f"tick{t}_kernel", 32, 32)
    sys.stderr.write(f"nops inserted: {e.nnop}, instrs: {sum(1 for x in e.L if x[0])}\n")
    return e.text()

def tail(e, opt, g):
    S_W, S_B, S_HG, S_HI, S_T0, S_T1, S_SO, S_FAST, S_PO = [g[k] for k in "S_W S_B S_HG S_HI S_T0 S_T1 S_SO S_FAST S_PO".split()]
    SOG, SF, SP, QF, V_L, VL16, VPO, VZ, T0, T1, T2, T3 = [g[k] for k in "SOG SF SP QF V_L VL16 VPO VZ T0 T1 T2 T3".split()]
    vm_add, wait_vm, emit_group, newlab, stamp, OB, S_PM, flag_raw = [g[k] for k in "vm_add wait_vm emit_group newlab stamp OB S_PM flag_raw".split()]
    S_TAG, SWO, VWO, WOF = g["S_TAG"], g["SWO"], g["VWO"], g["WOF"]
    LA = opt.get("LA4", 6); R = LA + 2
    ACC = 128; FR = 168; VB = 12
    e(f"v_lshrrev_b32 v{T1}, 2, v{V_L}")
    e(f"v_mul_u32_u24 v{T1}, 160, v{T1}")
    e(f"v_and_b32 v{T0}, 3, v{V_L}")
    e(f"v_lshl_add_u32 v{VB}, v{T0}, 3, v{T1}")
    e(f"v_add_u32 v{VB+1}, {12*5120}, v{VB}")
    e(f"v_add_u32 v{VB+2}, {24*5120}, v{VB}")
    SPEC = g["SPEC"]; rare = g["rare"]
    def odst(h, f):
        return vr(64 + 32 * (h - 1) + 4 * f, 4) if (SPEC and h <= 2) else ar(OB[h] + 4 * f, 4)
    slots = []
    WF = opt.get("wf", 1)
    order4 = [(c, tn) for c in range(24 if WF else 32) for tn in range(5)]
    if WF: order4 += [(c, tn) for tn in range(5) for c in range(24, 32)]
    for c, tn in order4:
        k = len(slots); fb = FR + 4 * (k % R)
        base = VB + c // 12; off = (c % 12) * 5120 + tn * 32
        rd = [f"ds_read_b64_tr_b16 {vr(fb,2)}, v{base} offset:{off}", f"ds_read_b64_tr_b16 {vr(fb+2,2)}, v{base} offset:{off+2560}"]
        mf = []
        for z in range(2):
            d = ACC + 4 * (z * 5 + tn)
            cc = "0" if c == 0 else vr(d, 4)
            b = vr(QF + 8 * c + 4 * z, 4) if c < 4 else odst(c // 4, (c & 3) * 2 + z)
            mf.append(f"v_mfma_f32_16x16x32_bf16 {vr(d,4)}, {vr(fb,4)}, {b}, {cc}")
        slots.append(dict(unit=min(c // 4, 6), reads=rd, mf=mf, gap=[[], []], c=c, tn=tn))
    N = len(slots)
    def put(gi, fn):
        slots[gi // 2]["gap"][gi & 1].append(fn if callable(fn) else (lambda s_=fn: e(s_)))
    def put_free(ops, g0):
        gi = g0
        for o in ops:
            while slots[gi // 2]["gap"][gi & 1] or (gi & 1 == 1 and (gi // 2) % 2 == 1): gi += 1
            put(gi, o); gi += 1
        return gi
    def check_flag(h):
        l1, l2 = newlab("p"), newlab("p")
        e(f"s_bitcmp1_b32 s{S_PM}, {h}")
        e(f"s_cbranch_scc1 {l2}")
        e("s_mov_b32 s38, 0")
        e.label(l1)
        e(f"buffer_load_dword v{T3}, v{VPO}, s[{SF}:{SF+3}], 0 offen sc1")
        e("s_add_u32 s38, s38, 1")
        e("s_waitcnt vmcnt(0)")
        e(f"v_cmp_eq_u32 vcc, v{T2}, v{T3}")
        e(f"s_mov_b32 s{S_PM}, vcc_lo")
        e(f"s_cmp_ge_u32 s38, {SPIN}")
        e(f"s_cbranch_scc1 {l2}")
        e(f"s_bitcmp1_b32 s{S_PM}, {h}")
        e(f"s_cbranch_scc0 {l1}")
        e.label(l2)
    ROLES, S_ROLE = g["ROLES"], g["S_ROLE"]
    def flag_store():
        wait_vm(["Ost"])
        flag_raw(); vm_add("flag")
        stamp()
    e("s_barrier")
    FS = opt.get("fs", 6); PS = opt.get("ps", 14)
    SOFF = list(range(64, 74)) + [76, 77, 39, 31]
    pre = [f"s_mul_i32 s8, s{S_W}, 5120", f"s_lshl_b32 s100, s{S_HI}, 2", f"s_add_u32 s100, s100, s{S_W}", f"s_add_u32 s8, s8, {16*5120}"]
    for gi in range(4):
        pre += [f"s_add_u32 s101, s100, {16+4*gi}", "s_and_b32 s101, s101, 31", f"s_mul_i32 s{16+gi}, s101, {32*1280}"]
    for s_ in pre[:7]: e(s_)
    rest = pre[7:]
    for h in range(1, 8):
        rest += [f"s_add_u32 s101, s{S_HI}, {h}", "s_and_b32 s101, s101, 7", f"s_lshl_b32 s{SOFF[2*(h-1)]}, s101, 15", f"s_add_u32 s{SOFF[2*(h-1)+1]}, s{SOFF[2*(h-1)]}, 4096"]
    put(2 * FS + 1, flag_store)
    def wload(gi, ee):
        def f():
            if opt.get("now", 0):
                vm_add(("W", gi)); return
            e(f"s_add_u32 m0, s8, {(gi-4)*20480 + (4096 if ee == 4 else 0)}")
            e(f"buffer_load_dwordx4 v{VWO[ee]}, s[{SWO}:{SWO+3}], s{16+gi-4} offen offset:{1024*ee if ee < 4 else 0}{WOF} lds"); vm_add(("W", gi))
        return f
    def oload(h, f):
        def fn():
            e(f"buffer_load_dwordx4 {odst(h, f)}, v{VL16}, s[{SOG}:{SOG+3}], s{SOFF[2*(h-1)+(f>>2)]} offen offset:{(f&3)*1024}{opt.get('olflag', ' sc1')}"); vm_add(("O", h, f // 2))
        return fn
    wl = [(gi, ee) for gi in range(6, 8) for ee in range(5)]
    def poll_issue():
        e(f"buffer_load_dword v{T3}, v{VPO}, s[{SF}:{SF+3}], 0 offen sc1"); vm_add("poll")
    def poll_use():
        wait_vm(["poll"])
        e(f"v_cmp_eq_u32 vcc, v{T2}, v{T3}")
        e(f"s_mov_b32 s{S_PM}, vcc_lo")
    rest = rest[9:17] + rest[:9] + rest[17:]
    for i, o in enumerate(rest): put(i // 2 if i // 2 < 2 * FS + 1 else i // 2 + 1, o)
    if SPEC:
        SI = opt.get("si", 9)
        for i in range(16): put(2 * SI + i, oload(1 + i // 8, i % 8))
        def spec_check(h):
            def f():
                lr, lb = newlab("sr"), newlab("sb")
                wait_vm([("O", h, 3)])
                b = 64 + 32 * (h - 1)
                e(f"v_max3_u32 v{T0}, v{b}, v{b+4}, v{b+8}")
                e(f"v_max3_u32 v{T1}, v{b+12}, v{b+16}, v{b+20}")
                e(f"v_max3_u32 v{T0}, v{T0}, v{b+24}, v{b+28}")
                e(f"v_max_u32 v{T0}, v{T0}, v{T1}")
                e(f"v_cmp_eq_u32 vcc, -1, v{T0}")
                e(f"s_cmp_eq_u32 s{S_FAST}, 0")
                e(f"s_cbranch_scc1 {lr}")
                e("s_cmp_lg_u64 vcc, 0")
                e(f"s_cbranch_scc1 {lr}")
                e.label(lb)
                def blk():
                    e.label(lr)
                    e("s_waitcnt vmcnt(0)")
                    e(f"s_mov_b32 s{S_PM}, 0")
                    if opt.get("diag", 0): e(f"s_add_u32 s60, s60, 1")
                    check_flag(h)
                    for ff in range(8):
                        e(f"buffer_load_dwordx4 {odst(h, ff)}, v{VL16}, s[{SOG}:{SOG+3}], s{SOFF[2*(h-1)+(ff>>2)]} offen offset:{(ff&3)*1024} sc1")
                    e("s_waitcnt vmcnt(0)")
                    e(f"s_branch {lb}")
                rare.append(blk)
            return f
        pre_slot = {20: spec_check(1), 40: spec_check(2)}
        put(2 * PS, poll_issue)
        PU = opt.get("pu", 24)
        put(2 * PU, poll_use)
        seq = []
        o4 = opt.get("o4", 2 * PU + 4)
        wfirst = opt.get("wfirst", 5)
        for i in range(wfirst): put(2 * (PS + 1 + i) + 1, wload(*wl.pop(0)))
    else:
        nw0 = opt.get("nw0", 5); nw1 = opt.get("nw1", 5)
        for i in range(nw0): put(2 * (FS + 1 + i) + 1, wload(*wl.pop(0)))
        put(2 * PS, poll_issue)
        for i in range(nw1): put(2 * (PS + i) + 1, wload(*wl.pop(0)))
        def poll_take():
            poll_use()
            check_flag(1)
            for f in range(8): oload(1, f)()
            check_flag(2)
            for f in range(4): oload(2, f)()
            stamp()
        pre_slot = {20: poll_take}
        seq = [("o", 2, f) for f in range(4, 8)]
        o4 = opt.get("o4", 42)
    osp = opt.get("osp", 42)
    wafter = str(opt.get("wafter", "34"))
    for h in range(3, 8):
        seq += [("o", h, f) for f in range(8)]
        for ch in wafter:
            if int(ch) == h:
                for i in range(5):
                    if wl: seq.append(("w",) + wl.pop(0))
    assert not wl
    pos = o4 * 10
    for it in seq:
        gi = (pos // 10) & ~1
        if it[0] == "o":
            if it[2] == 0: put(gi - 2, lambda h=it[1]: check_flag(h))
            put(gi, oload(it[1], it[2])); pos += osp
        else:
            put(gi, wload(it[1], it[2])); pos += opt.get("wsp10", 60)
    lg = []; st = dict(rd=0, cur=-1, waited=-1)
    SOUT = 8
    HR = opt.get("hr", 15); UR = opt.get("ur", 8)
    xs = [f"s_lshl_b32 s100, s{S_B}, 2", f"s_add_u32 s100, s100, s{S_HG}", f"s_mul_i32 s100, s100, {32*1280}",
          f"s_mul_i32 s101, s{S_HI}, 160", "s_add_u32 s100, s100, s101", f"s_sub_u32 s101, {1024*1280}, s100",
          f"v_and_b32 v2, 15, v{V_L}", "v_mul_u32_u24 v2, 1280, v2", f"v_lshrrev_b32 v3, 4, v{V_L}", "v_lshl_add_u32 v2, v3, 3, v2",
          "v_mov_b32 v5, 0xfffcfffc", f"s_add_u32 s{S_T0}, s{S_PO}, 4096",
          "s_mov_b32 s36, 0x00020002", "s_mov_b32 s37, 0", "s_mov_b32 s26, 0", f"s_lshl_b32 s27, s{S_W}, 10", f"v_add_u32 v3, s27, v{VL16}"]
    gend = put_free(xs, 44)
    xs2 = [[f"s_add_u32 s{SOUT}, s74, s100", f"s_addc_u32 s{SOUT+1}, s75, 0"], f"s_mov_b32 s{SOUT+2}, s101", f"s_mov_b32 s{SOUT+3}, 0x20000"]
    xs2 += [f"s_bfe_u32 s{80+j}, s{S_TAG}, {0x20000 + 2*j}" for j in range(4)]
    for i in range(1, 4):
        xs2 += [f"s_add_u32 s100, s{S_HG}, {i}", "s_and_b32 s100, s100, 3", "s_lshl_b32 s100, s100, 2", f"s_add_u32 s100, s100, s{S_HG}",
                "s_mul_i32 s100, s100, 5120", f"s_add_u32 s{12+i}, s100, s27", f"s_add_u32 s{16+i}, s100, 4096"]
    xs2 += [f"s_lshl_b32 s12, s{S_W}, 5", f"s_add_u32 s16, s12, {16*1280}", f"s_movk_i32 s20, {16*1280}"]
    xs2 = [(lambda x=x: [e(s_) for s_ in x]) if isinstance(x, list) else x for x in xs2]
    gw = max([2 * k + hh for k in range(N) for hh in range(2) if any(getattr(f, "__name__", "") == "f" for f in slots[k]["gap"][hh])])
    gend2 = put_free(xs2, max(gend, gw + 1))
    assert gend2 <= 2 * 118, (gend, gend2)
    def scale_ops():
        ops = ["s_lshr_b32 s71, s71, 23", "s_max_u32 s71, s71, 1", "s_min_u32 s71, s71, 239",
               "s_sub_u32 s64, 254, s71", "s_lshl_b32 s64, s64, 23", f"s_add_u32 s65, s71, {HR}", "s_lshl_b32 s65, s65, 23",
               f"s_sub_i32 s66, s71, {UR}", "s_max_i32 s66, s66, 0", "s_lshl_b32 s66, s66, 23"]
        for j in range(4):
            ops += [f"s_bfe_u32 s72, s71, {0x20000 + 2*j}", "s_lshl_b32 s72, s72, 16", f"s_or_b32 s{67+j}, s72, s{80+j}"]
        return ops
    def amax_ops(tn, dst):
        a, b = ACC + 4 * tn, ACC + 20 + 4 * tn
        return [f"v_max3_f32 v{dst}, |v{a}|, |v{a+1}|, |v{a+2}|", f"v_max3_f32 v{dst}, v{dst}, |v{a+3}|, |v{b}|",
                f"v_max3_f32 v{dst}, v{dst}, |v{b+1}|, |v{b+2}|", f"v_max_f32_e64 v{dst}, v{dst}, |v{b+3}|"]
    assert WF
    so = amax_ops(1, T0) + [f"v_readlane_b32 s71, v{T0}, 0", f"v_readlane_b32 s72, v{T0}, 21", f"v_readlane_b32 s73, v{T0}, 42", f"v_readlane_b32 s100, v{T0}, 63",
                            "s_max_u32 s71, s71, s72", "s_max_u32 s73, s73, s100", "s_max_u32 s71, s71, s73"] + scale_ops()
    for i, o in enumerate(so): put(2 * 120 + 1 + i * 16 // len(so), o)
    def send(tn):
        lown, ljoin, lr, lb = newlab("x"), newlab("x"), newlab("xr"), newlab("xb")
        d = 200 + 4 * tn
        e(f"s_cmp_eq_u32 s{S_W}, s{S_HG}")
        e(f"s_cbranch_scc1 {lown}")
        for o in amax_ops(tn, T0): e(o)
        e(f"v_cmp_le_f32 vcc, s65, v{T0}")
        e(f"v_cmp_le_f32 s[72:73], s66, v{T0}")
        e("s_cmp_lg_u64 vcc, 0")
        e(f"s_cbranch_scc1 {lr}")
        e("s_cmp_eq_u64 s[72:73], 0")
        e(f"s_cbranch_scc1 {lr}")
        e.label(lb)
        vals = [ACC + 4 * tn + i for i in range(4)] + [ACC + 20 + 4 * tn + i for i in range(4)]
        for j in range(4): e(f"v_fma_mixlo_f16 v{d+j}, v{vals[2*j]}, s64, 0")
        for j in range(4): e(f"v_fma_mixhi_f16 v{d+j}, v{vals[2*j+1]}, s64, 0")
        for j in range(4): e(f"v_and_or_b32 v{d+j}, v{d+j}, v5, s{67+j}")
        e(f"buffer_store_dwordx4 {vr(d,4)}, v{VL16}, s[{SP}:{SP+3}], s{S_PO if tn < 4 else S_T0} offen offset:{(tn&3)*1024}{opt.get('psflag', ' sc1')}")
        e(f"s_branch {ljoin}")
        e.label(lown)
        e("s_nop 7")
        for tau in (tn, 5 + tn):
            e(f"ds_write_b128 v{VL16}, {vr(ACC+4*tau,4)} offset:{tau*1024}")
        e.label(ljoin)
        def blk():
            e.label(lr)
            e(f"v_mov_b32 v{T1}, v{T0}"); e("s_nop 1"); e(f"v_permlane32_swap_b32 v{T1}, v{T0}"); e(f"v_max_f32 v{T0}, v{T0}, v{T1}")
            e(f"v_mov_b32 v{T1}, v{T0}"); e("s_nop 1"); e(f"v_permlane16_swap_b32 v{T1}, v{T0}"); e(f"v_max_f32 v{T0}, v{T0}, v{T1}")
            for r in (8, 4, 2, 1):
                e(f"v_max_f32_dpp v{T0}, v{T0}, v{T0} row_ror:{r} row_mask:0xf bank_mask:0xf")
            e(f"v_readfirstlane_b32 s71, v{T0}")
            for o in scale_ops(): e(o)
            e(f"s_branch {lb}")
        rare.append(blk)
    for tn in range(4):
        slots[120 + 8 * (tn + 1) + 1]["gap"][1].insert(0, lambda tn=tn: send(tn))
    def issue_reads(upto):
        while st["rd"] <= upto and st["rd"] < N:
            s = slots[st["rd"]]
            if s["unit"] != st["cur"]:
                st["cur"] = s["unit"]
                if st["cur"] == 4 and not opt.get("onebar", 0):
                    e("s_barrier")
                if st["cur"] == (4 if opt.get("onebar", 0) else 6):
                    wait_vm([("W", 6), ("W", 7)])
                    e("s_barrier")
            for r in s["reads"]:
                if pend is not None and r is s["reads"][1]: pend.append((r, st["rd"]))
                else:
                    e(r); lg.append(st["rd"])
            st["rd"] += 1
    pend = None
    issue_reads(LA - 1)
    for k in range(N):
        if k in pre_slot: pre_slot[k]()
        if slots[k]["tn"] == 0 and k >= (60 if SPEC else 20):
            wait_vm([("O", slots[k]["c"] // 4, slots[k]["c"] & 3)])
            if k % 20 == 0 and k <= 120 and (opt.get("diag", 0) == 3 or (opt.get("diag", 0) == 4 and k <= 60)): stamp()
        if k > st["waited"]:
            kk = k + 1 if (k + 1 < st["rd"]) else k
            idx = max(i for i, t in enumerate(lg) if t == kk)
            e(f"s_waitcnt lgkmcnt({min(15, len(lg)-1-idx)})")
            st["waited"] = kk
        e(slots[k]["mf"][0])
        pend = []
        issue_reads(k + LA)
        for fn in slots[k]["gap"][0]: fn()
        e(slots[k]["mf"][1])
        for r, t in pend:
            e(r); lg.append(t)
        for fn in slots[k]["gap"][1]: fn()
    stamp()
    send(4)
    stamp()
    l1, l2 = newlab("q"), newlab("q")
    e.label(l1)
    for i in range(3):
        ls = newlab("q")
        e(f"s_bitcmp1_b32 s26, {i}")
        e(f"s_cbranch_scc1 {ls}")
        e(f"buffer_load_dwordx4 {vr(32+8*i,4)}, v{VL16}, s[{SP}:{SP+3}], s{13+i} offen sc1")
        e(f"s_cmp_lg_u32 s{S_W}, s{S_HG}"); e(f"s_cbranch_scc1 {ls}")
        e(f"buffer_load_dwordx4 {vr(36+8*i,4)}, v{VL16}, s[{SP}:{SP+3}], s{17+i} offen sc1")
        e.label(ls)
    e("s_add_u32 s37, s37, 1")
    lfirst = newlab("q")
    e("s_cmp_lg_u32 s37, 1")
    e(f"s_cbranch_scc1 {lfirst}")
    e("s_waitcnt lgkmcnt(0)")
    e("s_barrier")
    e(f"ds_read_b128 v[64:67], v3")
    e(f"ds_read_b128 v[68:71], v3 offset:5120")
    e.label(lfirst)
    e("s_waitcnt vmcnt(0)")
    for i in range(3):
        ls, lt = newlab("q"), newlab("q")
        b = 32 + 8 * i
        e(f"s_bitcmp1_b32 s26, {i}")
        e(f"s_cbranch_scc1 {ls}")
        e(f"v_xor_b32 v4, s80, v{b}")
        for jj in range(1, 4): e(f"v_bitop3_b32 v4, v4, v{b+jj}, s{80+jj} bitop3:0xf6")
        e(f"s_cmp_lg_u32 s{S_W}, s{S_HG}"); e(f"s_cbranch_scc1 {lt}")
        for jj in range(4): e(f"v_bitop3_b32 v4, v4, v{b+4+jj}, s{80+jj} bitop3:0xf6")
        e.label(lt)
        e("v_and_b32 v4, 3, v4")
        e("v_cmp_ne_u32 vcc, 0, v4")
        e("s_cmp_lg_u64 vcc, 0")
        e(f"s_cbranch_scc1 {ls}")
        e(f"s_bitset1_b32 s26, {i}")
        e.label(ls)
    e("s_cmp_eq_u32 s26, 7")
    e(f"s_cbranch_scc1 {l2}")
    e(f"s_cmp_lt_u32 s37, {SPIN}")
    e(f"s_cbranch_scc1 {l1}")
    e.label(l2)
    stamp()
    def decode(off, acc, so0, so1, imm):
        for i in range(3):
            b = 32 + 8 * i + off
            for jj in range(4): e(f"v_readfirstlane_b32 s{64+4*i+jj}, v{b+jj}")
        for i in range(3):
            b = 32 + 8 * i + off
            for jj in range(4): e(f"v_and_or_b32 v{b+jj}, v{b+jj}, v5, s36")
            for jj in range(4): e(f"s_bfe_u32 s{64+4*i+jj}, s{64+4*i+jj}, 0x20010")
            e(f"s_lshl2_add_u32 s{64+4*i+2}, s{64+4*i+3}, s{64+4*i+2}")
            e(f"s_lshl2_add_u32 s{64+4*i+1}, s{64+4*i+2}, s{64+4*i+1}")
            e(f"s_lshl2_add_u32 s{64+4*i}, s{64+4*i+1}, s{64+4*i}")
            e(f"s_lshl_b32 s{64+4*i}, s{64+4*i}, 23")
        e("s_waitcnt lgkmcnt(0)")
        for i in range(3):
            b = 32 + 8 * i + off
            for v_ in range(8):
                e(f"v_fma_mix_f32 v{acc[v_]}, v{b+v_//2}, s{64+4*i}, v{acc[v_]} op_sel:[{v_&1},0,0] op_sel_hi:[1,0,0]")
        for z in range(2):
            e(f"v_cvt_pk_bf16_f32 v{80+off+2*z}, v{acc[4*z]}, v{acc[4*z+1]}")
            e(f"v_cvt_pk_bf16_f32 v{81+off+2*z}, v{acc[4*z+2]}, v{acc[4*z+3]}")
            e(f"buffer_store_dwordx2 {vr(80+off+2*z,2)}, v2, s[{SOUT}:{SOUT+3}], {[so0, so1][z]} offen offset:{imm}")
    ldone = newlab("r")
    decode(0, list(range(64, 72)), "s12", "s16", 0)
    e(f"s_cmp_lg_u32 s{S_W}, s{S_HG}"); e(f"s_cbranch_scc1 {ldone}")
    decode(4, [ACC + 16 + i for i in range(4)] + [ACC + 36 + i for i in range(4)], "0", "s20", 128)
    e.label(ldone)

if __name__ == "__main__":
    out = sys.argv[1]
    opt = {}
    for a in sys.argv[2:]:
        k, v = a.split("=")
        if k not in ("kmix", "wpl", "wsp", "wspa", "wspb", "wafter", "pfu", "pfa"):
            try: v = int(v)
            except:
                try: v = float(v)
                except: pass
        if k.endswith("flag"): v = (" " + v.replace("+", " ")) if v not in ("none", 0) else ""
        opt[k] = v
    open(out, "w").write(gen(opt))
```

```python
import sys, math
sys.path.insert(0, "gen")
from asmlib import *
NAME = "standalone__gqa_block_cached__near_ridge"
WS_O = 0
WS_P = 16 << 20
WS_F = 28 << 20
WS_DIAG = 32 << 20
SCALE = math.log2(math.e) / math.sqrt(128.0)
SPIN = 0x40000
NONCE_OFF = 256 * 1024

def cost(s):
    if not isinstance(s, str): return s.cost
    op = s.split()[0]
    if op in ("v_exp_f32", "v_rcp_f32"): return 8
    if op.startswith("v_mfma"): return 8
    return 4

class Act:
    def __init__(self, fn, cost): self.fn = fn; self.cost = cost

def gen(opt):
    e = Asm()
    kname = NAME + "_kernel"
    TICK = opt.get("tick", 0)
    if TICK:
        e.raw("; @launch kernel=tick0_kernel grid=(1,1,1) block=(64,1,1) lds=0")
        e.raw(f"; @launch kernel={kname} grid=(256,1,1) block=(256,1,1) lds=163840")
        e.raw("; @launch kernel=tick1_kernel grid=(1,1,1) block=(64,1,1) lds=0")
    else:
        e.raw("; @launch grid=(256,1,1) block=(256,1,1) lds=163840")
    e.raw('.amdgcn_target "amdgcn-amd-amdhsa--gfx950"')
    e.raw(".text")
    kernel_header(e, kname)
    LA = opt.get("LA", 6)
    D = opt.get("d", 3)
    KVF = opt.get("kvflag", " nt")
    XWF = opt.get("xwflag", "")
    WOF = opt.get("woflag", "")
    diag = opt.get("diag", 0)
    FORCE_SLOW = opt.get("slow", 0)
    STOP = opt.get("stop", 0)
    PAIRW = opt.get("pairw", 1)
    ROLES = opt.get("roles", 1)
    NST = opt.get("nst", 0) if ROLES else 0
    S_ROLE = 62
    AKV = 68
    lab = [0]
    def newlab(p):
        lab[0] += 1
        return f"L_{p}{lab[0]}"
    nstamp = [0]
    def stamp():
        if not diag or diag == 9: return
        k = nstamp[0]; nstamp[0] += 1
        assert k < 21
        e("s_memtime s[92:93]")
        e("s_waitcnt lgkmcnt(0)")
        e(f"s_mov_b32 s{40+k}, s92")
    S_W, S_B, S_HG, S_HI, S_H = 3, 4, 5, 6, 7
    SX, SW, SK, SV, SO = 8, 12, 16, 20, 24
    S_W4K, S_T0, S_T1, S_SO, S_C = 28, 29, 30, 31, 32
    S_PO, S_KT, S_FAST, S_SX, S_SW2 = 33, 34, 35, 36, 37
    S_WL, S_WG = 38, 39
    SWO, SOG, SF, SP = 80, 84, 88, 96
    SD = SOG
    VK, VV, VAX, VBW, VAK = 2, 6, 7, 8, 9
    VL16, VDB = 10, 11
    RA = 12
    VM, VMC, VAL = 20, 21, 22
    VWO = [0, 1, 23, 7, 29]
    V_L, T0, T1, T2, T3 = 24, 25, 26, 27, 28
    T4 = 29
    VZ, VPO = 30, 31
    S_TAG = 63
    QF = 32
    Oacc, Sreg = 64, 128
    VX, VW = 128, 132
    R = LA + 2
    AF = 0; XF = 4 * R; XR = 3
    ONES = 44; LACC = 48
    assert XF + 4 * XR <= ONES
    AWO = 64
    SPEC = opt.get('spec', 0)
    SO2 = 56
    assert not (SPEC and diag and diag != 9) or opt.get('fewstamps', 0)
    KOFF = opt.get('koff', 0)
    AQ = 32; NEGM = 32; LS = 48; S_RS = 61
    THR = opt.get('thr', 8.0)
    rare = []
    assert R == 8

    e("s_cmp_ge_u32 s2, 256")
    e("s_cbranch_scc1 L_done")
    if diag or opt.get("pad", 0): e("s_memrealtime s[94:95]")
    if diag: e("s_mov_b32 s60, 0")
    e("s_load_dwordx16 s[64:79], s[0:1], 0")
    if opt.get("pf", 1):
        e("s_getpc_b64 s[100:101]")
        e("s_and_b32 s100, s100, 0xffffff00")
        e("s_lshr_b32 s99, s2, 3")
        e("s_lshl_b32 s99, s99, 10")
        e("v_and_b32 v3, 63, v0")
        e("v_lshlrev_b32 v3, 4, v3")
        e("v_lshrrev_b32 v4, 6, v0")
        e("v_lshl_add_u32 v3, v4, 15, v3")
        e("v_add_u32 v3, s99, v3")
        e(f"v_min_u32 v3, (L_done-{kname}-16)&0xfffffff0, v3")
        e("v_mov_b32 v5, s101")
        e("v_add_co_u32 v4, vcc, s100, v3")
        e("v_addc_co_u32 v5, vcc, 0, v5, vcc")
        e("global_load_dwordx4 a[252:255], v[4:5], off")
    e("v_lshrrev_b32 v1, 6, v0")
    e(f"v_and_b32 v{V_L}, 63, v0")
    e(f"v_readfirstlane_b32 s{S_W}, v1")
    e("s_and_b32 s100, s2, 1")
    e("s_lshl_b32 s100, s100, 2")
    e("s_bfe_u32 s101, s2, 0x20003")
    e(f"s_add_u32 s{S_B}, s100, s101")
    e(f"s_bfe_u32 s{S_HG}, s2, 0x20001")
    e(f"s_lshr_b32 s{S_HI}, s2, 5")
    e(f"s_lshl_b32 s{S_H}, s{S_HG}, 3")
    e(f"s_add_u32 s{S_H}, s{S_H}, s{S_HI}")
    if opt.get("homo", 1): e(f"s_mov_b32 s{S_ROLE}, s101")
    else: e(f"s_add_u32 s{S_ROLE}, s101, s{S_HI}")
    e(f"s_and_b32 s{S_ROLE}, s{S_ROLE}, {1 if ROLES else 0}")
    e("s_lshl_b32 s100, s101, 2")
    e(f"s_lshr_b32 s{S_KT}, 0x8530, s100")
    e(f"s_and_b32 s{S_KT}, s{S_KT}, 15")
    e(f"s_add_u32 s{S_KT}, s{S_KT}, s{S_HI}")
    e(f"s_cmp_ge_u32 s{S_KT}, 10")
    e("s_cselect_b32 s100, 10, 0")
    e(f"s_sub_u32 s{S_KT}, s{S_KT}, s100")
    XPF = opt.get("xpf", 1) and ROLES
    NBL = opt.get("nbl", 3)
    if XPF and not opt.get("arot", 0): e(f"s_mov_b32 s{S_KT}, 0")
    e(f"s_lshl_b32 s{S_W4K}, s{S_W}, 12")
    e(f"v_lshrrev_b32 v{T0}, 4, v{V_L}")
    e(f"v_and_b32 v{T1}, 15, v{V_L}")
    e(f"v_lshrrev_b32 v{T2}, 3, v{V_L}")
    e(f"s_lshl_b32 s{S_T0}, s{S_W}, 5")
    e(f"v_add_u32 v{T2}, s{S_T0}, v{T2}")
    e(f"v_mul_u32_u24 v{T2}, 1280, v{T2}")
    e(f"v_and_b32 v{T3}, 7, v{V_L}")
    e(f"v_xor_b32 v{T4}, v{T0}, v{T3}")
    e(f"v_lshl_add_u32 v{VX}, v{T4}, 4, v{T2}")
    e(f"v_add_u32 v{VX+2}, {2*9216}, v{VX}")
    e(f"v_xor_b32 v{T4}, 64, v{VX}")
    e(f"v_add_u32 v{VX+1}, 9216, v{T4}")
    e(f"v_add_u32 v{VX+3}, {3*9216}, v{T4}")
    e(f"v_lshlrev_b32 v{T2}, 2, v{T0}")
    e(f"v_xor_b32 v{T2}, v{T2}, v{T1}")
    e(f"v_lshlrev_b32 v{T2}, 4, v{T2}")
    e(f"s_lshl_b32 s{S_T0}, s{S_W}, 17")
    e(f"v_lshl_add_u32 v{VW}, v{T0}, 13, s{S_T0}")
    e(f"v_add_u32 v{VW}, v{VW}, v{T2}")
    for jj in range(1, 4):
        e(f"v_add_u32 v{VW+jj}, {jj*(32768-1024)}, v{VW}")
    e(f"v_lshl_add_u32 v{T3}, v{T0}, 8, s{S_W4K}")
    e(f"v_add_u32 v{VV}, v{T2}, v{T3}")
    e("s_waitcnt lgkmcnt(0)")
    e(f"s_mul_i32 s{S_T0}, s{S_B}, 163840")
    srd(e, SX, 64, 65, S_T0, 163840)
    e(f"s_lshl_b32 s{S_T0}, s{S_H}, 8")
    e(f"s_sub_u32 s{S_T1}, {640*8192}, s{S_T0}")
    srd(e, SW, 70, 71, S_T0, f"s{S_T1}")
    stamp()
    vmbox = [[]]
    def vm_add(tag, roles=None): vmbox[0].append(tag)
    def wait_vm(tags):
        vm = vmbox[0]
        idx = max(i for i, t in enumerate(vm) if t in tags)
        e(f"s_waitcnt vmcnt({min(63, len(vm) - 1 - idx)})")
    slot_of = {}
    for j in range(10):
        slot_of[("x", j)] = j % 3
        slot_of[("w", j)] = [3, 4, 8][j % 3]
    kvt = [("k",0),("k",1),("k",2),("k",3),("v",0),("v",1),("k",4),("k",5),("v",2),("v",3),("k",6),("k",7),("v",4),("v",5),("v",6),("v",7)]
    for i, t in enumerate(kvt): slot_of[t] = 5 + (i + 4) % 5
    assert D == 3 and NST <= 3
    def dma_ops(t):
        kind, j = t
        so = slot_of[t] * 16384
        out = []
        for jj in range(4):
            g = []
            if jj == 0:
                g.append(f"s_add_u32 m0, s{S_W4K}, {so}")
                if kind == "x":
                    g += [f"s_lshl_b32 s{S_SX}, s{S_KT}, 7", f"s_lshl_b32 s{S_SW2}, s{S_KT}, 19", f"s_add_u32 s{S_KT}, s{S_KT}, 1",
                          f"s_cmp_ge_u32 s{S_KT}, 10", f"s_cselect_b32 s{S_KT}, 0, s{S_KT}"]
                elif kind in "kv":
                    g.append(f"s_mov_b32 s{S_SO}, {16384*j}")
            elif kind in "kv" and t in kvt[:4]:
                g.append(f"s_add_u32 m0, s{S_W4K}, {so}")
            if kind == "x":
                g.append(f"buffer_load_dwordx4 v{VX+jj}, s[{SX}:{SX+3}], s{S_SX} offen offset:{1024*jj}{XWF} lds")
            elif kind == "w":
                g.append(f"buffer_load_dwordx4 v{VW+jj}, s[{SW}:{SW+3}], s{S_SW2} offen offset:{1024*jj}{XWF} lds")
            elif kind == "k":
                g.append(f"buffer_load_dwordx4 v{VK+jj}, s[{SK}:{SK+3}], s{S_SO} offen offset:{1024*jj}{KVF} lds")
            else:
                g.append(f"buffer_load_dwordx4 v{VV}, s[{SV}:{SV+3}], s{S_SO} offen offset:{1024*jj}{KVF} lds")
            out.append(g)
        return out
    def emit_group(g, tag, roles="AB"):
        for s in g: e(s)
        vm_add(tag, roles)
    def kv_setup():
        for jj in range(4):
            e(f"v_add_u32 v{T2}, {4*jj}, v{T0}")
            e(f"v_xor_b32 v{T2}, v{T2}, v{T1}")
            e(f"v_lshl_add_u32 v{VK+jj}, v{T2}, 4, v{T3}")
        e(f"s_lshl_b32 s{S_T1}, s{S_B}, 5")
        e(f"s_add_u32 s{S_T1}, s{S_T1}, s{S_H}")
        e(f"s_lshl_b32 s{S_T0}, s{S_T1}, 17")
        srd(e, SK, 66, 67, S_T0, 131072)
        srd(e, SV, 68, 69, S_T0, 131072)
    def burst():
        for n in range(NBL):
            for g in dma_ops(kvt[n]): emit_group(g, kvt[n])
        for n in range(4, 4 + NST):
            kind, j = kvt[n]
            e(f"s_mov_b32 s{S_SO}, {16384*j}")
            for jj in range(4):
                vo, sr_ = (VK + jj, SK) if kind == "k" else (VV, SV)
                e(f"buffer_load_dwordx4 {ar(AKV+16*(n-4)+4*jj,4)}, v{vo}, s[{sr_}:{sr_+3}], s{S_SO} offen offset:{1024*jj}{KVF}"); vm_add(kvt[n])
    vmB_pre = []
    if XPF:
        e(f"s_cmp_eq_u32 s{S_ROLE}, 0")
        e("s_cbranch_scc1 L_noxpf")
        e(f"s_lshl_b32 s100, s{S_HI}, 1"); e("s_bfe_u32 s101, s2, 0x10004"); e("s_add_u32 s100, s100, s101")
        e(f"s_lshl_b32 s100, s100, 2"); e(f"s_add_u32 s100, s100, s{S_W}")
        e(f"s_lshl_b32 s101, s100, 13")
        e(f"v_lshl_add_u32 v140, v{V_L}, 4, s101")
        e("s_mul_i32 s101, s100, 10240")
        e(f"v_lshrrev_b32 v141, 3, v{V_L}"); e("v_mul_u32_u24 v141, 1280, v141")
        e(f"v_and_b32 v142, 7, v{V_L}"); e("v_lshl_add_u32 v141, v142, 4, v141"); e("v_add_u32 v141, s101, v141")
        e("s_and_b32 s100, s2, 1"); e(f"s_mul_i32 s100, s100, {4*163840}")
        srd(e, SK, 64, 65, 100, 4 * 163840)
        e(f"s_lshl_b32 s100, s{S_HG}, 11"); e(f"s_sub_u32 s101, {640*8192}, s100")
        srd(e, SV, 70, 71, 100, "s101")
        for j in range(opt.get("nxpf", 10)):
            e(f"s_movk_i32 s100, {128*j}"); e(f"s_mov_b32 s101, {524288*j}")
            e(f"buffer_load_dwordx4 a[248:251], v140, s[{SV}:{SV+3}], s101 offen{XWF}")
            e(f"buffer_load_dwordx4 a[248:251], v141, s[{SK}:{SK+3}], s100 offen{XWF}")
            e(f"buffer_load_dwordx4 a[248:251], v140, s[{SV}:{SV+3}], s101 offen offset:1024{XWF}")
        if opt.get("bpos", -1) < 0:
            kv_setup()
            burst()
        vmB_pre = list(vmbox[0]); vmbox[0] = []
        e.label("L_noxpf")
    ini = [dma_ops(("x", 0)), dma_ops(("w", 0)), dma_ops(("x", 1)), dma_ops(("w", 1))]
    for i, t in enumerate((("x", 0), ("w", 0), ("x", 1))):
        for g in ini[i]: emit_group(g, t)
    stamp()
    kv_setup()
    e(f"s_mul_i32 s{S_T0}, s{S_HG}, {1024*1280}")
    if opt.get("pfb", 4) == 5:
        e("s_lshr_b32 s100, s2, 3"); e(f"s_lshl_b32 s100, s100, 2"); e(f"s_add_u32 s100, s100, s{S_W}"); e("s_mul_i32 s100, s100, 10240")
    else:
        e(f"s_lshl_b32 s100, s{S_HI}, 1"); e("s_bfe_u32 s101, s2, 0x10004"); e("s_add_u32 s100, s100, s101")
        e(f"s_lshl_b32 s100, s100, 2"); e(f"s_add_u32 s100, s100, s{S_W}"); e("s_mul_i32 s100, s100, 20480")
    e(f"s_add_u32 s{S_T0}, s{S_T0}, s100")
    srd(e, SO, 72, 73, S_T0, 20480)
    srd(e, SD, 76, 77, None, 256)
    if SPEC:
        e(f"s_lshl_b32 s100, s{S_B}, 5"); e(f"s_add_u32 s100, s100, s{S_H}"); e("s_lshl_b32 s100, s100, 2"); e(f"s_add_u32 s100, s100, s{S_W}"); e("s_lshl_b32 s100, s100, 13")
        srd(e, SO2, 78, 79, 100, 8192)
    e(f"s_mul_i32 s{S_T0}, s{S_HG}, {1024*1280}")
    e(f"s_mul_i32 s{S_T1}, s{S_HI}, 160")
    e(f"s_add_u32 s{S_T0}, s{S_T0}, s{S_T1}")
    e(f"s_sub_u32 s{S_T1}, {4096*1280}, s{S_T0}")
    srd(e, SWO, 72, 73, S_T0, f"s{S_T1}")
    e(f"s_mov_b32 s{S_T0}, {WS_F}")
    srd(e, SF, 78, 79, S_T0, 256 * 1024 + 128)
    e(f"s_lshl_b32 s{S_T0}, s{S_B}, 3"); e(f"s_add_u32 s{S_T0}, s{S_T0}, s{S_HI}")
    e(f"s_mul_i32 s{S_T0}, s{S_T0}, 81920"); e(f"s_add_u32 s{S_T0}, s{S_T0}, {WS_P}")
    srd(e, SP, 78, 79, S_T0, 81920)
    e(f"s_lshl_b32 s{S_PO}, s{S_HG}, 2"); e(f"s_add_u32 s{S_PO}, s{S_PO}, s{S_W}"); e(f"s_mul_i32 s{S_PO}, s{S_PO}, 5120")

    e(f"v_and_b32 v{T0}, 31, v{V_L}")
    e(f"v_lshrrev_b32 v{T1}, 5, v{V_L}")
    e(f"v_bfe_u32 v{T2}, v{V_L}, 1, 3")
    e(f"v_xor_b32 v{T2}, v{T2}, v{T1}")
    e(f"v_lshlrev_b32 v{T2}, 4, v{T2}")
    e(f"v_lshl_add_u32 v{T3}, v{T0}, 7, s{S_W4K}")
    e(f"v_add_u32 v{VAX}, v{T2}, v{T3}")
    e(f"v_and_b32 v{T2}, 19, v{T0}")
    e(f"v_bfe_u32 v{T3}, v{T0}, 2, 1")
    e(f"v_lshl_or_b32 v{T2}, v{T3}, 3, v{T2}")
    e(f"v_bfe_u32 v{T3}, v{T0}, 3, 1")
    e(f"v_lshl_or_b32 v{T2}, v{T3}, 2, v{T2}")
    e(f"v_and_b32 v{T3}, 15, v{T2}")
    e(f"v_xor_b32 v{T3}, v{T3}, v{T1}")
    e(f"v_lshlrev_b32 v{T3}, 4, v{T3}")
    e(f"v_lshl_add_u32 v{VAK}, v{T2}, 8, v{T3}")
    e(f"v_bfe_u32 v{T2}, v{V_L}, 2, 2")
    e(f"v_mul_u32_u24 v{T2}, 320, v{T2}")
    e(f"v_lshl_add_u32 v{T2}, v{T1}, 11, v{T2}")
    e(f"v_bfe_u32 v{T3}, v{V_L}, 4, 1")
    e(f"v_lshl_add_u32 v{T2}, v{T3}, 5, v{T2}")
    e(f"v_and_b32 v{T3}, 1, v{V_L}")
    e(f"v_lshl_add_u32 v{T2}, v{T3}, 4, v{T2}")
    e(f"v_bfe_u32 v{T3}, v{V_L}, 1, 1")
    e(f"v_lshl_add_u32 v{VBW}, v{T3}, 3, v{T2}")
    e(f"v_lshlrev_b32 v{VL16}, 4, v{V_L}")
    e(f"s_mov_b32 s{S_C}, {f32bits(SCALE)}")
    for g in ini[3]: emit_group(g, ("w", 1))
    e(f"s_mov_b32 s100, {NONCE_OFF}")
    e(f"buffer_load_dword v{VDB}, off, s[{SF}:{SF+3}], s100 sc1"); vm_add("oldn")
    e("v_or_b32 v1, s2, v0")
    e(f"v_mov_b32 v{T0}, 0x7fffffff")
    e("v_cmp_eq_u32 vcc, 0, v1")
    e(f"v_cndmask_b32 v{VZ}, v{T0}, 0, vcc")
    e(f"v_and_b32 v{T0}, 7, v{V_L}")
    e("s_and_b32 s100, s2, 31"); e("s_lshl_b32 s100, s100, 10")
    e(f"v_lshl_add_u32 v{VPO}, v{T0}, 15, s100")
    for ee in range(5):
        e(f"v_add_u32 v{T0}, {64*ee}, v{V_L}")
        e(f"v_mul_u32_u24 v{T1}, 6554, v{T0}")
        e(f"v_lshrrev_b32 v{T1}, 16, v{T1}")
        e(f"v_mul_u32_u24 v{T2}, 10, v{T1}")
        e(f"v_sub_u32 v{T2}, v{T0}, v{T2}")
        e(f"v_mul_u32_u24 v{T1}, 1280, v{T1}")
        if ee == 3:
            e(f"v_lshl_add_u32 v{T1}, v{T2}, 4, v{T1}")
            e(f"v_subrev_u32 v{T1}, {1024*ee}, v{T1}")
            e(f"v_accvgpr_write_b32 a{AWO}, v{T1}")
        elif 0 < ee < 4:
            e(f"v_lshl_add_u32 v{T1}, v{T2}, 4, v{T1}")
            e(f"v_subrev_u32 v{VWO[ee]}, {1024*ee}, v{T1}")
        else:
            e(f"v_lshl_add_u32 v{VWO[ee]}, v{T2}, 4, v{T1}")

    def attention(role):
        slots = []
        def add_slot(unit, reads, mf, tag=None):
            slots.append(dict(unit=unit, reads=reads, mf=mf, fill=[], fill2=[], dma=[], post=[], tag=tag))
        ring = [0]
        def newbuf():
            b = AF + 4 * (ring[0] % R); ring[0] += 1
            return b
        for j in range(10):
            for s in range(4):
                xi = (j * 4 + s) % XR
                for t in range(4):
                    ab = newbuf()
                    rd = []
                    if t == 0: rd.append(f"ds_read_b128 {ar(XF+4*xi,4)}, v{RA+4+s}")
                    rd.append(f"ds_read_b64_tr_b16 {ar(ab,2)}, v{RA+t} offset:{s*4096}")
                    rd.append(f"ds_read_b64_tr_b16 {ar(ab+2,2)}, v{RA+t} offset:{s*4096+1024}")
                    c = "0" if (j == 0 and s == 0) else vr(Oacc+16*t, 16)
                    add_slot(("s", j), rd, f"v_mfma_f32_32x32x16_bf16 {vr(Oacc+16*t,16)}, {ar(ab,4)}, {ar(XF+4*xi,4)}, {c}")
        def sbuf(q): return Sreg + 64 * (q & 1)
        def frag_ops(q, f):
            b = sbuf(q) + 8 * f
            ops = [f"v_add_f32 v{b+i}, v{b+i}, v{NEGM}" for i in range(8)] if q == 0 else []
            ops += [f"v_exp_f32 v{b+i}, v{b+i}" for i in range(8)]
            if q == 0 and f == 0:
                ops += [f"v_add_f32 v{LS+i}, v{b+i}, v{b+4+i}" for i in range(4)]
            else:
                ops += [f"v_add_f32 v{LS+(i&3)}, v{LS+(i&3)}, v{b+i}" for i in range(8)]
            ops += [f"v_cvt_pk_bf16_f32 v{b+i}, v{b+2*i}, v{b+2*i+1}" for i in range(4)]
            return ops
        def max_ops(q, sg):
            b = sbuf(q) + 16 * sg
            ops = []
            for i in range(8):
                if sg == 0 and i == 0:
                    ops.append(f"v_max_f32 v{VM}, v{b}, v{b+1}")
                else:
                    ops.append(f"v_max3_f32 v{VM}, v{VM}, v{b+2*i}, v{b+2*i+1}")
            return ops
        def check1(q):
            def f():
                lr, lb = newlab("rr"), newlab("rb")
                e(f"v_cmp_lt_f32 vcc, {f32bits(float(THR))}, v{VM}")
                e("s_cmp_lg_u64 vcc, 0")
                e(f"s_cbranch_scc1 {lr}")
                e.label(lb)
                def blk():
                    e.label(lr)
                    e(f"v_mov_b32 v{T0}, v{VM}")
                    e("s_nop 1")
                    e(f"v_permlane32_swap_b32 v{T0}, v{VM}")
                    e(f"v_max3_f32 v{VM}, v{T0}, v{VM}, 0")
                    e(f"v_exp_f32 v{VAL}, -v{VM}")
                    for i in range(64): e(f"v_sub_f32 v{sbuf(q)+i}, v{sbuf(q)+i}, v{VM}")
                    for i in range(4): e(f"v_mul_f32 v{LS+i}, v{LS+i}, v{VAL}")
                    for i in range(16): e(f"v_sub_f32 v{NEGM+i}, v{NEGM+i}, v{VM}")
                    e(f"s_mov_b32 s{S_RS}, 1")
                    e("s_nop 1")
                    e(f"s_branch {lb}")
                rare.append(blk)
            return Act(f, 12)
        def check2():
            def f():
                lr, lb = newlab("rr"), newlab("rb")
                e(f"s_cmp_lg_u32 s{S_RS}, 0")
                e(f"s_cbranch_scc1 {lr}")
                e.label(lb)
                def blk():
                    e.label(lr)
                    e("s_nop 15")
                    for i in range(64): e(f"v_mul_f32 v{Oacc+i}, v{Oacc+i}, v{VAL}")
                    e(f"s_mov_b32 s{S_RS}, 0")
                    e("s_nop 1")
                    e(f"s_branch {lb}")
                rare.append(blk)
            return Act(f, 8)
        seg = {}
        def add_qk(q):
            a = len(slots)
            for jl in range(2):
                unit = ("k", 2*q + jl)
                for u in range(2):
                    sg = 2 * jl + u
                    sb = sbuf(q) + 16 * sg
                    for m in range(8):
                        ab = newbuf()
                        c = ("0" if q == 0 else vr(NEGM, 16)) if m == 0 else vr(sb, 16)
                        add_slot(unit, [f"ds_read_b128 {ar(ab,4)}, v{RA+m} offset:{u*8192}"],
                                 f"v_mfma_f32_32x32x16_bf16 {vr(sb,16)}, {ar(ab,4)}, {ar(AQ+4*m,4)}, {c}")
            seg[("qk", q)] = (a, len(slots))
        def add_pv(q):
            a = len(slots)
            def lslot(unit, f):
                first = (q == 0 and f == 0)
                add_slot(unit, [], f"v_mfma_f32_32x32x16_bf16 {ar(LACC,16)}, {ar(ONES,4)}, {vr(sbuf(q)+8*f,4)}, {'0' if first else ar(LACC,16)}")
            def oslot(unit, f, t):
                first = (q == 0 and f == 0); m = f & 3
                ab = newbuf()
                rd = [f"ds_read_b64_tr_b16 {ar(ab,2)}, v{RA+t} offset:{m*4096}",
                      f"ds_read_b64_tr_b16 {ar(ab+2,2)}, v{RA+t} offset:{m*4096+1024}"]
                add_slot(unit, rd, f"v_mfma_f32_32x32x16_bf16 {vr(Oacc+16*t,16)}, {ar(ab,4)}, {vr(sbuf(q)+8*f,4)}, {'0' if first else vr(Oacc+16*t,16)}")
            for jl in range(2):
                unit = ("v", 2*q + jl)
                if q == 3 and jl == 1:
                    for t in range(4):
                        for m in range(4): oslot(unit, 4 + m, t)
                    continue
                for m in range(4):
                    f = 4 * jl + m
                    for t in range(4): oslot(unit, f, t)
            seg[("pv", q)] = (a, len(slots))
        add_qk(0); add_qk(1); add_pv(0); add_qk(2); add_pv(1); add_qk(3); add_pv(2); add_pv(3)
        N = len(slots)
        unit_first = {}
        for k, s in enumerate(slots): unit_first.setdefault(s["unit"], k)
        def unit_range(u):
            ks = [k for k, s in enumerate(slots) if s["unit"] == u]
            return ks[0], ks[-1] + 1
        for j in range(8):
            k0 = unit_first[("s", j)]
            if j >= 1 and not opt.get("nob2", 0): slots[k0]["post"].append("barrier2")
            ops = [(g, ("x", j+2)) for g in dma_ops(("x", j+2))] + [(g, ("w", j+2)) for g in dma_ops(("w", j+2))]
            for i, (g, t) in enumerate(ops):
                slots[k0 + 2 * i]["dma"].append((g, t))
        def b_prefetch():
            for n in range(4):
                for g in dma_ops(kvt[n]): emit_group(g, kvt[n])
            for n in range(4, 4 + NST):
                kind, j = kvt[n]
                e(f"s_mov_b32 s{S_SO}, {16384*j}")
                for jj in range(4):
                    vo, sr_ = (VK + jj, SK) if kind == "k" else (VV, SV)
                    e(f"buffer_load_dwordx4 {ar(AKV+16*(n-4)+4*jj,4)}, v{vo}, s[{sr_}:{sr_+3}], s{S_SO} offen offset:{1024*jj}{KVF}"); vm_add(kvt[n])
        PFB = opt.get("pfb", 4)
        def pf_ops(n):
            return [([f"s_movk_i32 s{S_T0}, {(i>>2)*4096}"] if i % 4 == 0 else []) + [f"buffer_load_dwordx4 a[252:255], v{VL16}, s[{SO}:{SO+3}], s{S_T0} offen offset:{(i&3)*1024}{WOF}"] for i in range(n)]
        def b_all():
            if PFB == 1:
                for gg in pf_ops(20): emit_group(gg, "pf")
            b_prefetch()
            if PFB == 2:
                for gg in pf_ops(20): emit_group(gg, "pf")
        if role == "B" and not XPF:
            slots[unit_first[("s", opt.get("bst", 1))] + 15]["fill"].append(Act(b_all, 0))
        if role == "B" and XPF and opt.get("bpos", -1) >= 0:
            slots[unit_first[("s", opt["bpos"])] + opt.get("bsl", 15)]["fill"].append(Act(burst, 0))
        if role == "B" and XPF and "kmixb" in opt:
            kops = [(g, kvt[n]) for n in range(NBL, 4) for g in dma_ops(kvt[n])]
            km = str(opt["kmixb"]).zfill(10)
            assert sum(int(c, 16) for c in km) == len(kops)
            for j in range(10):
                c = int(km[j], 16); k0 = unit_first[("s", j)]
                for i in range(c):
                    if j < 8: pos = 7 if i < c // 2 else 15
                    else: pos = (2 * i + 1) * 16 // (2 * c)
                    slots[k0 + pos]["dma"].append(kops.pop(0))
        elif role == "B" and XPF and NBL < 4:
            kops = [(g, kvt[n]) for n in range(NBL, 4) for g in dma_ops(kvt[n])]
            k0 = unit_first[("s", 8)]
            for i, it in enumerate(kops): slots[k0 + (2 * i + 1) * 32 // (2 * len(kops))]["dma"].append(it)
        if SPEC and not STOP:
            a, b = unit_range(kvt[opt.get("pfillu", 2)])
            for i in range(8):
                gg = ([f"s_movk_i32 s{S_T1}, {(i>>2)*4096}"] if i % 4 == 0 else []) + [f"buffer_store_dwordx4 v[52:55], v{VL16}, s[{SO2}:{SO2+3}], s{S_T1} offen offset:{(i&3)*1024}{opt.get('pfillflag', '')}"]
                if opt.get("nopfill", 0): gg = []
                slots[a + 8 + i]["dma"].append((gg, "pfill"))
        if PFB == 5:
            a, b = unit_range(kvt[int(str(opt.get("pfa" if role == "A" else "pfu", "c")), 16)])
            for i, gg in enumerate(pf_ops(10)):
                slots[a + 8 + i * 8 // 10]["dma"].append((gg, "pf"))
        if role == "A" and PFB == 4:
            lo_u, hi_u = [int(c, 16) for c in str(opt.get("pfu", "18"))]
            nu = hi_u - lo_u + 1
            for i, gg in enumerate(pf_ops(20)):
                a, b = unit_range(kvt[lo_u + i * nu // 20])
                j = i - min(ii for ii in range(20) if ii * nu // 20 == i * nu // 20)
                slots[a + 9 + 2 * j]["dma"].append((gg, "pf"))
        if role == "B" and PFB == 3:
            lo_u, hi_u = [int(c, 16) for c in str(opt.get("pfu", "03"))]
            a = unit_range(kvt[lo_u])[0] + 6; b = unit_range(kvt[hi_u])[1]
            for i, gg in enumerate(pf_ops(20)):
                slots[a + i * (b - a) // 20]["dma"].append((gg, "pf"))
        if role != "B":
            kops = [(g, kvt[n]) for n in range(4) for g in dma_ops(kvt[n])]
            npf = opt.get("npf", 20) if role == "A" and not STOP and not PFB else 0
            pfo = [([f"s_movk_i32 s{S_T0}, {(i>>2)*4096}"] if i % 4 == 0 else []) + [f"buffer_load_dwordx4 a[252:255], v{VL16}, s[{SO}:{SO+3}], s{S_T0} offen offset:{(i&3)*1024}{WOF}"] for i in range(npf)]
            pfo = [(g, "pf") for g in pfo]
            if opt.get("pffirst", 1): kops = pfo + kops
            else: kops = kops + pfo
            kmix = str(opt.get("kmix", ("0000000088" if PFB else "00000006ff") if role == "A" else "0002222224")).zfill(10)
            assert sum(int(c, 16) for c in kmix) == len(kops), len(kops)
            for j in range(10):
                c = int(kmix[j], 16); k0 = unit_first[("s", j)]
                for i in range(c):
                    if j < 8: pos = 7 if i < c // 2 else 15
                    else: pos = (2 * i + 1) * 16 // (2 * c)
                    slots[k0 + pos]["dma"].append(kops.pop(0))
        NB2 = opt.get("nb2", 0) if role == "B" else 0
        for n in range(4, 16):
            a, b = unit_range(kvt[n - D])
            if n < NB2 and n not in (4, 7):
                a, b = unit_range(kvt[n - D + 1]) if n + 1 < NB2 and n + 1 not in (7,) else (a + 8, b)
            L = 16
            for i, g in enumerate(dma_ops(kvt[n])):
                if role == "B" and n < 4 + NST:
                    alt = [f"v_add_u32 v{T3}, s{S_W4K}, v{VL16}", f"v_add_u32 v{T3}, {slot_of[kvt[n]]*16384}, v{T3}"] if i == 0 else []
                    alt.append(f"ds_write_b128 v{T3}, {ar(AKV+16*(n-4)+4*i,4)} offset:{1024*i}")
                    slots[a + (2 * i) * L // 16 + 1 + KOFF]["dma"].append((alt, None))
                else:
                    slots[a + (2 * i) * L // 16 + 1 + KOFF]["dma"].append((g, kvt[n]))
        NS0 = opt.get('ns0', 4)
        AST = 256 - 20 * (8 - NS0)
        WROT = opt.get("wrot", 1)
        def w_grp(g):
            if not WROT or g >= 4: return [f"s_add_u32 s100, s{S_W}, {4*g}"]
            return ["s_bfe_u32 s100, s2, 0x20003", f"s_add_u32 s100, s100, {g & 3}", "s_and_b32 s100, s100, 3", "s_lshl_b32 s100, s100, 2",
                    f"s_add_u32 s100, s100, s{S_W}"] + ([f"s_add_u32 s100, s100, 16"] if g >= 4 else [])
        def w_lds(g, dst):
            return w_grp(g) + [f"s_mul_i32 s{dst}, s100, 5120"]
        def w_ops(g, stage=False):
            glob = [f"s_lshl_b32 s101, s{S_HI}, 2", "s_add_u32 s100, s100, s101", "s_and_b32 s100, s100, 31", f"s_mul_i32 s{S_WG}, s100, {32*1280}"]
            out = []
            if stage:
                pre = w_grp(g) + glob
                for ee in range(5):
                    out.append((pre if ee == 0 else []) + [f"buffer_load_dwordx4 {ar(AST+20*(g-NS0)+4*ee,4)}, v{VWO[ee]}, s[{SWO}:{SWO+3}], s{S_WG} offen offset:{1024*ee if ee<4 else 0}{WOF}"])
                return out
            pre = w_lds(g, S_WL) + [f"s_mov_b32 m0, s{S_WL}"] + glob
            for ee in range(4):
                out.append((pre if ee == 0 else [f"s_mov_b32 m0, s{S_WL}", "s_nop 0"]) + [f"buffer_load_dwordx4 v{VWO[ee]}, s[{SWO}:{SWO+3}], s{S_WG} offen offset:{1024*ee}{WOF} lds"])
            out.append([f"s_add_u32 m0, s{S_WL}, 4096", "s_nop 0", f"buffer_load_dwordx4 v{VWO[4]}, s[{SWO}:{SWO+3}], s{S_WG} offen{WOF} lds"])
            return out
        def pmap(c): return c
        assert NS0 == 4
        def place_w(rng, role):
            lo_u, hi_u = [int(c, 16) for c in rng]
            sp = [(gg, ("W", g)) for g in range(4) for gg in w_ops(g, False)]
            nu = hi_u - lo_u + 1
            byu = {}
            for i, it in enumerate(sp): byu.setdefault(lo_u + i * nu // len(sp), []).append(it)
            for n, ops in byu.items():
                a, b = unit_range(kvt[n]); L = b - a
                nokv = n + D > 15 or n == 0 or (role == "B" and n + D < 4 + NST)
                lo = a + 1 if nokv else a + L // 2 + 1 + KOFF
                if n == 15: b = a + 8
                for i, it in enumerate(ops):
                    slots[lo + i * (b - lo) // len(ops)]["dma"].append(it)
        if not STOP:
            for gi, n in ((4, 14), (5, 15)):
                a, b = unit_range(kvt[n])
                for i, gg in enumerate(w_ops(gi, False)):
                    slots[a + (8 if n == 14 else 0) + i]["dma"].append((gg, ("W", gi)))
            place_w(str(opt.get({"A": "wspa", "B": "wspb", "AB": "wsp"}[role], {"A": "cd", "B": "cd", "AB": "0b"}[role])), role)
        def misc_acts():
            def m0():
                wait_vm(["dbgld"])
                l1, l2 = newlab("dc"), newlab("dc")
                e("s_mov_b32 s101, 0")
                e.label(l1)
                e(f"v_xor_b32 v{T0}, v{T3}, v{VDB}")
                e(f"v_cmp_gt_u32 vcc, 16, v{T0}")
                e("s_cmp_eq_u64 vcc, -1")
                e(f"s_cbranch_scc1 {l2}")
                e("s_add_u32 s101, s101, 1")
                e(f"s_cmp_ge_u32 s101, {SPIN}")
                e(f"s_cbranch_scc1 {l2}")
                e("s_sleep 8")
                e(f"buffer_load_dword v{T3}, v{VPO}, s[{SF}:{SF+3}], 0 offen offset:512 sc1")
                e("s_waitcnt vmcnt(0)")
                e(f"s_branch {l1}")
                e.label(l2)
                e(f"v_cmp_eq_u32 vcc, 0, v{T0}")
                e("s_cmp_eq_u64 vcc, -1")
                e(f"s_cselect_b32 s{S_FAST}, {0 if (FORCE_SLOW or (opt.get('slowa', 0) and role == 'A')) else 1}, 0")
            def m1():
                e(f"s_lshl_b32 s{S_T0}, s{S_B}, 2"); e(f"s_add_u32 s{S_T0}, s{S_T0}, s{S_HG}"); e(f"s_lshl_b32 s{S_T0}, s{S_T0}, 18")
                e(f"s_lshl_b32 s100, s{S_W}, 13")
                e(f"s_add_u32 s{S_T0}, s{S_T0}, s100")
                srd(e, SOG, 78, 79, S_T0, 7 * 32768 + 8192)
            def m2():
                e(f"s_lshl_b32 s100, s{S_HI}, 15")
                e(f"s_add_u32 s{S_T0}, s{S_T0}, s100")
                srd(e, SO, 78, 79, S_T0, 8192)
                e(f"s_lshl_b32 s{S_T0}, s2, 3"); e(f"s_add_u32 s{S_T0}, s{S_T0}, s{S_W}"); e(f"s_lshl_b32 s{S_T0}, s{S_T0}, 7")
            def m3():
                e(f"v_mov_b32 v{VZ}, s{S_T0}")
                e(f"v_mov_b32 v{T0}, 0x7fffffff")
                e(f"v_cmp_eq_u32 vcc, 0, v{V_L}")
                e(f"v_mov_b32 v{T2}, s{S_TAG}")
                e(f"v_add_u32 v{T3}, s{S_HI}, v{V_L}")
                e(f"v_cndmask_b32 v{VZ}, v{T0}, v{VZ}, vcc")
                e(f"v_and_b32 v{T3}, 7, v{T3}")
            def m4():
                e(f"s_and_b32 s{S_T0}, s2, 31"); e(f"s_lshl_b32 s{S_T0}, s{S_T0}, 3"); e(f"s_add_u32 s{S_T0}, s{S_T0}, s{S_W}"); e(f"s_lshl_b32 s{S_T0}, s{S_T0}, 7")
                e(f"v_lshl_add_u32 v{VPO}, v{T3}, 15, s{S_T0}")
            return [Act(m0, 36), Act(m1, 36), Act(m2, 36), Act(m3, 28), Act(m4, 20)]
        def base_cost(k):
            s = slots[k]
            return 8 + 4 * len(slots[min(N-1, k+LA)]["reads"]) + (2 if PAIRW else 4) + sum(4 * len(x[0]) for x in s["dma"]) + sum(cost(x) for x in s["fill"] + s["fill2"])
        def spread(ops, a, b, dead=None):
            tot = sum(cost(o) for o in ops)
            lo, hi = 0, 400
            def place(level, commit):
                i = 0
                for k in range(a, b):
                    c = base_cost(k)
                    while i < len(ops):
                        if c + cost(ops[i]) <= level:
                            c += cost(ops[i])
                            if commit: slots[k]["fill"].append(ops[i])
                            i += 1
                        else: break
                    if dead and any(oi >= i and sl <= k + 1 for oi, sl in dead): return False
                return i == len(ops)
            while lo < hi:
                mid = (lo + hi) // 2
                if place(mid, False): hi = mid
                else: lo = mid + 1
            assert place(lo, True)
            return lo
        for q in range(4):
            a, b = seg[("qk", q)]
            for sg in range(3):
                base = a + 8 * (sg + 1)
                mo = max_ops(q, sg)
                for i in range(4): slots[base + 4 + i]["fill"] += mo[2*i:2*i+2]
        lv = []
        X0 = opt.get("x0", 13)
        for q in range(1, 4):
            a, b = seg[("pv", q - 1)]
            mo = max_ops(q, 3)
            for i in range(4): slots[a + 3 + i]["fill"] += mo[2*i:2*i+2]
            slots[a + (X0 if q == 1 else 7)]["fill2"].append(check1(q))
        for q in (1, 2):
            slots[seg[("qk", q + 1)][0]]["fill"].append(check2())
        def qconv(t):
            ops = []
            for i in range(0, 16, 2):
                r = Oacc + 16 * t + i
                ops.append(f"v_pk_mul_f32 v[{r}:{r+1}], v[{r}:{r+1}], v[{T1}:{T1+1}] op_sel_hi:[1,0]") if t < 2 else ops.extend([f"v_mul_f32 v{r}, v{r}, v{T1}", f"v_mul_f32 v{r+1}, v{r+1}, v{T1}"])
            ops += [f"v_cvt_pk_bf16_f32 v{Oacc+16*t+i}, v{Oacc+16*t+2*i}, v{Oacc+16*t+2*i+1}" for i in range(8)]
            ops += [f"v_accvgpr_write_b32 a{AQ+8*t+i}, v{Oacc+16*t+i}" for i in range(8)]
            return ops
        a, b = seg[("qk", 0)]
        lv.append(spread(qconv(2) + qconv(3), a, a + 6, dead=[(31, a + 4), (63, a + 6)]))
        a, b = seg[("pv", 2)]
        for i, act in enumerate(misc_acts()):
            slots[a + 18 + 3 * i]["fill"].append(act)
        a, b = seg[("qk", 1)]
        f0 = [frag_ops(0, f) for f in range(8)]
        lv.append(spread([o for x in f0 for o in x], a, b + X0 + 1, dead=[(sum(len(x) for x in f0[:f+1]) - 1, b + 4 * f) for f in range(4)]))
        for q in (1, 2):
            lv.append(spread([o for f in range(8) for o in frag_ops(q, f)], seg[("pv", q-1)][0] + (X0 + 1 if q == 1 else 8), seg[("qk", q+1)][1]))
        a3 = seg[("pv", 3)][0]
        lv.append(spread([o for f in range(8) for o in frag_ops(3, f)], seg[("pv", 2)][0] + 8, a3 + opt.get("x3", 16),
                         dead=[(20 * f + 19, a3 + 4 * f) for f in range(4)]))
        a7 = unit_first[("v", 7)]
        def store_t(t):
            def f():
                d = QF + 8 * t
                l1, l2 = newlab("o"), newlab("o")
                so = f"s{S_SO}" if t >= 2 else "0"
                e(f"s_cmp_eq_u32 s{S_FAST}, 0")
                e(f"s_cbranch_scc1 {l1}")
                for z in range(2):
                    e(f"buffer_store_dwordx4 {vr(d+4*z,4)}, v{VL16}, s[{SO}:{SO+3}], {so} offen offset:{((2*t+z)&3)*1024}{opt.get('osflag', '')}")
                e(f"s_branch {l2}")
                e.label(l1)
                for z in range(2):
                    e(f"buffer_store_dwordx4 {vr(d+4*z,4)}, v{VL16}, s[{SO}:{SO+3}], {so} offen offset:{((2*t+z)&3)*1024} sc1")
                e.label(l2)
                vm_add("Ost"); vm_add("Ost")
            return Act(f, 20)
        def pack_ops(t, pk=False):
            ops = []
            if pk:
                for i in range(0, 16, 2):
                    r = Oacc + 16 * t + i
                    ops.append(f"v_pk_mul_f32 v[{r}:{r+1}], v[{r}:{r+1}], v[{T1}:{T1+1}] op_sel_hi:[1,0]")
            else:
                ops += [f"v_mul_f32 v{Oacc+16*t+i}, v{Oacc+16*t+i}, v{T1}" for i in range(16)]
            d = QF + 8 * t
            for u in range(2):
                b = Oacc + 16 * t + 4 * u
                ops += [f"v_cvt_pk_bf16_f32 v{d+4*u}, v{b}, v{b+1}", f"v_cvt_pk_bf16_f32 v{d+4*u+1}, v{b+2}, v{b+3}",
                        f"v_cvt_pk_bf16_f32 v{d+4*u+2}, v{b+8}, v{b+9}", f"v_cvt_pk_bf16_f32 v{d+4*u+3}, v{b+10}, v{b+11}"]
            ops += [f"v_permlane16_swap_b32 v{d+i}, v{d+4+i}" for i in range(4)]
            ops.append(store_t(t))
            return ops
        slots[a7 + 0]["fill"] += [f"v_add_f32 v{LS}, v{LS}, v{LS+1}", f"v_add_f32 v{LS+2}, v{LS+2}, v{LS+3}", f"s_movk_i32 s{S_SO}, 4096"]
        slots[a7 + 1]["fill"] += [f"v_add_f32 v{LS}, v{LS}, v{LS+2}", f"v_mov_b32 v{T1}, v{LS}"]
        slots[a7 + 2]["fill"] += [f"v_permlane32_swap_b32 v{T1}, v{LS}", f"v_add_f32 v{T1}, v{T1}, v{LS}"]
        slots[a7 + 3]["fill"] += [f"v_rcp_f32 v{T1}, v{T1}"]
        p0, p1, p2 = pack_ops(0), pack_ops(1), pack_ops(2)
        PK0 = opt.get("pk0", 6)
        for i in range(4): slots[a7 + PK0 + i]["fill"] += p0[i*29//4:(i+1)*29//4]
        for i in range(4): slots[a7 + PK0 + 4 + i]["fill"] += p1[i*29//4:(i+1)*29//4]
        n2 = 16 - (PK0 + 8)
        for i in range(n2): slots[a7 + PK0 + 8 + i]["fill"] += p2[i*8:(i+1)*8]
        epi_rest = p2[n2*8:] + pack_ops(3, True)
        EARLY = opt.get("early", 0) and not STOP
        S_PM, S_EARLY = 34, 61
        assert not EARLY
        OB = [None, 64, 96, 128, 0, 32, 160, 192]
        def o_ops(h):
            out = []
            pre = [f"s_add_u32 s100, s{S_HI}, {h}", "s_and_b32 s100, s100, 7", f"s_lshl_b32 s{S_T0}, s100, 15", f"s_add_u32 s{S_T1}, s{S_T0}, 4096"]
            for f in range(8):
                so = S_T0 if f < 4 else S_T1
                out.append((pre if f == 0 else []) + [f"buffer_load_dwordx4 {ar(OB[h]+4*f,4)}, v{VL16}, s[{SOG}:{SOG+3}], s{so} offen offset:{(f&3)*1024}{opt.get('olflag', ' sc1')}"])
            return out
        def early_take():
            wait_vm(["poll0"])
            l1 = newlab("e")
            e(f"v_cmp_eq_u32 vcc, v{T2}, v{T3}")
            e(f"s_mov_b32 s{S_PM}, vcc_lo")
            e(f"s_and_b32 s100, s{S_PM}, 14")
            e("s_cmp_eq_u32 s100, 14")
            e(f"s_cselect_b32 s{S_EARLY}, 1, 0")
            e(f"s_cbranch_scc0 {l1}")
            for gg in o_ops(1) + o_ops(2)[:4]:
                for s_ in gg: e(s_)
            e.label(l1)
        if EARLY:
            slots[a7 + opt.get("et", 9)]["fill"].insert(0, Act(early_take, 40))
        sys.stderr.write(f"filler levels {lv}\n")
        def gap_q_post():
            e(f"v_mov_b32 v{T1}, s{S_C}")
            e(f"v_accvgpr_read_b32 v{VWO[3]}, a{AWO}")
            e(f"s_mov_b32 s{S_RS}, 0")
            for i in range(4): e(f"v_mov_b32 v{52+i}, -1")
            for o in qconv(0) + qconv(1): e(o)
        def gap0_pre():
            for o in max_ops(0, 3): e(o)
            e(f"v_mov_b32 v{T0}, v{VM}")
            e(f"v_permlane32_swap_b32 v{T0}, v{VM}")
            e(f"v_max_f32 v{VM}, v{T0}, v{VM}")
            for i in range(16): e(f"v_sub_f32 v{NEGM+i}, 0, v{VM}")
        def gap3_pre():
            check2().fn()
        nop = lambda: None
        gaps = {seg[("qk", 0)][0]: (nop, gap_q_post, True),
                seg[("qk", 1)][0]: (gap0_pre, nop, False),
                seg[("pv", 3)][0]: (gap3_pre, nop, False)}
        def enter_unit(u):
            if u[0] == "s":
                j = u[1]
                wait_vm([("x", j), ("w", j)])
                e("s_barrier")
                if j == 9:
                    e(f"v_add_u32 v{VDB}, 1, v{VDB}")
                    e(f"v_cmp_eq_u32 vcc, 0, v{VDB}")
                    e(f"s_mov_b32 s100, {NONCE_OFF}")
                    e(f"v_cndmask_b32 v{VDB}, v{VDB}, 1, vcc")
                    e(f"buffer_store_dword v{VDB}, v{VZ}, s[{SD}:{SD+3}], 0 offen sc1"); vm_add("nst")
                    e(f"buffer_store_dword v{VDB}, v{VZ}, s[{SF}:{SF+3}], s100 offen sc1"); vm_add("nst")
                e(f"v_add_u32 v{RA}, {slot_of[('w',j)]*16384}, v{VBW}")
                e(f"v_add_u32 v{RA+4}, {slot_of[('x',j)]*16384}, v{VAX}")
                for t in range(1, 4):
                    e(f"v_xor_b32 v{RA+t}, {t<<6}, v{RA}")
                    e(f"v_xor_b32 v{RA+4+t}, {t<<5}, v{RA+4}")
            else:
                n_ = kvt.index(u)
                pm = int(str(opt.get("pairb", "0")), 16)
                if (pm >> (n_ // 2)) & 1:
                    if n_ % 2 == 0:
                        wait_vm([u, kvt[n_ + 1]]); e("s_barrier")
                else:
                    if not opt.get("nomem", 0) or u in kvt[:4]: wait_vm([u])
                    if opt.get("nomem", 0) < 2: e("s_barrier")
                if u == kvt[4]:
                    e(f"buffer_load_dword v{T3}, off, s[{SD}:{SD+3}], 0 sc1"); vm_add("nld")
                if u == kvt[7]:
                    l1, l2 = newlab("nc"), newlab("nc")
                    e("s_mov_b32 s101, 0")
                    e.label(l1)
                    e(f"v_readfirstlane_b32 s{S_TAG}, v{T3}")
                    e("s_add_u32 s101, s101, 1")
                    e(f"s_cmp_lg_u32 s{S_TAG}, 0")
                    e(f"s_cbranch_scc1 {l2}")
                    e(f"s_cmp_ge_u32 s101, {SPIN}")
                    e(f"s_cbranch_scc1 {l2}")
                    e("s_sleep 8")
                    e(f"buffer_load_dword v{T3}, off, s[{SD}:{SD+3}], 0 sc1")
                    e("s_waitcnt vmcnt(0)")
                    e(f"s_branch {l1}")
                    e.label(l2)
                    e("s_getreg_b32 s100, hwreg(HW_REG_XCC_ID)")
                    e("s_and_b32 s100, s100, 15")
                    e(f"s_lshl_b32 s101, s{S_TAG}, 4")
                    e("s_or_b32 s100, s100, s101")
                    e(f"v_mov_b32 v{VDB}, s100")
                    e("s_lshl_b32 s100, s2, 10")
                    e(f"buffer_store_dword v{VDB}, off, s[{SF}:{SF+3}], s100 offset:512 sc1"); vm_add("xst")
                if u == kvt[11]:
                    e(f"buffer_load_dword v{T3}, v{VPO}, s[{SF}:{SF+3}], 0 offen offset:512 sc1"); vm_add("dbgld")
                if u == kvt[15] and EARLY:
                    e(f"buffer_load_dword v{T3}, v{VPO}, s[{SF}:{SF+3}], 0 offen sc1"); vm_add("poll0")
                so = slot_of[u] * 16384
                if u[0] == "k":
                    e(f"v_add_u32 v{RA}, {so}, v{VAK}")
                    for m in range(1, 8): e(f"v_xor_b32 v{RA+m}, {m<<5}, v{RA}")
                else:
                    e(f"v_add_u32 v{RA}, {so}, v{VBW}")
                    for t in range(1, 4): e(f"v_xor_b32 v{RA+t}, {t<<6}, v{RA}")
        st = dict(rd=0, cur=None, waited=-1)
        lg = []
        def issue_reads(upto):
            while st["rd"] <= upto and st["rd"] < N:
                s = slots[st["rd"]]
                if s["unit"] != st["cur"]:
                    st["cur"] = s["unit"]
                    enter_unit(st["cur"])
                    if diag == 2 and st["cur"][0] == "s": stamp()
                for r in s["reads"]:
                    e(r); lg.append(st["rd"])
                st["rd"] += 1
        def limit(k):
            c = [g for g in gaps if g > k and gaps[g][2]]
            return (min(c) if c else N) - 1
        segstarts = {v[0] for v in seg.values()}
        for k in range(N):
            s = slots[k]
            if k in segstarts and diag not in (3, 4, 5, 6): stamp()
            if k in gaps:
                gaps[k][0]()
                issue_reads(k + LA - 1)
                gaps[k][1]()
            elif k == 0:
                issue_reads(LA - 1)
                stamp()
            if s["reads"] and k > st["waited"]:
                kk = k
                if PAIRW and k + 1 < st["rd"] and slots[k+1]["reads"] and (k + 1) not in gaps: kk = k + 1
                idx = max(i for i, t in enumerate(lg) if t == kk)
                n_after = len(lg) - 1 - idx
                e(f"s_waitcnt lgkmcnt({min(15, n_after)})")
                st["waited"] = kk
            e(s["mf"])
            for p in s["post"]:
                if p == "barrier2": e("s_barrier")
            issue_reads(min(k + LA, limit(k)))
            for gg, tg in s["dma"]:
                if opt.get("now", 0) and (tg == "pf" or (isinstance(tg, tuple) and tg[0] == "W")): gg = []
                if opt.get("nomem", 0) and s["unit"][0] != "s": gg = []
                for s_ in gg: e(s_)
                if tg is None: lg.append(-1)
                else: vm_add(tg)
            for f in s["fill"] + s["fill2"]:
                if isinstance(f, str): e(f)
                else: f.fn()
        stamp()
        for f in epi_rest:
            if isinstance(f, str): e(f)
            else: f.fn()
        if not STOP:
            assert vmbox[0][-1] == "Ost"
            wait_vm([("W", gi) for gi in range(4)])
        return dict(OB=OB, S_PM=S_PM)
    def flag_raw():
        l1, l2 = newlab("f"), newlab("f")
        e(f"s_cmp_eq_u32 s{S_FAST}, 0")
        e(f"s_cbranch_scc1 {l1}")
        e(f"buffer_store_dword v{T2}, v{VZ}, s[{SF}:{SF+3}], 0 offen")
        e(f"s_branch {l2}")
        e.label(l1)
        e(f"buffer_store_dword v{T2}, v{VZ}, s[{SF}:{SF+3}], 0 offen sc1")
        e.label(l2)
    vm0 = list(vmbox[0]); st0 = nstamp[0]
    if ROLES:
        e(f"s_cmp_eq_u32 s{S_ROLE}, 0")
        e("s_cbranch_scc1 L_roleA")
        vmbox[0] = vmB_pre + vm0
        X = attention("B")
        e("s_branch L_tail")
        e.label("L_roleA")
        vmbox[0] = list(vm0); nstamp[0] = st0
        X = attention("A")
        e.label("L_tail")
    else:
        X = attention("AB")
    vmbox[0] = ["Ost"]
    OB, S_PM = X["OB"], X["S_PM"]
    stamp()
    if not STOP:
        tail(e, opt, locals())
    if diag:
        e("s_waitcnt vmcnt(0)")
        stamp()
        e("s_memrealtime s[100:101]")
        e("s_waitcnt lgkmcnt(0)")
        e(f"s_mov_b32 s29, {WS_DIAG}")
        srd(e, 8, 78, 79, 29, 1 << 20)
        e("s_lshl_b32 s29, s2, 2"); e("s_add_u32 s29, s29, s3"); e("s_lshl_b32 s29, s29, 7")
        e("v_mov_b32 v1, s29")
        vals = [f"s{40+k}" for k in range(nstamp[0])] + ["0"] * (24 - nstamp[0])
        if diag == 5:
            vals = vals[:14] + ["s54", "s55", "s56", "s57"] + vals[18:]
        vals = vals + ["s94", "s95", "s100", "s101"]
        e("s_getreg_b32 s30, hwreg(HW_REG_XCC_ID)")
        vals += ["s30", "s62", f"s{S_FAST}", "s37" if not SPEC else "s60"]
        for q in range(8):
            for i in range(4): e(f"v_mov_b32 v{4+i}, {vals[4*q+i]}")
            e(f"buffer_store_dwordx4 v[4:7], v1, s[8:11], 0 offen offset:{16*q}")
    if opt.get("pad", 0):
        e("s_waitcnt vmcnt(0)")
        e.label("L_pad")
        e("s_memrealtime s[92:93]")
        e("s_waitcnt lgkmcnt(0)")
        e("s_sub_u32 s92, s92, s94")
        e(f"s_cmp_lt_u32 s92, {opt['pad']}")
        e("s_cbranch_scc1 L_pad")
    e("s_endpgm")
    for blk in rare: blk()
    e.label("L_done")
    e("s_endpgm")
    if TICK:
        for t in range(2):
            kernel_header(e, f"tick{t}_kernel")
            e("s_memrealtime s[4:5]")
            e("s_load_dwordx2 s[6:7], s[0:1], 56")
            e("s_waitcnt lgkmcnt(0)")
            e(f"s_mov_b32 s12, {WS_DIAG + 0x80000 + 64 * t}")
            srd(e, 8, 6, 7, 12, 64)
            if t == 0:
                for i in range(40): e("s_sleep 127")
                e("s_memrealtime s[4:5]"); e("s_waitcnt lgkmcnt(0)")
            e("v_mov_b32 v2, s4"); e("v_mov_b32 v3, s5")
            e("buffer_store_dwordx2 v[2:3], off, s[8:11], 0")
            e("s_endpgm")
    e.raw('.section .rodata,"a"')
    kernel_desc(e, kname, 512, 256)
    if TICK:
        for t in range(2): kernel_desc(e, f"tick{t}_kernel", 32, 32)
    sys.stderr.write(f"nops inserted: {e.nnop}, instrs: {sum(1 for x in e.L if x[0])}\n")
    return e.text()

def tail(e, opt, g):
    S_W, S_B, S_HG, S_HI, S_T0, S_T1, S_SO, S_FAST, S_PO = [g[k] for k in "S_W S_B S_HG S_HI S_T0 S_T1 S_SO S_FAST S_PO".split()]
    SOG, SF, SP, QF, V_L, VL16, VPO, VZ, T0, T1, T2, T3 = [g[k] for k in "SOG SF SP QF V_L VL16 VPO VZ T0 T1 T2 T3".split()]
    vm_add, wait_vm, emit_group, newlab, stamp, OB, S_PM, flag_raw = [g[k] for k in "vm_add wait_vm emit_group newlab stamp OB S_PM flag_raw".split()]
    S_TAG, SWO, VWO, WOF = g["S_TAG"], g["SWO"], g["VWO"], g["WOF"]
    LA = opt.get("LA4", 6); R = LA + 2
    ACC = 128; FR = 168; VB = 12
    e(f"v_lshrrev_b32 v{T1}, 2, v{V_L}")
    e(f"v_mul_u32_u24 v{T1}, 160, v{T1}")
    e(f"v_and_b32 v{T0}, 3, v{V_L}")
    e(f"v_lshl_add_u32 v{VB}, v{T0}, 3, v{T1}")
    e(f"v_add_u32 v{VB+1}, {12*5120}, v{VB}")
    e(f"v_add_u32 v{VB+2}, {24*5120}, v{VB}")
    SPEC = g["SPEC"]; rare = g["rare"]
    BAR20 = opt.get("bar20", 1)
    def odst(h, f):
        return vr(64 + 32 * (h - 1) + 4 * f, 4) if (SPEC and h <= 2) else ar(OB[h] + 4 * f, 4)
    slots = []
    WF = opt.get("wf", 1)
    order4 = [(c, tn) for c in range(24 if WF else 32) for tn in range(5)]
    if WF: order4 += [(c, tn) for tn in range(5) for c in range(24, 32)]
    for c, tn in order4:
        k = len(slots); fb = FR + 4 * (k % R)
        base = VB + c // 12; off = (c % 12) * 5120 + tn * 32
        rd = [f"ds_read_b64_tr_b16 {vr(fb,2)}, v{base} offset:{off}", f"ds_read_b64_tr_b16 {vr(fb+2,2)}, v{base} offset:{off+2560}"]
        mf = []
        for z in range(2):
            d = ACC + 4 * (z * 5 + tn)
            cc = "0" if c == 0 else vr(d, 4)
            b = vr(QF + 8 * c + 4 * z, 4) if c < 4 else odst(c // 4, (c & 3) * 2 + z)
            mf.append(f"v_mfma_f32_16x16x32_bf16 {vr(d,4)}, {vr(fb,4)}, {b}, {cc}")
        slots.append(dict(unit=min(c // 4, 6), reads=rd, mf=mf, gap=[[], []], c=c, tn=tn))
    N = len(slots)
    def put(gi, fn):
        slots[gi // 2]["gap"][gi & 1].append(fn if callable(fn) else (lambda s_=fn: e(s_)))
    def put_free(ops, g0):
        gi = g0
        for o in ops:
            while slots[gi // 2]["gap"][gi & 1] or (gi & 1 == 1 and (gi // 2) % 2 == 1): gi += 1
            put(gi, o); gi += 1
        return gi
    def check_flag(h):
        if opt.get("nochk", 0): return
        l1, l2 = newlab("p"), newlab("p")
        e(f"s_bitcmp1_b32 s{S_PM}, {h}")
        e(f"s_cbranch_scc1 {l2}")
        e("s_mov_b32 s38, 0")
        e.label(l1)
        e(f"buffer_load_dword v{T3}, v{VPO}, s[{SF}:{SF+3}], 0 offen sc1")
        e("s_add_u32 s38, s38, 1")
        e("s_waitcnt vmcnt(0)")
        e(f"v_cmp_eq_u32 vcc, v{T2}, v{T3}")
        e(f"s_mov_b32 s{S_PM}, vcc_lo")
        e(f"s_cmp_ge_u32 s38, {SPIN}")
        e(f"s_cbranch_scc1 {l2}")
        e(f"s_bitcmp1_b32 s{S_PM}, {h}")
        e(f"s_cbranch_scc0 {l1}")
        e.label(l2)
    ROLES, S_ROLE = g["ROLES"], g["S_ROLE"]
    def flag_store():
        wait_vm(["Ost"])
        flag_raw(); vm_add("flag")
        stamp()
    e("s_barrier")
    FS = opt.get("fs", 6); PS = opt.get("ps", 14)
    SOFF = list(range(64, 74)) + [76, 77, 39, 31]
    pre = [f"s_mul_i32 s8, s{S_W}, 5120", f"s_lshl_b32 s100, s{S_HI}, 2", f"s_add_u32 s100, s100, s{S_W}", f"s_add_u32 s8, s8, {16*5120}"]
    for gi in range(4):
        pre += [f"s_add_u32 s101, s100, {16+4*gi}", "s_and_b32 s101, s101, 31", f"s_mul_i32 s{16+gi}, s101, {32*1280}"]
    for s_ in pre[:7]: e(s_)
    rest = pre[7:]
    for h in range(1, 8):
        rest += [f"s_add_u32 s101, s{S_HI}, {h}", "s_and_b32 s101, s101, 7", f"s_lshl_b32 s{SOFF[2*(h-1)]}, s101, 15", f"s_add_u32 s{SOFF[2*(h-1)+1]}, s{SOFF[2*(h-1)]}, 4096"]
    put(2 * FS + 1, flag_store)
    def wload(gi, ee):
        def f():
            if opt.get("now", 0):
                vm_add(("W", gi)); return
            e(f"s_add_u32 m0, s8, {(gi-4)*20480 + (4096 if ee == 4 else 0)}")
            e(f"buffer_load_dwordx4 v{VWO[ee]}, s[{SWO}:{SWO+3}], s{16+gi-4} offen offset:{1024*ee if ee < 4 else 0}{WOF} lds"); vm_add(("W", gi))
        return f
    def oload(h, f):
        def fn():
            if opt.get("noo", 0):
                vm_add(("O", h, f // 2)); return
            e(f"buffer_load_dwordx4 {odst(h, f)}, v{VL16}, s[{SOG}:{SOG+3}], s{SOFF[2*(h-1)+(f>>2)]} offen offset:{(f&3)*1024}{opt.get('olflag', ' sc1')}"); vm_add(("O", h, f // 2))
        return fn
    wl = [(gi, ee) for gi in range(6, 8) for ee in range(5)]
    def poll_issue():
        e(f"buffer_load_dword v{T3}, v{VPO}, s[{SF}:{SF+3}], 0 offen sc1"); vm_add("poll")
    def poll_use():
        wait_vm(["poll"])
        e(f"v_cmp_eq_u32 vcc, v{T2}, v{T3}")
        e(f"s_mov_b32 s{S_PM}, vcc_lo")
    rest = rest[9:17] + rest[:9] + rest[17:]
    for i, o in enumerate(rest): put(i // 2 if i // 2 < 2 * FS + 1 else i // 2 + 1, o)
    if SPEC:
        SI = opt.get("si", 9)
        for i in range(16): put(2 * SI + i, oload(1 + i // 8, i % 8))
        def spec_check(h):
            def f():
                lr, lb = newlab("sr"), newlab("sb")
                wait_vm([("O", h, 3)])
                b = 64 + 32 * (h - 1)
                e(f"v_max3_u32 v{T0}, v{b}, v{b+4}, v{b+8}")
                e(f"v_max3_u32 v{T1}, v{b+12}, v{b+16}, v{b+20}")
                e(f"v_max3_u32 v{T0}, v{T0}, v{b+24}, v{b+28}")
                e(f"v_max_u32 v{T0}, v{T0}, v{T1}")
                e(f"v_cmp_eq_u32 vcc, -1, v{T0}")
                e(f"s_cmp_eq_u32 s{S_FAST}, 0")
                e(f"s_cbranch_scc1 {lr}")
                e("s_cmp_lg_u64 vcc, 0")
                e(f"s_cbranch_scc1 {lr}")
                e.label(lb)
                def blk():
                    e.label(lr)
                    e("s_waitcnt vmcnt(0)")
                    e(f"s_mov_b32 s{S_PM}, 0")
                    if opt.get("diag", 0): e(f"s_add_u32 s60, s60, 1")
                    check_flag(h)
                    for ff in range(8):
                        e(f"buffer_load_dwordx4 {odst(h, ff)}, v{VL16}, s[{SOG}:{SOG+3}], s{SOFF[2*(h-1)+(ff>>2)]} offen offset:{(ff&3)*1024} sc1")
                    e("s_waitcnt vmcnt(0)")
                    e(f"s_branch {lb}")
                rare.append(blk)
            return f
        pre_slot = {20: spec_check(1), 40: spec_check(2)}
        put(2 * PS, poll_issue)
        PU = opt.get("pu", 24)
        put(2 * PU, poll_use)
        seq = []
        o4 = opt.get("o4", 2 * PU + 4)
        wfirst = opt.get("wfirst", 5)
        for i in range(wfirst): put(2 * (PS + 1 + i) + 1, wload(*wl.pop(0)))
    else:
        nw0 = opt.get("nw0", 5); nw1 = opt.get("nw1", 5)
        for i in range(nw0): put(2 * (FS + 1 + i) + 1, wload(*wl.pop(0)))
        put(2 * PS, poll_issue)
        for i in range(nw1): put(2 * (PS + i) + 1, wload(*wl.pop(0)))
        def poll_take():
            poll_use()
            check_flag(1)
            for f in range(8): oload(1, f)()
            check_flag(2)
            for f in range(4): oload(2, f)()
            if BAR20:
                wait_vm([("W", 6), ("W", 7)])
                e("s_barrier")
            stamp()
        pre_slot = {20: poll_take}
        seq = [("o", 2, f) for f in range(4, 8)]
        o4 = opt.get("o4", 42)
    osp = opt.get("osp", 42)
    wafter = str(opt.get("wafter", "34"))
    for h in range(3, 8):
        seq += [("o", h, f) for f in range(8)]
        for ch in wafter:
            if int(ch) == h:
                for i in range(5):
                    if wl: seq.append(("w",) + wl.pop(0))
    assert not wl
    pos = o4 * 10
    for it in seq:
        gi = (pos // 10) & ~1
        if it[0] == "o":
            if it[2] == 0: put(gi - 2, lambda h=it[1]: check_flag(h))
            put(gi, oload(it[1], it[2])); pos += osp
        else:
            put(gi, wload(it[1], it[2])); pos += opt.get("wsp10", 60)
    lg = []; st = dict(rd=0, cur=-1, waited=-1)
    SOUT = 8
    HR = opt.get("hr", 15); UR = opt.get("ur", 8)
    xs = [f"s_lshl_b32 s100, s{S_B}, 2", f"s_add_u32 s100, s100, s{S_HG}", f"s_mul_i32 s100, s100, {32*1280}",
          f"s_mul_i32 s101, s{S_HI}, 160", "s_add_u32 s100, s100, s101", f"s_sub_u32 s101, {1024*1280}, s100",
          f"v_and_b32 v2, 15, v{V_L}", "v_mul_u32_u24 v2, 1280, v2", f"v_lshrrev_b32 v3, 4, v{V_L}", "v_lshl_add_u32 v2, v3, 3, v2",
          "v_mov_b32 v5, 0xfffcfffc", f"s_add_u32 s{S_T0}, s{S_PO}, 4096",
          "s_mov_b32 s36, 0x00020002", "s_mov_b32 s37, 0", "s_mov_b32 s26, 0", f"s_lshl_b32 s27, s{S_W}, 10", f"v_add_u32 v3, s27, v{VL16}"]
    gend = put_free(xs, 44)
    xs2 = [[f"s_add_u32 s{SOUT}, s74, s100", f"s_addc_u32 s{SOUT+1}, s75, 0"], f"s_mov_b32 s{SOUT+2}, s101", f"s_mov_b32 s{SOUT+3}, 0x20000"]
    xs2 += [f"s_bfe_u32 s{80+j}, s{S_TAG}, {0x20000 + 2*j}" for j in range(4)]
    for i in range(1, 4):
        xs2 += [f"s_add_u32 s100, s{S_HG}, {i}", "s_and_b32 s100, s100, 3", "s_lshl_b32 s100, s100, 2", f"s_add_u32 s100, s100, s{S_HG}",
                "s_mul_i32 s100, s100, 5120", f"s_add_u32 s{12+i}, s100, s27", f"s_add_u32 s{16+i}, s100, 4096"]
    xs2 += [f"s_lshl_b32 s12, s{S_W}, 5", f"s_add_u32 s16, s12, {16*1280}", f"s_movk_i32 s20, {16*1280}"]
    xs2 = [(lambda x=x: [e(s_) for s_ in x]) if isinstance(x, list) else x for x in xs2]
    gw = max([2 * k + hh for k in range(N) for hh in range(2) if any(getattr(f, "__name__", "") == "f" for f in slots[k]["gap"][hh])])
    gend2 = put_free(xs2, max(gend, gw + 1))
    assert gend2 <= 2 * 118, (gend, gend2)
    def scale_ops():
        ops = ["s_lshr_b32 s71, s71, 23", "s_max_u32 s71, s71, 1", "s_min_u32 s71, s71, 239",
               "s_sub_u32 s64, 254, s71", "s_lshl_b32 s64, s64, 23", f"s_add_u32 s65, s71, {HR}", "s_lshl_b32 s65, s65, 23",
               f"s_sub_i32 s66, s71, {UR}", "s_max_i32 s66, s66, 0", "s_lshl_b32 s66, s66, 23"]
        for j in range(4):
            ops += [f"s_bfe_u32 s72, s71, {0x20000 + 2*j}", "s_lshl_b32 s72, s72, 16", f"s_or_b32 s{67+j}, s72, s{80+j}"]
        return ops
    def amax_ops(tn, dst):
        a, b = ACC + 4 * tn, ACC + 20 + 4 * tn
        return [f"v_max3_f32 v{dst}, |v{a}|, |v{a+1}|, |v{a+2}|", f"v_max3_f32 v{dst}, v{dst}, |v{a+3}|, |v{b}|",
                f"v_max3_f32 v{dst}, v{dst}, |v{b+1}|, |v{b+2}|", f"v_max_f32_e64 v{dst}, v{dst}, |v{b+3}|"]
    assert WF
    so = amax_ops(1, T0) + [f"v_readlane_b32 s71, v{T0}, 0", f"v_readlane_b32 s72, v{T0}, 21", f"v_readlane_b32 s73, v{T0}, 42", f"v_readlane_b32 s100, v{T0}, 63",
                            "s_max_u32 s71, s71, s72", "s_max_u32 s73, s73, s100", "s_max_u32 s71, s71, s73"] + scale_ops()
    for i, o in enumerate(so): put(2 * 120 + 1 + i * 16 // len(so), o)
    def send_items(tn):
        lown, ljoin, lr, lb = newlab("x"), newlab("x"), newlab("xr"), newlab("xb")
        d = 200 + 4 * tn
        items = amax_ops(tn, T0)
        items += [f"v_cmp_le_f32 vcc, s65, v{T0}", f"v_cmp_le_f32 s[72:73], s66, v{T0}"]
        def chk():
            e("s_cmp_lg_u64 vcc, 0")
            e(f"s_cbranch_scc1 {lr}")
            e("s_cmp_eq_u64 s[72:73], 0")
            e(f"s_cbranch_scc1 {lr}")
            e.label(lb)
        items.append(chk)
        vals = [ACC + 4 * tn + i for i in range(4)] + [ACC + 20 + 4 * tn + i for i in range(4)]
        items += [f"v_fma_mixlo_f16 v{d+j}, v{vals[2*j]}, s64, 0" for j in range(4)]
        items += [f"v_fma_mixhi_f16 v{d+j}, v{vals[2*j+1]}, s64, 0" for j in range(4)]
        items += [f"v_and_or_b32 v{d+j}, v{d+j}, v5, s{67+j}" for j in range(4)]
        def fin():
            e(f"s_cmp_eq_u32 s{S_W}, s{S_HG}")
            e(f"s_cbranch_scc1 {lown}")
            e(f"buffer_store_dwordx4 {vr(d,4)}, v{VL16}, s[{SP}:{SP+3}], s{S_PO if tn < 4 else S_T0} offen offset:{(tn&3)*1024}{opt.get('psflag', ' sc1')}")
            if tn < 4:
                e(f"s_branch {ljoin}")
                e.label(lown)
                for tau in (tn, 5 + tn):
                    e(f"ds_write_b128 v{VL16}, {vr(ACC+4*tau,4)} offset:{tau*1024}")
                e.label(ljoin)
            else:
                e.label(lown)
        items.append(fin)
        def blk():
            e.label(lr)
            e(f"v_mov_b32 v{T1}, v{T0}"); e("s_nop 1"); e(f"v_permlane32_swap_b32 v{T1}, v{T0}"); e(f"v_max_f32 v{T0}, v{T0}, v{T1}")
            e(f"v_mov_b32 v{T1}, v{T0}"); e("s_nop 1"); e(f"v_permlane16_swap_b32 v{T1}, v{T0}"); e(f"v_max_f32 v{T0}, v{T0}, v{T1}")
            for r in (8, 4, 2, 1):
                e(f"v_max_f32_dpp v{T0}, v{T0}, v{T0} row_ror:{r} row_mask:0xf bank_mask:0xf")
            e(f"v_readfirstlane_b32 s71, v{T0}")
            for o in scale_ops(): e(o)
            e(f"s_branch {lb}")
        rare.append(blk)
        return items
    def send(tn):
        for it in send_items(tn):
            if callable(it): it()
            else: e(it)
    for tn in range(4):
        its = send_items(tn)
        g0 = 2 * (120 + 8 * (tn + 1)) + 2
        for i, it in enumerate(its): put(g0 + i * 14 // len(its), it)
    def issue_reads(upto):
        while st["rd"] <= upto and st["rd"] < N:
            s = slots[st["rd"]]
            if s["unit"] != st["cur"]:
                st["cur"] = s["unit"]
                if st["cur"] == 4 and not opt.get("onebar", 0) and not BAR20:
                    e("s_barrier")
                if st["cur"] == (4 if opt.get("onebar", 0) else 6) and not BAR20:
                    wait_vm([("W", 6), ("W", 7)])
                    e("s_barrier")
            for r in s["reads"]:
                if pend is not None and r is s["reads"][1]: pend.append((r, st["rd"]))
                else:
                    e(r); lg.append(st["rd"])
            st["rd"] += 1
    pend = None
    issue_reads(LA - 1)
    for k in range(N):
        if k in pre_slot: pre_slot[k]()
        if slots[k]["tn"] == 0 and k >= (60 if SPEC else 20):
            wait_vm([("O", slots[k]["c"] // 4, slots[k]["c"] & 3)])
            if k % 20 == 0 and k <= 120 and (opt.get("diag", 0) == 3 or (opt.get("diag", 0) == 4 and k <= 60)): stamp()
        if k > st["waited"]:
            kk = k + 1 if (k + 1 < st["rd"]) else k
            idx = max(i for i, t in enumerate(lg) if t == kk)
            e(f"s_waitcnt lgkmcnt({min(15, len(lg)-1-idx)})")
            st["waited"] = kk
        e(slots[k]["mf"][0])
        pend = []
        issue_reads(k + LA)
        for fn in slots[k]["gap"][0]: fn()
        e(slots[k]["mf"][1])
        for r, t in pend:
            e(r); lg.append(t)
        for fn in slots[k]["gap"][1]: fn()
    stamp()
    send(4)
    def wbl2():
        lw = newlab("wb")
        e("s_lshr_b32 s100, s2, 3"); e(f"s_or_b32 s100, s100, s{S_W}"); e(f"s_cmp_eq_u32 s100, {opt.get('wbr', 0)}"); e(f"s_cbranch_scc0 {lw}")
        e("buffer_wbl2 sc1")
        e.label(lw)
    if opt.get("wb", 0) == 1: wbl2()
    stamp()
    l1, l2 = newlab("q"), newlab("q")
    e.label(l1)
    for i in range(3):
        ls = newlab("q")
        e(f"s_bitcmp1_b32 s26, {i}")
        e(f"s_cbranch_scc1 {ls}")
        e(f"buffer_load_dwordx4 {vr(32+8*i,4)}, v{VL16}, s[{SP}:{SP+3}], s{13+i} offen sc1")
        e(f"s_cmp_lg_u32 s{S_W}, s{S_HG}"); e(f"s_cbranch_scc1 {ls}")
        e(f"buffer_load_dwordx4 {vr(36+8*i,4)}, v{VL16}, s[{SP}:{SP+3}], s{17+i} offen sc1")
        e.label(ls)
    e("s_add_u32 s37, s37, 1")
    lfirst = newlab("q")
    e("s_cmp_lg_u32 s37, 1")
    e(f"s_cbranch_scc1 {lfirst}")
    e("s_waitcnt lgkmcnt(0)")
    e("s_barrier")
    e(f"ds_read_b128 v[64:67], v3")
    e(f"ds_read_b128 v[68:71], v3 offset:5120")
    e.label(lfirst)
    e("s_waitcnt vmcnt(0)")
    for i in range(3):
        ls, lt = newlab("q"), newlab("q")
        b = 32 + 8 * i
        e(f"s_bitcmp1_b32 s26, {i}")
        e(f"s_cbranch_scc1 {ls}")
        e(f"v_xor_b32 v4, s80, v{b}")
        for jj in range(1, 4): e(f"v_bitop3_b32 v4, v4, v{b+jj}, s{80+jj} bitop3:0xf6")
        e(f"s_cmp_lg_u32 s{S_W}, s{S_HG}"); e(f"s_cbranch_scc1 {lt}")
        for jj in range(4): e(f"v_bitop3_b32 v4, v4, v{b+4+jj}, s{80+jj} bitop3:0xf6")
        e.label(lt)
        e("v_and_b32 v4, 3, v4")
        e("v_cmp_ne_u32 vcc, 0, v4")
        e("s_cmp_lg_u64 vcc, 0")
        e(f"s_cbranch_scc1 {ls}")
        e(f"s_bitset1_b32 s26, {i}")
        e.label(ls)
    if opt.get("nox", 0): e("s_mov_b32 s26, 7")
    e("s_cmp_eq_u32 s26, 7")
    e(f"s_cbranch_scc1 {l2}")
    e(f"s_cmp_lt_u32 s37, {SPIN}")
    e(f"s_cbranch_scc1 {l1}")
    e.label(l2)
    stamp()
    def decode(off, acc, so0, so1, imm):
        for i in range(3):
            b = 32 + 8 * i + off
            for jj in range(4): e(f"v_readfirstlane_b32 s{64+4*i+jj}, v{b+jj}")
        for i in range(3):
            b = 32 + 8 * i + off
            for jj in range(4): e(f"v_and_or_b32 v{b+jj}, v{b+jj}, v5, s36")
            for jj in range(4): e(f"s_bfe_u32 s{64+4*i+jj}, s{64+4*i+jj}, 0x20010")
            e(f"s_lshl2_add_u32 s{64+4*i+2}, s{64+4*i+3}, s{64+4*i+2}")
            e(f"s_lshl2_add_u32 s{64+4*i+1}, s{64+4*i+2}, s{64+4*i+1}")
            e(f"s_lshl2_add_u32 s{64+4*i}, s{64+4*i+1}, s{64+4*i}")
            e(f"s_lshl_b32 s{64+4*i}, s{64+4*i}, 23")
        e("s_waitcnt lgkmcnt(0)")
        for i in range(3):
            b = 32 + 8 * i + off
            for v_ in range(8):
                e(f"v_fma_mix_f32 v{acc[v_]}, v{b+v_//2}, s{64+4*i}, v{acc[v_]} op_sel:[{v_&1},0,0] op_sel_hi:[1,0,0]")
        for z in range(2):
            e(f"v_cvt_pk_bf16_f32 v{80+off+2*z}, v{acc[4*z]}, v{acc[4*z+1]}")
            e(f"v_cvt_pk_bf16_f32 v{81+off+2*z}, v{acc[4*z+2]}, v{acc[4*z+3]}")
            e(f"buffer_store_dwordx2 {vr(80+off+2*z,2)}, v2, s[{SOUT}:{SOUT+3}], {[so0, so1][z]} offen offset:{imm}")
    ldone = newlab("r")
    decode(0, list(range(64, 72)), "s12", "s16", 0)
    e(f"s_cmp_lg_u32 s{S_W}, s{S_HG}"); e(f"s_cbranch_scc1 {ldone}")
    decode(4, [ACC + 16 + i for i in range(4)] + [ACC + 36 + i for i in range(4)], "0", "s20", 128)
    e.label(ldone)
    if opt.get("wb", 0) == 2: wbl2()

if __name__ == "__main__":
    out = sys.argv[1]
    opt = {}
    for a in sys.argv[2:]:
        k, v = a.split("=")
        if k not in ("kmix", "wpl", "wsp", "wspa", "wspb", "wafter", "pfu", "pfa", "kmixb", "pairb"):
            try: v = int(v)
            except:
                try: v = float(v)
                except: pass
        if k.endswith("flag"): v = (" " + v.replace("+", " ")) if v not in ("none", 0) else ""
        opt[k] = v
    open(out, "w").write(gen(opt))
```

```python
import sys, math
sys.path.insert(0, "gen")
from asmlib import *
NAME = "standalone__gqa_block_cached__near_ridge"
WS_O = 0
WS_P = 16 << 20
WS_F = 28 << 20
WS_DIAG = 32 << 20
SCALE = math.log2(math.e) / math.sqrt(128.0)
SPIN = 0x40000
NONCE_OFF = 256 * 1024

def cost(s):
    if not isinstance(s, str): return s.cost
    op = s.split()[0]
    if op in ("v_exp_f32", "v_rcp_f32"): return 8
    if op.startswith("v_mfma"): return 8
    return 4

class Act:
    def __init__(self, fn, cost): self.fn = fn; self.cost = cost

def gen(opt):
    e = Asm()
    kname = NAME + "_kernel"
    TICK = opt.get("tick", 0)
    if TICK:
        e.raw("; @launch kernel=tick0_kernel grid=(1,1,1) block=(64,1,1) lds=0")
        e.raw(f"; @launch kernel={kname} grid=(256,1,1) block=(256,1,1) lds=163840")
        e.raw("; @launch kernel=tick1_kernel grid=(1,1,1) block=(64,1,1) lds=0")
    else:
        e.raw("; @launch grid=(256,1,1) block=(256,1,1) lds=163840")
    e.raw('.amdgcn_target "amdgcn-amd-amdhsa--gfx950"')
    e.raw(".text")
    kernel_header(e, kname)
    LA = opt.get("LA", 6)
    D = opt.get("d", 3)
    KVF = opt.get("kvflag", " nt")
    XWF = opt.get("xwflag", "")
    WOF = opt.get("woflag", "")
    diag = opt.get("diag", 0)
    FORCE_SLOW = opt.get("slow", 0)
    STOP = opt.get("stop", 0)
    PAIRW = opt.get("pairw", 1)
    ROLES = opt.get("roles", 1)
    NST = opt.get("nst", 0) if ROLES else 0
    S_ROLE = 62
    AKV = 68
    lab = [0]
    def newlab(p):
        lab[0] += 1
        return f"L_{p}{lab[0]}"
    nstamp = [0]
    def stamp():
        if not diag or diag == 9: return
        k = nstamp[0]; nstamp[0] += 1
        assert k < 21
        e("s_memtime s[92:93]")
        e("s_waitcnt lgkmcnt(0)")
        e(f"s_mov_b32 s{40+k}, s92")
    S_W, S_B, S_HG, S_HI, S_H = 3, 4, 5, 6, 7
    SX, SW, SK, SV, SO = 8, 12, 16, 20, 24
    S_W4K, S_T0, S_T1, S_SO, S_C = 28, 29, 30, 31, 32
    S_PO, S_KT, S_FAST, S_SX, S_SW2 = 33, 34, 35, 36, 37
    S_WL, S_WG = 38, 39
    SWO, SOG, SF, SP = 80, 84, 88, 96
    SD = SOG
    VK, VV, VAX, VBW, VAK = 2, 6, 7, 8, 9
    VL16, VDB = 10, 11
    RA = 12
    VM, VMC, VAL = 20, 21, 22
    VWO = [0, 1, 23, 7, 29]
    V_L, T0, T1, T2, T3 = 24, 25, 26, 27, 28
    T4 = 29
    VZ, VPO = 30, 31
    S_TAG = 63
    QF = 32
    Oacc, Sreg = 64, 128
    VX, VW = 128, 132
    R = LA + 2
    AF = 0; XF = 4 * R; XR = 3
    ONES = 116; LACC = 120
    LM = opt.get('lm', 1)
    PA = opt.get('pa', 1)
    RK, RV = 12, 52
    assert XF + 4 * XR <= 44
    AWO = 64
    SPEC = opt.get('spec', 0)
    SO2 = 56
    assert not (SPEC and diag and diag != 9) or opt.get('fewstamps', 0)
    KOFF = opt.get('koff', 0)
    AQ = 32; NEGM = 32; LS = 48; S_RS = 61
    THR = opt.get('thr', 8.0)
    rare = []
    assert R == 8

    e("s_cmp_ge_u32 s2, 256")
    e("s_cbranch_scc1 L_done")
    if diag or opt.get("pad", 0): e("s_memrealtime s[94:95]")
    if diag: e("s_mov_b32 s60, 0")
    e("s_load_dwordx16 s[64:79], s[0:1], 0")
    if opt.get("pf", 1):
        e("s_getpc_b64 s[100:101]")
        e("s_and_b32 s100, s100, 0xffffff00")
        e("s_lshr_b32 s99, s2, 3")
        e("s_lshl_b32 s99, s99, 10")
        e("v_and_b32 v3, 63, v0")
        e("v_lshlrev_b32 v3, 4, v3")
        e("v_lshrrev_b32 v4, 6, v0")
        e("v_lshl_add_u32 v3, v4, 15, v3")
        e("v_add_u32 v3, s99, v3")
        e(f"v_min_u32 v3, (L_done-{kname}-16)&0xfffffff0, v3")
        e("v_mov_b32 v5, s101")
        e("v_add_co_u32 v4, vcc, s100, v3")
        e("v_addc_co_u32 v5, vcc, 0, v5, vcc")
        e("global_load_dwordx4 a[252:255], v[4:5], off")
    e("v_lshrrev_b32 v1, 6, v0")
    e(f"v_and_b32 v{V_L}, 63, v0")
    e(f"v_readfirstlane_b32 s{S_W}, v1")
    e("s_and_b32 s100, s2, 1")
    e("s_lshl_b32 s100, s100, 2")
    e("s_bfe_u32 s101, s2, 0x20003")
    e(f"s_add_u32 s{S_B}, s100, s101")
    e(f"s_bfe_u32 s{S_HG}, s2, 0x20001")
    e(f"s_lshr_b32 s{S_HI}, s2, 5")
    e(f"s_lshl_b32 s{S_H}, s{S_HG}, 3")
    e(f"s_add_u32 s{S_H}, s{S_H}, s{S_HI}")
    if opt.get("homo", 1): e(f"s_mov_b32 s{S_ROLE}, s101")
    else: e(f"s_add_u32 s{S_ROLE}, s101, s{S_HI}")
    e(f"s_and_b32 s{S_ROLE}, s{S_ROLE}, {1 if ROLES else 0}")
    e("s_lshl_b32 s100, s101, 2")
    e(f"s_lshr_b32 s{S_KT}, 0x8530, s100")
    e(f"s_and_b32 s{S_KT}, s{S_KT}, 15")
    e(f"s_add_u32 s{S_KT}, s{S_KT}, s{S_HI}")
    e(f"s_cmp_ge_u32 s{S_KT}, 10")
    e("s_cselect_b32 s100, 10, 0")
    e(f"s_sub_u32 s{S_KT}, s{S_KT}, s100")
    XPF = opt.get("xpf", 1) and ROLES
    NBL = opt.get("nbl", 3)
    if XPF and not opt.get("arot", 0): e(f"s_mov_b32 s{S_KT}, 0")
    e(f"s_lshl_b32 s{S_W4K}, s{S_W}, 12")
    e(f"v_lshrrev_b32 v{T0}, 4, v{V_L}")
    e(f"v_and_b32 v{T1}, 15, v{V_L}")
    e(f"v_lshrrev_b32 v{T2}, 3, v{V_L}")
    e(f"s_lshl_b32 s{S_T0}, s{S_W}, 5")
    e(f"v_add_u32 v{T2}, s{S_T0}, v{T2}")
    e(f"v_mul_u32_u24 v{T2}, 1280, v{T2}")
    e(f"v_and_b32 v{T3}, 7, v{V_L}")
    e(f"v_xor_b32 v{T4}, v{T0}, v{T3}")
    e(f"v_lshl_add_u32 v{VX}, v{T4}, 4, v{T2}")
    e(f"v_add_u32 v{VX+2}, {2*9216}, v{VX}")
    e(f"v_xor_b32 v{T4}, 64, v{VX}")
    e(f"v_add_u32 v{VX+1}, 9216, v{T4}")
    e(f"v_add_u32 v{VX+3}, {3*9216}, v{T4}")
    e(f"v_lshlrev_b32 v{T2}, 2, v{T0}")
    e(f"v_xor_b32 v{T2}, v{T2}, v{T1}")
    e(f"v_lshlrev_b32 v{T2}, 4, v{T2}")
    e(f"s_lshl_b32 s{S_T0}, s{S_W}, 17")
    e(f"v_lshl_add_u32 v{VW}, v{T0}, 13, s{S_T0}")
    e(f"v_add_u32 v{VW}, v{VW}, v{T2}")
    for jj in range(1, 4):
        e(f"v_add_u32 v{VW+jj}, {jj*(32768-1024)}, v{VW}")
    e(f"v_lshl_add_u32 v{T3}, v{T0}, 8, s{S_W4K}")
    e(f"v_add_u32 v{VV}, v{T2}, v{T3}")
    e("s_waitcnt lgkmcnt(0)")
    e(f"s_mul_i32 s{S_T0}, s{S_B}, 163840")
    srd(e, SX, 64, 65, S_T0, 163840)
    e(f"s_lshl_b32 s{S_T0}, s{S_H}, 8")
    e(f"s_sub_u32 s{S_T1}, {640*8192}, s{S_T0}")
    srd(e, SW, 70, 71, S_T0, f"s{S_T1}")
    stamp()
    vmbox = [[]]
    def vm_add(tag, roles=None): vmbox[0].append(tag)
    def wait_vm(tags):
        vm = vmbox[0]
        idx = max(i for i, t in enumerate(vm) if t in tags)
        e(f"s_waitcnt vmcnt({min(63, len(vm) - 1 - idx)})")
    slot_of = {}
    for j in range(10):
        slot_of[("x", j)] = j % 3
        slot_of[("w", j)] = [3, 4, 8][j % 3]
    kvt = [("k",0),("k",1),("k",2),("k",3),("v",0),("v",1),("k",4),("k",5),("v",2),("v",3),("k",6),("k",7),("v",4),("v",5),("v",6),("v",7)]
    for i, t in enumerate(kvt): slot_of[t] = 5 + (i + 4) % 5
    assert D == 3 and NST <= 3
    def dma_ops(t):
        kind, j = t
        so = slot_of[t] * 16384
        out = []
        for jj in range(4):
            g = []
            if jj == 0:
                g.append(f"s_add_u32 m0, s{S_W4K}, {so}")
                if kind == "x":
                    g += [f"s_lshl_b32 s{S_SX}, s{S_KT}, 7", f"s_lshl_b32 s{S_SW2}, s{S_KT}, 19", f"s_add_u32 s{S_KT}, s{S_KT}, 1",
                          f"s_cmp_ge_u32 s{S_KT}, 10", f"s_cselect_b32 s{S_KT}, 0, s{S_KT}"]
                elif kind in "kv":
                    g.append(f"s_mov_b32 s{S_SO}, {16384*j}")
            elif kind in "kv" and (t in kvt[:4] or opt.get("dla") or opt.get("dlb")):
                g.append(f"s_add_u32 m0, s{S_W4K}, {so}")
            if kind == "x":
                g.append(f"buffer_load_dwordx4 v{VX+jj}, s[{SX}:{SX+3}], s{S_SX} offen offset:{1024*jj}{XWF} lds")
            elif kind == "w":
                g.append(f"buffer_load_dwordx4 v{VW+jj}, s[{SW}:{SW+3}], s{S_SW2} offen offset:{1024*jj}{XWF} lds")
            elif kind == "k":
                g.append(f"buffer_load_dwordx4 v{VK+jj}, s[{SK}:{SK+3}], s{S_SO} offen offset:{1024*jj}{KVF} lds")
            else:
                g.append(f"buffer_load_dwordx4 v{VV}, s[{SV}:{SV+3}], s{S_SO} offen offset:{1024*jj}{KVF} lds")
            out.append(g)
        return out
    def emit_group(g, tag, roles="AB"):
        for s in g: e(s)
        vm_add(tag, roles)
    def kv_setup():
        for jj in range(4):
            e(f"v_add_u32 v{T2}, {4*jj}, v{T0}")
            e(f"v_xor_b32 v{T2}, v{T2}, v{T1}")
            e(f"v_lshl_add_u32 v{VK+jj}, v{T2}, 4, v{T3}")
        e(f"s_lshl_b32 s{S_T1}, s{S_B}, 5")
        e(f"s_add_u32 s{S_T1}, s{S_T1}, s{S_H}")
        e(f"s_lshl_b32 s{S_T0}, s{S_T1}, 17")
        srd(e, SK, 66, 67, S_T0, 131072)
        srd(e, SV, 68, 69, S_T0, 131072)
    def burst():
        for n in range(NBL):
            for g in dma_ops(kvt[n]): emit_group(g, kvt[n])
        for n in range(4, 4 + NST):
            kind, j = kvt[n]
            e(f"s_mov_b32 s{S_SO}, {16384*j}")
            for jj in range(4):
                vo, sr_ = (VK + jj, SK) if kind == "k" else (VV, SV)
                e(f"buffer_load_dwordx4 {ar(AKV+16*(n-4)+4*jj,4)}, v{vo}, s[{sr_}:{sr_+3}], s{S_SO} offen offset:{1024*jj}{KVF}"); vm_add(kvt[n])
    vmB_pre = []
    if XPF:
        e(f"s_cmp_eq_u32 s{S_ROLE}, 0")
        e("s_cbranch_scc1 L_noxpf")
        e(f"s_lshl_b32 s100, s{S_HI}, 1"); e("s_bfe_u32 s101, s2, 0x10004"); e("s_add_u32 s100, s100, s101")
        e(f"s_lshl_b32 s100, s100, 2"); e(f"s_add_u32 s100, s100, s{S_W}")
        e(f"s_lshl_b32 s101, s100, 13")
        e(f"v_lshl_add_u32 v140, v{V_L}, 4, s101")
        e("s_mul_i32 s101, s100, 10240")
        e(f"v_lshrrev_b32 v141, 3, v{V_L}"); e("v_mul_u32_u24 v141, 1280, v141")
        e(f"v_and_b32 v142, 7, v{V_L}"); e("v_lshl_add_u32 v141, v142, 4, v141"); e("v_add_u32 v141, s101, v141")
        e("s_and_b32 s100, s2, 1"); e(f"s_mul_i32 s100, s100, {4*163840}")
        srd(e, SK, 64, 65, 100, 4 * 163840)
        e(f"s_lshl_b32 s100, s{S_HG}, 11"); e(f"s_sub_u32 s101, {640*8192}, s100")
        srd(e, SV, 70, 71, 100, "s101")
        for j in range(opt.get("nxpf", 10)):
            e(f"s_movk_i32 s100, {128*j}"); e(f"s_mov_b32 s101, {524288*j}")
            e(f"buffer_load_dwordx4 a[248:251], v140, s[{SV}:{SV+3}], s101 offen{XWF}")
            e(f"buffer_load_dwordx4 a[248:251], v141, s[{SK}:{SK+3}], s100 offen{XWF}")
            e(f"buffer_load_dwordx4 a[248:251], v140, s[{SV}:{SV+3}], s101 offen offset:1024{XWF}")
        if opt.get("bpos", -1) < 0:
            kv_setup()
            burst()
        vmB_pre = list(vmbox[0]); vmbox[0] = []
        e.label("L_noxpf")
    ini = [dma_ops(("x", 0)), dma_ops(("w", 0)), dma_ops(("x", 1)), dma_ops(("w", 1))]
    for i, t in enumerate((("x", 0), ("w", 0), ("x", 1))):
        for g in ini[i]: emit_group(g, t)
    stamp()
    kv_setup()
    e(f"s_mul_i32 s{S_T0}, s{S_HG}, {1024*1280}")
    if opt.get("pfb", 4) == 5:
        e("s_lshr_b32 s100, s2, 3"); e(f"s_lshl_b32 s100, s100, 2"); e(f"s_add_u32 s100, s100, s{S_W}"); e("s_mul_i32 s100, s100, 10240")
    else:
        e(f"s_lshl_b32 s100, s{S_HI}, 1"); e("s_bfe_u32 s101, s2, 0x10004"); e("s_add_u32 s100, s100, s101")
        e(f"s_lshl_b32 s100, s100, 2"); e(f"s_add_u32 s100, s100, s{S_W}"); e("s_mul_i32 s100, s100, 20480")
    e(f"s_add_u32 s{S_T0}, s{S_T0}, s100")
    srd(e, SO, 72, 73, S_T0, 20480)
    srd(e, SD, 76, 77, None, 256)
    if SPEC:
        e(f"s_lshl_b32 s100, s{S_B}, 5"); e(f"s_add_u32 s100, s100, s{S_H}"); e("s_lshl_b32 s100, s100, 2"); e(f"s_add_u32 s100, s100, s{S_W}"); e("s_lshl_b32 s100, s100, 13")
        srd(e, SO2, 78, 79, 100, 8192)
    e(f"s_mul_i32 s{S_T0}, s{S_HG}, {1024*1280}")
    e(f"s_mul_i32 s{S_T1}, s{S_HI}, 160")
    e(f"s_add_u32 s{S_T0}, s{S_T0}, s{S_T1}")
    e(f"s_sub_u32 s{S_T1}, {4096*1280}, s{S_T0}")
    srd(e, SWO, 72, 73, S_T0, f"s{S_T1}")
    e(f"s_mov_b32 s{S_T0}, {WS_F}")
    srd(e, SF, 78, 79, S_T0, 256 * 1024 + 128)
    e(f"s_lshl_b32 s{S_T0}, s{S_B}, 3"); e(f"s_add_u32 s{S_T0}, s{S_T0}, s{S_HI}")
    e(f"s_mul_i32 s{S_T0}, s{S_T0}, 81920"); e(f"s_add_u32 s{S_T0}, s{S_T0}, {WS_P}")
    srd(e, SP, 78, 79, S_T0, 81920)
    e(f"s_lshl_b32 s{S_PO}, s{S_HG}, 2"); e(f"s_add_u32 s{S_PO}, s{S_PO}, s{S_W}"); e(f"s_mul_i32 s{S_PO}, s{S_PO}, 5120")

    e(f"v_and_b32 v{T0}, 31, v{V_L}")
    e(f"v_lshrrev_b32 v{T1}, 5, v{V_L}")
    e(f"v_bfe_u32 v{T2}, v{V_L}, 1, 3")
    e(f"v_xor_b32 v{T2}, v{T2}, v{T1}")
    e(f"v_lshlrev_b32 v{T2}, 4, v{T2}")
    e(f"v_lshl_add_u32 v{T3}, v{T0}, 7, s{S_W4K}")
    e(f"v_add_u32 v{VAX}, v{T2}, v{T3}")
    e(f"v_and_b32 v{T2}, 19, v{T0}")
    e(f"v_bfe_u32 v{T3}, v{T0}, 2, 1")
    e(f"v_lshl_or_b32 v{T2}, v{T3}, 3, v{T2}")
    e(f"v_bfe_u32 v{T3}, v{T0}, 3, 1")
    e(f"v_lshl_or_b32 v{T2}, v{T3}, 2, v{T2}")
    e(f"v_and_b32 v{T3}, 15, v{T2}")
    e(f"v_xor_b32 v{T3}, v{T3}, v{T1}")
    e(f"v_lshlrev_b32 v{T3}, 4, v{T3}")
    e(f"v_lshl_add_u32 v{VAK}, v{T2}, 8, v{T3}")
    e(f"v_bfe_u32 v{T2}, v{V_L}, 2, 2")
    e(f"v_mul_u32_u24 v{T2}, 320, v{T2}")
    e(f"v_lshl_add_u32 v{T2}, v{T1}, 11, v{T2}")
    e(f"v_bfe_u32 v{T3}, v{V_L}, 4, 1")
    e(f"v_lshl_add_u32 v{T2}, v{T3}, 5, v{T2}")
    e(f"v_and_b32 v{T3}, 1, v{V_L}")
    e(f"v_lshl_add_u32 v{T2}, v{T3}, 4, v{T2}")
    e(f"v_bfe_u32 v{T3}, v{V_L}, 1, 1")
    e(f"v_lshl_add_u32 v{VBW}, v{T3}, 3, v{T2}")
    e(f"v_lshlrev_b32 v{VL16}, 4, v{V_L}")
    e(f"s_mov_b32 s{S_C}, {f32bits(SCALE)}")
    for g in ini[3]: emit_group(g, ("w", 1))
    e(f"s_mov_b32 s100, {NONCE_OFF}")
    e(f"buffer_load_dword v{VDB}, off, s[{SF}:{SF+3}], s100 sc1"); vm_add("oldn")
    e("v_or_b32 v1, s2, v0")
    e(f"v_mov_b32 v{T0}, 0x7fffffff")
    e("v_cmp_eq_u32 vcc, 0, v1")
    e(f"v_cndmask_b32 v{VZ}, v{T0}, 0, vcc")
    e(f"v_and_b32 v{T0}, 7, v{V_L}")
    e("s_and_b32 s100, s2, 31"); e("s_lshl_b32 s100, s100, 10")
    e(f"v_lshl_add_u32 v{VPO}, v{T0}, 15, s100")
    for ee in range(5):
        e(f"v_add_u32 v{T0}, {64*ee}, v{V_L}")
        e(f"v_mul_u32_u24 v{T1}, 6554, v{T0}")
        e(f"v_lshrrev_b32 v{T1}, 16, v{T1}")
        e(f"v_mul_u32_u24 v{T2}, 10, v{T1}")
        e(f"v_sub_u32 v{T2}, v{T0}, v{T2}")
        e(f"v_mul_u32_u24 v{T1}, 1280, v{T1}")
        if ee == 3:
            e(f"v_lshl_add_u32 v{T1}, v{T2}, 4, v{T1}")
            e(f"v_subrev_u32 v{T1}, {1024*ee}, v{T1}")
            e(f"v_accvgpr_write_b32 a{AWO}, v{T1}")
        elif 0 < ee < 4:
            e(f"v_lshl_add_u32 v{T1}, v{T2}, 4, v{T1}")
            e(f"v_subrev_u32 v{VWO[ee]}, {1024*ee}, v{T1}")
        else:
            e(f"v_lshl_add_u32 v{VWO[ee]}, v{T2}, 4, v{T1}")

    def attention(role):
        slots = []
        def add_slot(unit, reads, mf, tag=None):
            slots.append(dict(unit=unit, reads=reads, mf=mf, fill=[], fill2=[], dma=[], post=[], tag=tag))
        ring = [0]
        def newbuf():
            b = AF + 4 * (ring[0] % R); ring[0] += 1
            return b
        for j in range(10):
            for s in range(4):
                xi = (j * 4 + s) % XR
                for t in range(4):
                    ab = newbuf()
                    rd = []
                    if t == 0: rd.append(f"ds_read_b128 {ar(XF+4*xi,4)}, v{RA+4+s}")
                    rd.append(f"ds_read_b64_tr_b16 {ar(ab,2)}, v{RA+t} offset:{s*4096}")
                    rd.append(f"ds_read_b64_tr_b16 {ar(ab+2,2)}, v{RA+t} offset:{s*4096+1024}")
                    c = "0" if (j == 0 and s == 0) else vr(Oacc+16*t, 16)
                    add_slot(("s", j), rd, f"v_mfma_f32_32x32x16_bf16 {vr(Oacc+16*t,16)}, {ar(ab,4)}, {ar(XF+4*xi,4)}, {c}")
        def sbuf(q): return Sreg + 64 * (q & 1)
        def frag_ops(q, f):
            b = sbuf(q) + 8 * f
            ops = [f"v_add_f32 v{b+i}, v{b+i}, v{NEGM}" for i in range(8)] if q == 0 else []
            ops += [f"v_exp_f32 v{b+i}, v{b+i}" for i in range(8)]
            if LM: pass
            elif q == 0 and f == 0:
                ops += [f"v_add_f32 v{LS+i}, v{b+i}, v{b+4+i}" for i in range(4)]
            else:
                ops += [f"v_add_f32 v{LS+(i&3)}, v{LS+(i&3)}, v{b+i}" for i in range(8)]
            ops += [f"v_cvt_pk_bf16_f32 v{b+i}, v{b+2*i}, v{b+2*i+1}" for i in range(4)]
            return ops
        def max_ops(q, sg):
            b = sbuf(q) + 16 * sg
            ops = []
            for i in range(8):
                if sg == 0 and i == 0:
                    ops.append(f"v_max_f32 v{VM}, v{b}, v{b+1}")
                else:
                    ops.append(f"v_max3_f32 v{VM}, v{VM}, v{b+2*i}, v{b+2*i+1}")
            return ops
        def check1(q):
            def f():
                lr, lb = newlab("rr"), newlab("rb")
                e(f"v_cmp_lt_f32 vcc, {f32bits(float(THR))}, v{VM}")
                e("s_cmp_lg_u64 vcc, 0")
                e(f"s_cbranch_scc1 {lr}")
                e.label(lb)
                def blk():
                    e.label(lr)
                    e(f"v_mov_b32 v{T0}, v{VM}")
                    e("s_nop 1")
                    e(f"v_permlane32_swap_b32 v{T0}, v{VM}")
                    e(f"v_max3_f32 v{VM}, v{T0}, v{VM}, 0")
                    e(f"v_exp_f32 v{VAL}, -v{VM}")
                    for i in range(64): e(f"v_sub_f32 v{sbuf(q)+i}, v{sbuf(q)+i}, v{VM}")
                    if not LM:
                        for i in range(4): e(f"v_mul_f32 v{LS+i}, v{LS+i}, v{VAL}")
                    for i in range(16): e(f"v_sub_f32 v{NEGM+i}, v{NEGM+i}, v{VM}")
                    e(f"s_mov_b32 s{S_RS}, 1")
                    e("s_nop 1")
                    e(f"s_branch {lb}")
                rare.append(blk)
            return Act(f, 12)
        def check2():
            def f():
                lr, lb = newlab("rr"), newlab("rb")
                e(f"s_cmp_lg_u32 s{S_RS}, 0")
                e(f"s_cbranch_scc1 {lr}")
                e.label(lb)
                def blk():
                    e.label(lr)
                    e("s_nop 15")
                    for i in range(64): e(f"v_mul_f32 v{Oacc+i}, v{Oacc+i}, v{VAL}")
                    if LM:
                        e(f"v_accvgpr_read_b32 v{T0}, a{LACC}"); e(f"v_mul_f32 v{T0}, v{T0}, v{VAL}"); e(f"v_accvgpr_write_b32 a{LACC}, v{T0}")
                    e(f"s_mov_b32 s{S_RS}, 0")
                    e("s_nop 1")
                    e(f"s_branch {lb}")
                rare.append(blk)
            return Act(f, 8)
        seg = {}
        def add_qk(q):
            a = len(slots)
            for jl in range(2):
                unit = ("k", 2*q + jl)
                for u in range(2):
                    sg = 2 * jl + u
                    sb = sbuf(q) + 16 * sg
                    for m in range(8):
                        ab = newbuf()
                        c = ("0" if q == 0 else vr(NEGM, 16)) if m == 0 else vr(sb, 16)
                        so_ = (slot_of[unit] - 5) % 4 * 16384 if PA else 0
                        add_slot(unit, [f"ds_read_b128 {ar(ab,4)}, v{RA+m} offset:{so_+u*8192}"],
                                 f"v_mfma_f32_32x32x16_bf16 {vr(sb,16)}, {ar(ab,4)}, {ar(AQ+4*m,4)}, {c}")
            seg[("qk", q)] = (a, len(slots))
        def add_pv(q):
            a = len(slots)
            def lslot(unit, f):
                first = (q == 0 and f == 0)
                add_slot(unit, [], f"v_mfma_f32_32x32x16_bf16 {ar(LACC,16)}, {ar(ONES,4)}, {vr(sbuf(q)+8*f,4)}, {'0' if first else ar(LACC,16)}")
            def oslot(unit, f, t):
                first = (q == 0 and f == 0); m = f & 3
                ab = newbuf()
                so_ = (slot_of[unit] - 5) % 4 * 16384 if PA else 0
                rb = (RV + (4 if slot_of[unit] == 9 else 0) + t) if PA else RA + t
                rd = [f"ds_read_b64_tr_b16 {ar(ab,2)}, v{rb} offset:{so_+m*4096}",
                      f"ds_read_b64_tr_b16 {ar(ab+2,2)}, v{rb} offset:{so_+m*4096+1024}"]
                add_slot(unit, rd, f"v_mfma_f32_32x32x16_bf16 {vr(Oacc+16*t,16)}, {ar(ab,4)}, {vr(sbuf(q)+8*f,4)}, {'0' if first else vr(Oacc+16*t,16)}")
            for jl in range(2):
                unit = ("v", 2*q + jl)
                if q == 3 and jl == 1:
                    for t in range(4):
                        for m in range(4): oslot(unit, 4 + m, t)
                    continue
                for m in range(4):
                    f = 4 * jl + m
                    if LM: lslot(unit, f)
                    for t in range(4): oslot(unit, f, t)
                if q == 3 and LM:
                    for f in range(4, 8): lslot(unit, f)
            seg[("pv", q)] = (a, len(slots))
        add_qk(0); add_qk(1); add_pv(0); add_qk(2); add_pv(1); add_qk(3); add_pv(2); add_pv(3)
        N = len(slots)
        unit_first = {}
        for k, s in enumerate(slots): unit_first.setdefault(s["unit"], k)
        def unit_range(u):
            ks = [k for k, s in enumerate(slots) if s["unit"] == u]
            return ks[0], ks[-1] + 1
        for j in range(8):
            k0 = unit_first[("s", j)]
            if j >= 1 and not opt.get("nob2", 0): slots[k0]["post"].append("barrier2")
            ops = [(g, ("x", j+2)) for g in dma_ops(("x", j+2))] + [(g, ("w", j+2)) for g in dma_ops(("w", j+2))]
            for i, (g, t) in enumerate(ops):
                slots[k0 + 2 * i]["dma"].append((g, t))
        def b_prefetch():
            for n in range(4):
                for g in dma_ops(kvt[n]): emit_group(g, kvt[n])
            for n in range(4, 4 + NST):
                kind, j = kvt[n]
                e(f"s_mov_b32 s{S_SO}, {16384*j}")
                for jj in range(4):
                    vo, sr_ = (VK + jj, SK) if kind == "k" else (VV, SV)
                    e(f"buffer_load_dwordx4 {ar(AKV+16*(n-4)+4*jj,4)}, v{vo}, s[{sr_}:{sr_+3}], s{S_SO} offen offset:{1024*jj}{KVF}"); vm_add(kvt[n])
        PFB = opt.get("pfb", 4)
        def pf_ops(n):
            return [([f"s_movk_i32 s{S_T0}, {(i>>2)*4096}"] if i % 4 == 0 else []) + [f"buffer_load_dwordx4 a[252:255], v{VL16}, s[{SO}:{SO+3}], s{S_T0} offen offset:{(i&3)*1024}{WOF}"] for i in range(n)]
        def b_all():
            if PFB == 1:
                for gg in pf_ops(20): emit_group(gg, "pf")
            b_prefetch()
            if PFB == 2:
                for gg in pf_ops(20): emit_group(gg, "pf")
        if role == "B" and not XPF:
            slots[unit_first[("s", opt.get("bst", 1))] + 15]["fill"].append(Act(b_all, 0))
        if role == "B" and XPF and opt.get("bpos", -1) >= 0:
            slots[unit_first[("s", opt["bpos"])] + opt.get("bsl", 15)]["fill"].append(Act(burst, 0))
        if role == "B" and XPF and "kmixb" in opt:
            kops = [(g, kvt[n]) for n in range(NBL, 4) for g in dma_ops(kvt[n])]
            km = str(opt["kmixb"]).zfill(10)
            assert sum(int(c, 16) for c in km) == len(kops)
            for j in range(10):
                c = int(km[j], 16); k0 = unit_first[("s", j)]
                for i in range(c):
                    if j < 8: pos = 7 if i < c // 2 else 15
                    else: pos = (2 * i + 1) * 16 // (2 * c)
                    slots[k0 + pos]["dma"].append(kops.pop(0))
        elif role == "B" and XPF and NBL < 4:
            kops = [(g, kvt[n]) for n in range(NBL, 4) for g in dma_ops(kvt[n])]
            k0 = unit_first[("s", 8)]
            for i, it in enumerate(kops): slots[k0 + (2 * i + 1) * 32 // (2 * len(kops))]["dma"].append(it)
        if SPEC and not STOP:
            a, b = unit_range(kvt[opt.get("pfillu", 2)])
            for i in range(8):
                gg = ([f"s_movk_i32 s{S_T1}, {(i>>2)*4096}"] if i % 4 == 0 else []) + [f"buffer_store_dwordx4 v[52:55], v{VL16}, s[{SO2}:{SO2+3}], s{S_T1} offen offset:{(i&3)*1024}{opt.get('pfillflag', '')}"]
                if opt.get("nopfill", 0): gg = []
                slots[a + 8 + i]["dma"].append((gg, "pfill"))
        if PFB == 5:
            a, b = unit_range(kvt[int(str(opt.get("pfa" if role == "A" else "pfu", "c")), 16)])
            for i, gg in enumerate(pf_ops(10)):
                slots[a + 8 + i * 8 // 10]["dma"].append((gg, "pf"))
        if role == "A" and PFB == 4:
            lo_u, hi_u = [int(c, 16) for c in str(opt.get("pfu", "18"))]
            nu = hi_u - lo_u + 1
            for i, gg in enumerate(pf_ops(20)):
                a, b = unit_range(kvt[lo_u + i * nu // 20])
                j = i - min(ii for ii in range(20) if ii * nu // 20 == i * nu // 20)
                slots[a + 9 + 2 * j]["dma"].append((gg, "pf"))
        if role == "B" and PFB == 3:
            lo_u, hi_u = [int(c, 16) for c in str(opt.get("pfu", "03"))]
            a = unit_range(kvt[lo_u])[0] + 6; b = unit_range(kvt[hi_u])[1]
            for i, gg in enumerate(pf_ops(20)):
                slots[a + i * (b - a) // 20]["dma"].append((gg, "pf"))
        if role != "B":
            kops = [(g, kvt[n]) for n in range(4) for g in dma_ops(kvt[n])]
            npf = opt.get("npf", 20) if role == "A" and not STOP and not PFB else 0
            pfo = [([f"s_movk_i32 s{S_T0}, {(i>>2)*4096}"] if i % 4 == 0 else []) + [f"buffer_load_dwordx4 a[252:255], v{VL16}, s[{SO}:{SO+3}], s{S_T0} offen offset:{(i&3)*1024}{WOF}"] for i in range(npf)]
            pfo = [(g, "pf") for g in pfo]
            if opt.get("pffirst", 1): kops = pfo + kops
            else: kops = kops + pfo
            kmix = str(opt.get("kmix", ("0000000088" if PFB else "00000006ff") if role == "A" else "0002222224")).zfill(10)
            assert sum(int(c, 16) for c in kmix) == len(kops), len(kops)
            for j in range(10):
                c = int(kmix[j], 16); k0 = unit_first[("s", j)]
                for i in range(c):
                    if j < 8: pos = 7 if i < c // 2 else 15
                    else: pos = (2 * i + 1) * 16 // (2 * c)
                    slots[k0 + pos]["dma"].append(kops.pop(0))
        dl = str(opt.get("dla" if role == "A" else "dlb", "000000000000"))
        for n in range(4, 16):
            a, b = unit_range(kvt[n - D])
            a += 2 * int(dl[n - 4], 16)
            L = 16
            for i, g in enumerate(dma_ops(kvt[n])):
                if role == "B" and n < 4 + NST:
                    alt = [f"v_add_u32 v{T3}, s{S_W4K}, v{VL16}", f"v_add_u32 v{T3}, {slot_of[kvt[n]]*16384}, v{T3}"] if i == 0 else []
                    alt.append(f"ds_write_b128 v{T3}, {ar(AKV+16*(n-4)+4*i,4)} offset:{1024*i}")
                    slots[a + (2 * i) * L // 16 + 1 + KOFF]["dma"].append((alt, None))
                else:
                    slots[a + (2 * i) * L // 16 + 1 + KOFF]["dma"].append((g, kvt[n]))
        NS0 = opt.get('ns0', 4)
        AST = 256 - 20 * (8 - NS0)
        WROT = opt.get("wrot", 1)
        def w_grp(g):
            if not WROT or g >= 4: return [f"s_add_u32 s100, s{S_W}, {4*g}"]
            return ["s_bfe_u32 s100, s2, 0x20003", f"s_add_u32 s100, s100, {g & 3}", "s_and_b32 s100, s100, 3", "s_lshl_b32 s100, s100, 2",
                    f"s_add_u32 s100, s100, s{S_W}"] + ([f"s_add_u32 s100, s100, 16"] if g >= 4 else [])
        def w_lds(g, dst):
            return w_grp(g) + [f"s_mul_i32 s{dst}, s100, 5120"]
        def w_ops(g, stage=False):
            glob = [f"s_lshl_b32 s101, s{S_HI}, 2", "s_add_u32 s100, s100, s101", "s_and_b32 s100, s100, 31", f"s_mul_i32 s{S_WG}, s100, {32*1280}"]
            out = []
            if stage:
                pre = w_grp(g) + glob
                for ee in range(5):
                    out.append((pre if ee == 0 else []) + [f"buffer_load_dwordx4 {ar(AST+20*(g-NS0)+4*ee,4)}, v{VWO[ee]}, s[{SWO}:{SWO+3}], s{S_WG} offen offset:{1024*ee if ee<4 else 0}{WOF}"])
                return out
            pre = w_lds(g, S_WL) + [f"s_mov_b32 m0, s{S_WL}"] + glob
            for ee in range(4):
                out.append((pre if ee == 0 else [f"s_mov_b32 m0, s{S_WL}", "s_nop 0"]) + [f"buffer_load_dwordx4 v{VWO[ee]}, s[{SWO}:{SWO+3}], s{S_WG} offen offset:{1024*ee}{WOF} lds"])
            out.append([f"s_add_u32 m0, s{S_WL}, 4096", "s_nop 0", f"buffer_load_dwordx4 v{VWO[4]}, s[{SWO}:{SWO+3}], s{S_WG} offen{WOF} lds"])
            return out
        def pmap(c): return c
        assert NS0 == 4
        def place_w(rng, role):
            lo_u, hi_u = [int(c, 16) for c in rng]
            sp = [(gg, ("W", g)) for g in range(4) for gg in w_ops(g, False)]
            nu = hi_u - lo_u + 1
            byu = {}
            for i, it in enumerate(sp): byu.setdefault(lo_u + i * nu // len(sp), []).append(it)
            for n, ops in byu.items():
                a, b = unit_range(kvt[n]); L = b - a
                nokv = n + D > 15 or n == 0 or (role == "B" and n + D < 4 + NST)
                lo = a + 1 if nokv else a + L // 2 + 1 + KOFF
                if n == 15: b = a + 8
                for i, it in enumerate(ops):
                    slots[lo + i * (b - lo) // len(ops)]["dma"].append(it)
        if not STOP:
            for gi, n in ((4, 14), (5, 15)):
                a, b = unit_range(kvt[n])
                for i, gg in enumerate(w_ops(gi, False)):
                    slots[a + (8 if n == 14 else 0) + i]["dma"].append((gg, ("W", gi)))
            place_w(str(opt.get({"A": "wspa", "B": "wspb", "AB": "wsp"}[role], {"A": "cd", "B": "cd", "AB": "0b"}[role])), role)
        def misc_acts():
            def m0():
                wait_vm(["dbgld"])
                l1, l2 = newlab("dc"), newlab("dc")
                e("s_mov_b32 s101, 0")
                e.label(l1)
                e(f"v_xor_b32 v{T0}, v{T3}, v{VDB}")
                e(f"v_cmp_gt_u32 vcc, 16, v{T0}")
                e("s_cmp_eq_u64 vcc, -1")
                e(f"s_cbranch_scc1 {l2}")
                e("s_add_u32 s101, s101, 1")
                e(f"s_cmp_ge_u32 s101, {SPIN}")
                e(f"s_cbranch_scc1 {l2}")
                e("s_sleep 8")
                e(f"buffer_load_dword v{T3}, v{VPO}, s[{SF}:{SF+3}], 0 offen offset:512 sc1")
                e("s_waitcnt vmcnt(0)")
                e(f"s_branch {l1}")
                e.label(l2)
                e(f"v_cmp_eq_u32 vcc, 0, v{T0}")
                e("s_cmp_eq_u64 vcc, -1")
                e(f"s_cselect_b32 s{S_FAST}, {0 if (FORCE_SLOW or (opt.get('slowa', 0) and role == 'A')) else 1}, 0")
            def m1():
                e(f"s_lshl_b32 s{S_T0}, s{S_B}, 2"); e(f"s_add_u32 s{S_T0}, s{S_T0}, s{S_HG}"); e(f"s_lshl_b32 s{S_T0}, s{S_T0}, 18")
                e(f"s_lshl_b32 s100, s{S_W}, 13")
                e(f"s_add_u32 s{S_T0}, s{S_T0}, s100")
                srd(e, SOG, 78, 79, S_T0, 7 * 32768 + 8192)
            def m2():
                e(f"s_lshl_b32 s100, s{S_HI}, 15")
                e(f"s_add_u32 s{S_T0}, s{S_T0}, s100")
                srd(e, SO, 78, 79, S_T0, 8192)
                e(f"s_lshl_b32 s{S_T0}, s2, 3"); e(f"s_add_u32 s{S_T0}, s{S_T0}, s{S_W}"); e(f"s_lshl_b32 s{S_T0}, s{S_T0}, 7")
            def m3():
                e(f"v_mov_b32 v{VZ}, s{S_T0}")
                e(f"v_mov_b32 v{T0}, 0x7fffffff")
                e(f"v_cmp_eq_u32 vcc, 0, v{V_L}")
                e(f"v_mov_b32 v{T2}, s{S_TAG}")
                e(f"v_add_u32 v{T3}, s{S_HI}, v{V_L}")
                e(f"v_cndmask_b32 v{VZ}, v{T0}, v{VZ}, vcc")
                e(f"v_and_b32 v{T3}, 7, v{T3}")
            def m4():
                e(f"s_and_b32 s{S_T0}, s2, 31"); e(f"s_lshl_b32 s{S_T0}, s{S_T0}, 3"); e(f"s_add_u32 s{S_T0}, s{S_T0}, s{S_W}"); e(f"s_lshl_b32 s{S_T0}, s{S_T0}, 7")
                e(f"v_lshl_add_u32 v{VPO}, v{T3}, 15, s{S_T0}")
            return [Act(m0, 36), Act(m1, 36), Act(m2, 36), Act(m3, 28), Act(m4, 20)]
        def base_cost(k):
            s = slots[k]
            return 8 + 4 * len(slots[min(N-1, k+LA)]["reads"]) + (2 if PAIRW else 4) + sum(4 * len(x[0]) for x in s["dma"]) + sum(cost(x) for x in s["fill"] + s["fill2"])
        def spread(ops, a, b, dead=None):
            tot = sum(cost(o) for o in ops)
            lo, hi = 0, 400
            def place(level, commit):
                i = 0
                for k in range(a, b):
                    c = base_cost(k)
                    while i < len(ops):
                        if c + cost(ops[i]) <= level:
                            c += cost(ops[i])
                            if commit: slots[k]["fill"].append(ops[i])
                            i += 1
                        else: break
                    if dead and any(oi >= i and sl <= k + 1 for oi, sl in dead): return False
                return i == len(ops)
            while lo < hi:
                mid = (lo + hi) // 2
                if place(mid, False): hi = mid
                else: lo = mid + 1
            assert place(lo, True)
            return lo
        for q in range(4):
            a, b = seg[("qk", q)]
            for sg in range(3):
                base = a + 8 * (sg + 1)
                mo = max_ops(q, sg)
                for i in range(4): slots[base + 4 + i]["fill"] += mo[2*i:2*i+2]
        lv = []
        X0 = opt.get("x0", 13)
        for q in range(1, 4):
            a, b = seg[("pv", q - 1)]
            mo = max_ops(q, 3)
            for i in range(4): slots[a + 3 + i]["fill"] += mo[2*i:2*i+2]
            slots[a + (X0 if q == 1 else 7)]["fill2"].append(check1(q))
        for q in (1, 2):
            slots[seg[("qk", q + 1)][0]]["fill"].append(check2())
        def qconv(t):
            ops = []
            for i in range(0, 16, 2):
                r = Oacc + 16 * t + i
                ops.append(f"v_pk_mul_f32 v[{r}:{r+1}], v[{r}:{r+1}], v[{T1}:{T1+1}] op_sel_hi:[1,0]") if t < 2 else ops.extend([f"v_mul_f32 v{r}, v{r}, v{T1}", f"v_mul_f32 v{r+1}, v{r+1}, v{T1}"])
            ops += [f"v_cvt_pk_bf16_f32 v{Oacc+16*t+i}, v{Oacc+16*t+2*i}, v{Oacc+16*t+2*i+1}" for i in range(8)]
            ops += [f"v_accvgpr_write_b32 a{AQ+8*t+i}, v{Oacc+16*t+i}" for i in range(8)]
            return ops
        a, b = seg[("qk", 0)]
        lv.append(spread(qconv(2) + qconv(3), a, a + 6, dead=[(31, a + 4), (63, a + 6)]))
        if PA:
            a, b = seg[("qk", 0)]
            va = [f"v_add_u32 v{RV}, {5*16384}, v{VBW}"] + [f"v_xor_b32 v{RV+t}, {t<<6}, v{RV}" for t in range(1, 4)]
            va += [f"v_add_u32 v{RV+4+t}, {4*16384}, v{RV+t}" for t in range(4)]
            for i, o in enumerate(va): slots[a + 8 + i // 2]["fill"].append(o)
        PS_ = 5 if LM else 4
        a, b = seg[("pv", 2)]
        for i, act in enumerate(misc_acts()):
            slots[a + 18 + 3 * i]["fill"].append(act)
        a, b = seg[("qk", 1)]
        f0 = [frag_ops(0, f) for f in range(8)]
        lv.append(spread([o for x in f0 for o in x], a, b + X0 + 1, dead=[(sum(len(x) for x in f0[:f+1]) - 1, b + PS_ * f) for f in range(4) if PS_ * f <= X0]))
        for q in (1, 2):
            lv.append(spread([o for f in range(8) for o in frag_ops(q, f)], seg[("pv", q-1)][0] + (X0 + 1 if q == 1 else 8), seg[("qk", q+1)][1]))
        a3 = seg[("pv", 3)][0]
        NF = len(frag_ops(3, 0))
        lv.append(spread([o for f in range(8) for o in frag_ops(3, f)], seg[("pv", 2)][0] + 8, a3 + (20 if LM else 16),
                         dead=[(NF * f + NF - 1, a3 + PS_ * f) for f in range(4)]))
        a7 = unit_first[("v", 7)]
        def store_t(t):
            def f():
                d = QF + 8 * t
                l1, l2 = newlab("o"), newlab("o")
                so = f"s{S_SO}" if t >= 2 else "0"
                e(f"s_cmp_eq_u32 s{S_FAST}, 0")
                e(f"s_cbranch_scc1 {l1}")
                for z in range(2):
                    e(f"buffer_store_dwordx4 {vr(d+4*z,4)}, v{VL16}, s[{SO}:{SO+3}], {so} offen offset:{((2*t+z)&3)*1024}{' nt' if (opt.get('ntma' if role == 'A' else 'ntmb', 15) >> t) & 1 else ''}")
                e(f"s_branch {l2}")
                e.label(l1)
                for z in range(2):
                    e(f"buffer_store_dwordx4 {vr(d+4*z,4)}, v{VL16}, s[{SO}:{SO+3}], {so} offen offset:{((2*t+z)&3)*1024} sc1")
                e.label(l2)
                vm_add("Ost"); vm_add("Ost")
            return Act(f, 20)
        def pack_ops(t, pk=False):
            ops = []
            if pk:
                for i in range(0, 16, 2):
                    r = Oacc + 16 * t + i
                    ops.append(f"v_pk_mul_f32 v[{r}:{r+1}], v[{r}:{r+1}], v[{T1}:{T1+1}] op_sel_hi:[1,0]")
            else:
                ops += [f"v_mul_f32 v{Oacc+16*t+i}, v{Oacc+16*t+i}, v{T1}" for i in range(16)]
            d = QF + 8 * t
            for u in range(2):
                b = Oacc + 16 * t + 4 * u
                ops += [f"v_cvt_pk_bf16_f32 v{d+4*u}, v{b}, v{b+1}", f"v_cvt_pk_bf16_f32 v{d+4*u+1}, v{b+2}, v{b+3}",
                        f"v_cvt_pk_bf16_f32 v{d+4*u+2}, v{b+8}, v{b+9}", f"v_cvt_pk_bf16_f32 v{d+4*u+3}, v{b+10}, v{b+11}"]
            ops += [f"v_permlane16_swap_b32 v{d+i}, v{d+4+i}" for i in range(4)]
            ops.append(store_t(t))
            return ops
        if LM:
            slots[a7 + 2]["fill"] += [f"v_accvgpr_read_b32 v{T1}, a{LACC}", f"s_movk_i32 s{S_SO}, 4096"]
        else:
            slots[a7 + 0]["fill"] += [f"v_add_f32 v{LS}, v{LS}, v{LS+1}", f"v_add_f32 v{LS+2}, v{LS+2}, v{LS+3}", f"s_movk_i32 s{S_SO}, 4096"]
            slots[a7 + 1]["fill"] += [f"v_add_f32 v{LS}, v{LS}, v{LS+2}", f"v_mov_b32 v{T1}, v{LS}"]
            slots[a7 + 2]["fill"] += [f"v_permlane32_swap_b32 v{T1}, v{LS}", f"v_add_f32 v{T1}, v{T1}, v{LS}"]
        slots[a7 + 3]["fill"] += [f"v_rcp_f32 v{T1}, v{T1}"]
        p0, p1, p2 = pack_ops(0), pack_ops(1), pack_ops(2)
        PK0 = opt.get("pk0", 6)
        for i in range(4): slots[a7 + PK0 + i]["fill"] += p0[i*29//4:(i+1)*29//4]
        for i in range(4): slots[a7 + PK0 + 4 + i]["fill"] += p1[i*29//4:(i+1)*29//4]
        n2 = 16 - (PK0 + 8)
        for i in range(n2): slots[a7 + PK0 + 8 + i]["fill"] += p2[i*8:(i+1)*8]
        epi_rest = p2[n2*8:] + pack_ops(3, True)
        EARLY = opt.get("early", 0) and not STOP
        S_PM, S_EARLY = 34, 61
        assert not EARLY
        OB = [None, 64, 96, 128, 0, 32, 160, 192]
        def o_ops(h):
            out = []
            pre = [f"s_add_u32 s100, s{S_HI}, {h}", "s_and_b32 s100, s100, 7", f"s_lshl_b32 s{S_T0}, s100, 15", f"s_add_u32 s{S_T1}, s{S_T0}, 4096"]
            for f in range(8):
                so = S_T0 if f < 4 else S_T1
                out.append((pre if f == 0 else []) + [f"buffer_load_dwordx4 {ar(OB[h]+4*f,4)}, v{VL16}, s[{SOG}:{SOG+3}], s{so} offen offset:{(f&3)*1024}{opt.get('olflag', ' sc1')}"])
            return out
        def early_take():
            wait_vm(["poll0"])
            l1 = newlab("e")
            e(f"v_cmp_eq_u32 vcc, v{T2}, v{T3}")
            e(f"s_mov_b32 s{S_PM}, vcc_lo")
            e(f"s_and_b32 s100, s{S_PM}, 14")
            e("s_cmp_eq_u32 s100, 14")
            e(f"s_cselect_b32 s{S_EARLY}, 1, 0")
            e(f"s_cbranch_scc0 {l1}")
            for gg in o_ops(1) + o_ops(2)[:4]:
                for s_ in gg: e(s_)
            e.label(l1)
        if EARLY:
            slots[a7 + opt.get("et", 9)]["fill"].insert(0, Act(early_take, 40))
        sys.stderr.write(f"filler levels {lv}\n")
        def gap_q_post():
            e(f"v_mov_b32 v{T1}, s{S_C}")
            e(f"v_accvgpr_read_b32 v{VWO[3]}, a{AWO}")
            e(f"s_mov_b32 s{S_RS}, 0")
            assert not SPEC
            if LM:
                e(f"v_mov_b32 v{T0}, 0x3f803f80")
                for i in range(4): e(f"v_accvgpr_write_b32 a{ONES+i}, v{T0}")
            for o in qconv(0) + qconv(1): e(o)
        def gap0_pre():
            for o in max_ops(0, 3): e(o)
            e(f"v_mov_b32 v{T0}, v{VM}")
            e(f"v_permlane32_swap_b32 v{T0}, v{VM}")
            e(f"v_max_f32 v{VM}, v{T0}, v{VM}")
            for i in range(16): e(f"v_sub_f32 v{NEGM+i}, 0, v{VM}")
        def gap3_pre():
            check2().fn()
        nop = lambda: None
        gaps = {seg[("qk", 0)][0]: (nop, gap_q_post, True),
                seg[("qk", 1)][0]: (gap0_pre, nop, False),
                seg[("pv", 3)][0]: (gap3_pre, nop, False)}
        def enter_unit(u):
            if u[0] == "s":
                j = u[1]
                wait_vm([("x", j), ("w", j)])
                e("s_barrier")
                if j == 9:
                    e(f"v_add_u32 v{VDB}, 1, v{VDB}")
                    e(f"v_cmp_eq_u32 vcc, 0, v{VDB}")
                    e(f"s_mov_b32 s100, {NONCE_OFF}")
                    e(f"v_cndmask_b32 v{VDB}, v{VDB}, 1, vcc")
                    e(f"buffer_store_dword v{VDB}, v{VZ}, s[{SD}:{SD+3}], 0 offen sc1"); vm_add("nst")
                    e(f"buffer_store_dword v{VDB}, v{VZ}, s[{SF}:{SF+3}], s100 offen sc1"); vm_add("nst")
                e(f"v_add_u32 v{RA}, {slot_of[('w',j)]*16384}, v{VBW}")
                e(f"v_add_u32 v{RA+4}, {slot_of[('x',j)]*16384}, v{VAX}")
                for t in range(1, 4):
                    e(f"v_xor_b32 v{RA+t}, {t<<6}, v{RA}")
                    e(f"v_xor_b32 v{RA+4+t}, {t<<5}, v{RA+4}")
            else:
                n_ = kvt.index(u)
                pm = int(str(opt.get("pairb", "0")), 16)
                if (pm >> (n_ // 2)) & 1:
                    if n_ % 2 == 0:
                        wait_vm([u, kvt[n_ + 1]]); e("s_barrier")
                else:
                    if not opt.get("nomem", 0) or u in kvt[:4]: wait_vm([u])
                    if opt.get("nomem", 0) < 2: e("s_barrier")
                if u == kvt[4]:
                    e(f"buffer_load_dword v{T3}, off, s[{SD}:{SD+3}], 0 sc1"); vm_add("nld")
                if u == kvt[7]:
                    l1, l2 = newlab("nc"), newlab("nc")
                    e("s_mov_b32 s101, 0")
                    e.label(l1)
                    e(f"v_readfirstlane_b32 s{S_TAG}, v{T3}")
                    e("s_add_u32 s101, s101, 1")
                    e(f"s_cmp_lg_u32 s{S_TAG}, 0")
                    e(f"s_cbranch_scc1 {l2}")
                    e(f"s_cmp_ge_u32 s101, {SPIN}")
                    e(f"s_cbranch_scc1 {l2}")
                    e("s_sleep 8")
                    e(f"buffer_load_dword v{T3}, off, s[{SD}:{SD+3}], 0 sc1")
                    e("s_waitcnt vmcnt(0)")
                    e(f"s_branch {l1}")
                    e.label(l2)
                    e("s_getreg_b32 s100, hwreg(HW_REG_XCC_ID)")
                    e("s_and_b32 s100, s100, 15")
                    e(f"s_lshl_b32 s101, s{S_TAG}, 4")
                    e("s_or_b32 s100, s100, s101")
                    e(f"v_mov_b32 v{VDB}, s100")
                    e("s_lshl_b32 s100, s2, 10")
                    e(f"buffer_store_dword v{VDB}, off, s[{SF}:{SF+3}], s100 offset:512 sc1"); vm_add("xst")
                if u == kvt[opt.get("tlbu", 8)] and opt.get("tlbw", 0) and not STOP:
                    e(f"s_lshl_b32 s100, s{S_B}, 2"); e(f"s_add_u32 s100, s100, s{S_HG}"); e("s_lshl_b32 s101, s100, 18")
                    srd(e, 56, 78, 79, None, 16 << 20)
                    e("buffer_load_dword v52, off, s[56:59], s101 sc1"); vm_add("tlb")
                    e(f"buffer_load_dword v53, off, s[{SP}:{SP+3}], s{S_PO} sc1"); vm_add("tlb")
                    e(f"s_mul_i32 s101, s100, {32*1280}")
                    srd(e, 56, 74, 75, None, 1024 * 1280)
                    e("buffer_load_dword v54, off, s[56:59], s101 sc1"); vm_add("tlb")
                if u == kvt[11]:
                    e(f"buffer_load_dword v{T3}, v{VPO}, s[{SF}:{SF+3}], 0 offen offset:512 sc1"); vm_add("dbgld")
                if u == kvt[15] and EARLY:
                    e(f"buffer_load_dword v{T3}, v{VPO}, s[{SF}:{SF+3}], 0 offen sc1"); vm_add("poll0")
                so = slot_of[u] * 16384
                if PA:
                    if u[0] == "k":
                        hi = slot_of[u] == 9
                        if kst[0] is None:
                            e(f"v_add_u32 v{RA}, {(9 if hi else 5)*16384}, v{VAK}")
                            for m in range(1, 8): e(f"v_xor_b32 v{RA+m}, {m<<5}, v{RA}")
                        elif kst[0] != hi:
                            for m in range(8): e(f"v_xor_b32 v{RA+m}, {(9*16384) ^ (5*16384)}, v{RA+m}")
                        kst[0] = hi
                elif u[0] == "k":
                    e(f"v_add_u32 v{RA}, {so}, v{VAK}")
                    for m in range(1, 8): e(f"v_xor_b32 v{RA+m}, {m<<5}, v{RA}")
                else:
                    e(f"v_add_u32 v{RA}, {so}, v{VBW}")
                    for t in range(1, 4): e(f"v_xor_b32 v{RA+t}, {t<<6}, v{RA}")
        kst = [None]
        st = dict(rd=0, cur=None, waited=-1)
        lg = []
        def issue_reads(upto):
            while st["rd"] <= upto and st["rd"] < N:
                s = slots[st["rd"]]
                if s["unit"] != st["cur"]:
                    st["cur"] = s["unit"]
                    enter_unit(st["cur"])
                    if diag == 2 and st["cur"][0] == "s": stamp()
                for r in s["reads"]:
                    e(r); lg.append(st["rd"])
                st["rd"] += 1
        def limit(k):
            c = [g for g in gaps if g > k and gaps[g][2]]
            return (min(c) if c else N) - 1
        segstarts = {v[0] for v in seg.values()}
        for k in range(N):
            s = slots[k]
            if k in segstarts and diag not in (3, 4, 5, 6): stamp()
            if k in gaps:
                gaps[k][0]()
                issue_reads(k + LA - 1)
                gaps[k][1]()
            elif k == 0:
                issue_reads(LA - 1)
                stamp()
            if s["reads"] and k > st["waited"]:
                kk = k
                if PAIRW and k + 1 < st["rd"] and slots[k+1]["reads"] and (k + 1) not in gaps: kk = k + 1
                idx = max(i for i, t in enumerate(lg) if t == kk)
                n_after = len(lg) - 1 - idx
                e(f"s_waitcnt lgkmcnt({min(15, n_after)})")
                st["waited"] = kk
            e(s["mf"])
            for p in s["post"]:
                if p == "barrier2": e("s_barrier")
            issue_reads(min(k + LA, limit(k)))
            for gg, tg in s["dma"]:
                if opt.get("now", 0) and (tg == "pf" or (isinstance(tg, tuple) and tg[0] == "W")): gg = []
                if opt.get("nomem", 0) and s["unit"][0] != "s": gg = []
                for s_ in gg: e(s_)
                if tg is None: lg.append(-1)
                else: vm_add(tg)
            for f in s["fill"] + s["fill2"]:
                if isinstance(f, str): e(f)
                else: f.fn()
        stamp()
        for f in epi_rest:
            if isinstance(f, str): e(f)
            else: f.fn()
        if not STOP:
            assert vmbox[0][-1] == "Ost"
            wait_vm([("W", gi) for gi in range(4)])
        return dict(OB=OB, S_PM=S_PM)
    def flag_raw():
        l1, l2 = newlab("f"), newlab("f")
        e(f"s_cmp_eq_u32 s{S_FAST}, 0")
        e(f"s_cbranch_scc1 {l1}")
        e(f"buffer_store_dword v{T2}, v{VZ}, s[{SF}:{SF+3}], 0 offen")
        e(f"s_branch {l2}")
        e.label(l1)
        e(f"buffer_store_dword v{T2}, v{VZ}, s[{SF}:{SF+3}], 0 offen sc1")
        e.label(l2)
    vm0 = list(vmbox[0]); st0 = nstamp[0]
    if ROLES:
        e(f"s_cmp_eq_u32 s{S_ROLE}, 0")
        e("s_cbranch_scc1 L_roleA")
        vmbox[0] = vmB_pre + vm0
        X = attention("B")
        e("s_branch L_tail")
        e.label("L_roleA")
        vmbox[0] = list(vm0); nstamp[0] = st0
        X = attention("A")
        e.label("L_tail")
    else:
        X = attention("AB")
    vmbox[0] = ["Ost"]
    OB, S_PM = X["OB"], X["S_PM"]
    stamp()
    if not STOP:
        tail(e, opt, locals())
    if diag:
        e("s_waitcnt vmcnt(0)")
        stamp()
        e("s_memrealtime s[100:101]")
        e("s_waitcnt lgkmcnt(0)")
        e(f"s_mov_b32 s29, {WS_DIAG}")
        srd(e, 8, 78, 79, 29, 1 << 20)
        e("s_lshl_b32 s29, s2, 2"); e("s_add_u32 s29, s29, s3"); e("s_lshl_b32 s29, s29, 7")
        e("v_mov_b32 v1, s29")
        vals = [f"s{40+k}" for k in range(nstamp[0])] + ["0"] * (24 - nstamp[0])
        if diag == 5:
            vals = vals[:14] + ["s54", "s55", "s56", "s57"] + vals[18:]
        vals = vals + ["s94", "s95", "s100", "s101"]
        e("s_getreg_b32 s30, hwreg(HW_REG_XCC_ID)")
        vals += ["s30", "s62", f"s{S_FAST}", "s37" if not SPEC else "s60"]
        for q in range(8):
            for i in range(4): e(f"v_mov_b32 v{4+i}, {vals[4*q+i]}")
            e(f"buffer_store_dwordx4 v[4:7], v1, s[8:11], 0 offen offset:{16*q}")
    if opt.get("pad", 0):
        e("s_waitcnt vmcnt(0)")
        e.label("L_pad")
        e("s_memrealtime s[92:93]")
        e("s_waitcnt lgkmcnt(0)")
        e("s_sub_u32 s92, s92, s94")
        e(f"s_cmp_lt_u32 s92, {opt['pad']}")
        e("s_cbranch_scc1 L_pad")
    e("s_endpgm")
    for blk in rare: blk()
    e.label("L_done")
    e("s_endpgm")
    if TICK:
        for t in range(2):
            kernel_header(e, f"tick{t}_kernel")
            e("s_memrealtime s[4:5]")
            e("s_load_dwordx2 s[6:7], s[0:1], 56")
            e("s_waitcnt lgkmcnt(0)")
            e(f"s_mov_b32 s12, {WS_DIAG + 0x80000 + 64 * t}")
            srd(e, 8, 6, 7, 12, 64)
            if t == 0:
                for i in range(40): e("s_sleep 127")
                e("s_memrealtime s[4:5]"); e("s_waitcnt lgkmcnt(0)")
            e("v_mov_b32 v2, s4"); e("v_mov_b32 v3, s5")
            e("buffer_store_dwordx2 v[2:3], off, s[8:11], 0")
            e("s_endpgm")
    e.raw('.section .rodata,"a"')
    kernel_desc(e, kname, 512, 256)
    if TICK:
        for t in range(2): kernel_desc(e, f"tick{t}_kernel", 32, 32)
    sys.stderr.write(f"nops inserted: {e.nnop}, instrs: {sum(1 for x in e.L if x[0])}\n")
    return e.text()

def tail(e, opt, g):
    S_W, S_B, S_HG, S_HI, S_T0, S_T1, S_SO, S_FAST, S_PO = [g[k] for k in "S_W S_B S_HG S_HI S_T0 S_T1 S_SO S_FAST S_PO".split()]
    SOG, SF, SP, QF, V_L, VL16, VPO, VZ, T0, T1, T2, T3 = [g[k] for k in "SOG SF SP QF V_L VL16 VPO VZ T0 T1 T2 T3".split()]
    vm_add, wait_vm, emit_group, newlab, stamp, OB, S_PM, flag_raw = [g[k] for k in "vm_add wait_vm emit_group newlab stamp OB S_PM flag_raw".split()]
    S_TAG, SWO, VWO, WOF = g["S_TAG"], g["SWO"], g["VWO"], g["WOF"]
    LA = opt.get("LA4", 6); R = LA + 2
    ACC = 128; FR = 168; VB = 12
    e(f"v_lshrrev_b32 v{T1}, 2, v{V_L}")
    e(f"v_mul_u32_u24 v{T1}, 160, v{T1}")
    e(f"v_and_b32 v{T0}, 3, v{V_L}")
    e(f"v_lshl_add_u32 v{VB}, v{T0}, 3, v{T1}")
    e(f"v_add_u32 v{VB+1}, {12*5120}, v{VB}")
    e(f"v_add_u32 v{VB+2}, {24*5120}, v{VB}")
    SPEC = g["SPEC"]; rare = g["rare"]
    BAR20 = opt.get("bar20", 1)
    def odst(h, f):
        return vr(64 + 32 * (h - 1) + 4 * f, 4) if (SPEC and h <= 2) else ar(OB[h] + 4 * f, 4)
    slots = []
    WF = opt.get("wf", 1)
    order4 = [(c, tn) for c in range(24 if WF else 32) for tn in range(5)]
    if WF: order4 += [(c, tn) for tn in range(5) for c in range(24, 32)]
    for c, tn in order4:
        k = len(slots); fb = FR + 4 * (k % R)
        base = VB + c // 12; off = (c % 12) * 5120 + tn * 32
        rd = [f"ds_read_b64_tr_b16 {vr(fb,2)}, v{base} offset:{off}", f"ds_read_b64_tr_b16 {vr(fb+2,2)}, v{base} offset:{off+2560}"]
        mf = []
        for z in range(2):
            d = ACC + 4 * (z * 5 + tn)
            cc = "0" if c == 0 else vr(d, 4)
            b = vr(QF + 8 * c + 4 * z, 4) if c < 4 else odst(c // 4, (c & 3) * 2 + z)
            mf.append(f"v_mfma_f32_16x16x32_bf16 {vr(d,4)}, {vr(fb,4)}, {b}, {cc}")
        slots.append(dict(unit=min(c // 4, 6), reads=rd, mf=mf, gap=[[], []], c=c, tn=tn))
    N = len(slots)
    def put(gi, fn):
        slots[gi // 2]["gap"][gi & 1].append(fn if callable(fn) else (lambda s_=fn: e(s_)))
    def put_free(ops, g0):
        gi = g0
        for o in ops:
            while slots[gi // 2]["gap"][gi & 1] or (gi & 1 == 1 and (gi // 2) % 2 == 1): gi += 1
            put(gi, o); gi += 1
        return gi
    def check_flag(h):
        if opt.get("nochk", 0): return
        l1, l2 = newlab("p"), newlab("p")
        e(f"s_bitcmp1_b32 s{S_PM}, {h}")
        e(f"s_cbranch_scc1 {l2}")
        e("s_mov_b32 s38, 0")
        e.label(l1)
        e(f"buffer_load_dword v{T3}, v{VPO}, s[{SF}:{SF+3}], 0 offen sc1")
        e("s_add_u32 s38, s38, 1")
        e("s_waitcnt vmcnt(0)")
        e(f"v_cmp_eq_u32 vcc, v{T2}, v{T3}")
        e(f"s_mov_b32 s{S_PM}, vcc_lo")
        e(f"s_cmp_ge_u32 s38, {SPIN}")
        e(f"s_cbranch_scc1 {l2}")
        e(f"s_bitcmp1_b32 s{S_PM}, {h}")
        e(f"s_cbranch_scc0 {l1}")
        e.label(l2)
    ROLES, S_ROLE = g["ROLES"], g["S_ROLE"]
    def flag_store():
        wait_vm(["Ost"])
        flag_raw(); vm_add("flag")
        stamp()
    e("s_barrier")
    FS = opt.get("fs", 6); PS = opt.get("ps", 14)
    SOFF = list(range(64, 74)) + [76, 77, 39, 31]
    pre = [f"s_mul_i32 s8, s{S_W}, 5120", f"s_lshl_b32 s100, s{S_HI}, 2", f"s_add_u32 s100, s100, s{S_W}", f"s_add_u32 s8, s8, {16*5120}"]
    for gi in range(4):
        pre += [f"s_add_u32 s101, s100, {16+4*gi}", "s_and_b32 s101, s101, 31", f"s_mul_i32 s{16+gi}, s101, {32*1280}"]
    for s_ in pre[:7]: e(s_)
    rest = pre[7:]
    for h in range(1, 8):
        rest += [f"s_add_u32 s101, s{S_HI}, {h}", "s_and_b32 s101, s101, 7", f"s_lshl_b32 s{SOFF[2*(h-1)]}, s101, 15", f"s_add_u32 s{SOFF[2*(h-1)+1]}, s{SOFF[2*(h-1)]}, 4096"]
    put(2 * FS + 1, flag_store)
    def wload(gi, ee):
        def f():
            if opt.get("now", 0):
                vm_add(("W", gi)); return
            e(f"s_add_u32 m0, s8, {(gi-4)*20480 + (4096 if ee == 4 else 0)}")
            e(f"buffer_load_dwordx4 v{VWO[ee]}, s[{SWO}:{SWO+3}], s{16+gi-4} offen offset:{1024*ee if ee < 4 else 0}{WOF} lds"); vm_add(("W", gi))
        return f
    def oload(h, f):
        def fn():
            if opt.get("noo", 0):
                vm_add(("O", h, f // 2)); return
            e(f"buffer_load_dwordx4 {odst(h, f)}, v{VL16}, s[{SOG}:{SOG+3}], s{SOFF[2*(h-1)+(f>>2)]} offen offset:{(f&3)*1024}{opt.get('olflag', ' sc1')}"); vm_add(("O", h, f // 2))
        return fn
    wl = [(gi, ee) for gi in range(6, 8) for ee in range(5)]
    def poll_issue():
        e(f"buffer_load_dword v{T3}, v{VPO}, s[{SF}:{SF+3}], 0 offen sc1"); vm_add("poll")
    def poll_use():
        wait_vm(["poll"])
        e(f"v_cmp_eq_u32 vcc, v{T2}, v{T3}")
        e(f"s_mov_b32 s{S_PM}, vcc_lo")
    rest = rest[9:17] + rest[:9] + rest[17:]
    for i, o in enumerate(rest): put(i // 2 if i // 2 < 2 * FS + 1 else i // 2 + 1, o)
    if SPEC:
        SI = opt.get("si", 9)
        for i in range(16): put(2 * SI + i, oload(1 + i // 8, i % 8))
        def spec_check(h):
            def f():
                lr, lb = newlab("sr"), newlab("sb")
                wait_vm([("O", h, 3)])
                b = 64 + 32 * (h - 1)
                e(f"v_max3_u32 v{T0}, v{b}, v{b+4}, v{b+8}")
                e(f"v_max3_u32 v{T1}, v{b+12}, v{b+16}, v{b+20}")
                e(f"v_max3_u32 v{T0}, v{T0}, v{b+24}, v{b+28}")
                e(f"v_max_u32 v{T0}, v{T0}, v{T1}")
                e(f"v_cmp_eq_u32 vcc, -1, v{T0}")
                e(f"s_cmp_eq_u32 s{S_FAST}, 0")
                e(f"s_cbranch_scc1 {lr}")
                e("s_cmp_lg_u64 vcc, 0")
                e(f"s_cbranch_scc1 {lr}")
                e.label(lb)
                def blk():
                    e.label(lr)
                    e("s_waitcnt vmcnt(0)")
                    e(f"s_mov_b32 s{S_PM}, 0")
                    if opt.get("diag", 0): e(f"s_add_u32 s60, s60, 1")
                    check_flag(h)
                    for ff in range(8):
                        e(f"buffer_load_dwordx4 {odst(h, ff)}, v{VL16}, s[{SOG}:{SOG+3}], s{SOFF[2*(h-1)+(ff>>2)]} offen offset:{(ff&3)*1024} sc1")
                    e("s_waitcnt vmcnt(0)")
                    e(f"s_branch {lb}")
                rare.append(blk)
            return f
        pre_slot = {20: spec_check(1), 40: spec_check(2)}
        put(2 * PS, poll_issue)
        PU = opt.get("pu", 24)
        put(2 * PU, poll_use)
        seq = []
        o4 = opt.get("o4", 2 * PU + 4)
        wfirst = opt.get("wfirst", 5)
        for i in range(wfirst): put(2 * (PS + 1 + i) + 1, wload(*wl.pop(0)))
    else:
        nw0 = opt.get("nw0", 5); nw1 = opt.get("nw1", 5)
        for i in range(nw0): put(2 * (FS + 1 + i) + 1, wload(*wl.pop(0)))
        put(2 * PS, poll_issue)
        for i in range(nw1): put(2 * (PS + i) + 1, wload(*wl.pop(0)))
        def poll_take():
            poll_use()
            check_flag(1)
            for f in range(8): oload(1, f)()
            check_flag(2)
            for f in range(4): oload(2, f)()
            if BAR20:
                wait_vm([("W", 6), ("W", 7)])
                e("s_barrier")
            stamp()
        pre_slot = {20: poll_take}
        seq = [("o", 2, f) for f in range(4, 8)]
        o4 = opt.get("o4", 42)
    osp = opt.get("osp", 42)
    wafter = str(opt.get("wafter", "34"))
    for h in range(3, 8):
        seq += [("o", h, f) for f in range(8)]
        for ch in wafter:
            if int(ch) == h:
                for i in range(5):
                    if wl: seq.append(("w",) + wl.pop(0))
    assert not wl
    pos = o4 * 10
    for it in seq:
        gi = (pos // 10) & ~1
        if it[0] == "o":
            if it[2] == 0: put(gi - 2, lambda h=it[1]: check_flag(h))
            put(gi, oload(it[1], it[2])); pos += osp
        else:
            put(gi, wload(it[1], it[2])); pos += opt.get("wsp10", 60)
    lg = []; st = dict(rd=0, cur=-1, waited=-1)
    SOUT = 8
    HR = opt.get("hr", 15); UR = opt.get("ur", 8)
    xs = [f"s_lshl_b32 s100, s{S_B}, 2", f"s_add_u32 s100, s100, s{S_HG}", f"s_mul_i32 s100, s100, {32*1280}",
          f"s_mul_i32 s101, s{S_HI}, 160", "s_add_u32 s100, s100, s101", f"s_sub_u32 s101, {1024*1280}, s100",
          f"v_and_b32 v2, 15, v{V_L}", "v_mul_u32_u24 v2, 1280, v2", f"v_lshrrev_b32 v3, 4, v{V_L}", "v_lshl_add_u32 v2, v3, 3, v2",
          "v_mov_b32 v5, 0xfffcfffc", f"s_add_u32 s{S_T0}, s{S_PO}, 4096",
          "s_mov_b32 s36, 0x00020002", "s_mov_b32 s37, 0", "s_mov_b32 s26, 0", f"s_lshl_b32 s27, s{S_W}, 10", f"v_add_u32 v3, s27, v{VL16}"]
    gend = put_free(xs, 44)
    xs2 = [[f"s_add_u32 s{SOUT}, s74, s100", f"s_addc_u32 s{SOUT+1}, s75, 0"], f"s_mov_b32 s{SOUT+2}, s101", f"s_mov_b32 s{SOUT+3}, 0x20000"]
    xs2 += [f"s_bfe_u32 s{80+j}, s{S_TAG}, {0x20000 + 2*j}" for j in range(4)]
    for i in range(1, 4):
        xs2 += [f"s_add_u32 s100, s{S_HG}, {i}", "s_and_b32 s100, s100, 3", "s_lshl_b32 s100, s100, 2", f"s_add_u32 s100, s100, s{S_HG}",
                "s_mul_i32 s100, s100, 5120", f"s_add_u32 s{12+i}, s100, s27", f"s_add_u32 s{16+i}, s100, 4096"]
    xs2 += [f"s_lshl_b32 s12, s{S_W}, 5", f"s_add_u32 s16, s12, {16*1280}", f"s_movk_i32 s20, {16*1280}"]
    xs2 = [(lambda x=x: [e(s_) for s_ in x]) if isinstance(x, list) else x for x in xs2]
    gw = max([2 * k + hh for k in range(N) for hh in range(2) if any(getattr(f, "__name__", "") == "f" for f in slots[k]["gap"][hh])])
    gend2 = put_free(xs2, max(gend, gw + 1))
    assert gend2 <= 2 * 118, (gend, gend2)
    def scale_ops():
        ops = ["s_lshr_b32 s71, s71, 23", "s_max_u32 s71, s71, 1", "s_min_u32 s71, s71, 239",
               "s_sub_u32 s64, 254, s71", "s_lshl_b32 s64, s64, 23", f"s_add_u32 s65, s71, {HR}", "s_lshl_b32 s65, s65, 23",
               f"s_sub_i32 s66, s71, {UR}", "s_max_i32 s66, s66, 0", "s_lshl_b32 s66, s66, 23"]
        for j in range(4):
            ops += [f"s_bfe_u32 s72, s71, {0x20000 + 2*j}", "s_lshl_b32 s72, s72, 16", f"s_or_b32 s{67+j}, s72, s{80+j}"]
        return ops
    def amax_ops(tn, dst):
        a, b = ACC + 4 * tn, ACC + 20 + 4 * tn
        return [f"v_max3_f32 v{dst}, |v{a}|, |v{a+1}|, |v{a+2}|", f"v_max3_f32 v{dst}, v{dst}, |v{a+3}|, |v{b}|",
                f"v_max3_f32 v{dst}, v{dst}, |v{b+1}|, |v{b+2}|", f"v_max_f32_e64 v{dst}, v{dst}, |v{b+3}|"]
    assert WF
    so = amax_ops(1, T0) + [f"v_readlane_b32 s71, v{T0}, 0", f"v_readlane_b32 s72, v{T0}, 21", f"v_readlane_b32 s73, v{T0}, 42", f"v_readlane_b32 s100, v{T0}, 63",
                            "s_max_u32 s71, s71, s72", "s_max_u32 s73, s73, s100", "s_max_u32 s71, s71, s73"] + scale_ops()
    for i, o in enumerate(so): put(2 * 120 + 1 + i * 16 // len(so), o)
    def send_items(tn):
        lown, ljoin, lr, lb = newlab("x"), newlab("x"), newlab("xr"), newlab("xb")
        d = 200 + 4 * tn
        items = amax_ops(tn, T0)
        items += [f"v_cmp_le_f32 vcc, s65, v{T0}", f"v_cmp_le_f32 s[72:73], s66, v{T0}"]
        def chk():
            e("s_cmp_lg_u64 vcc, 0")
            e(f"s_cbranch_scc1 {lr}")
            e("s_cmp_eq_u64 s[72:73], 0")
            e(f"s_cbranch_scc1 {lr}")
            e.label(lb)
        items.append(chk)
        vals = [ACC + 4 * tn + i for i in range(4)] + [ACC + 20 + 4 * tn + i for i in range(4)]
        items += [f"v_fma_mixlo_f16 v{d+j}, v{vals[2*j]}, s64, 0" for j in range(4)]
        items += [f"v_fma_mixhi_f16 v{d+j}, v{vals[2*j+1]}, s64, 0" for j in range(4)]
        items += [f"v_and_or_b32 v{d+j}, v{d+j}, v5, s{67+j}" for j in range(4)]
        def fin():
            e(f"s_cmp_eq_u32 s{S_W}, s{S_HG}")
            e(f"s_cbranch_scc1 {lown}")
            e(f"buffer_store_dwordx4 {vr(d,4)}, v{VL16}, s[{SP}:{SP+3}], s{S_PO if tn < 4 else S_T0} offen offset:{(tn&3)*1024}{opt.get('psflag', ' sc1')}")
            if tn < 4:
                e(f"s_branch {ljoin}")
                e.label(lown)
                for tau in (tn, 5 + tn):
                    e(f"ds_write_b128 v{VL16}, {vr(ACC+4*tau,4)} offset:{tau*1024}")
                e.label(ljoin)
            else:
                e.label(lown)
        items.append(fin)
        def blk():
            e.label(lr)
            e(f"v_mov_b32 v{T1}, v{T0}"); e("s_nop 1"); e(f"v_permlane32_swap_b32 v{T1}, v{T0}"); e(f"v_max_f32 v{T0}, v{T0}, v{T1}")
            e(f"v_mov_b32 v{T1}, v{T0}"); e("s_nop 1"); e(f"v_permlane16_swap_b32 v{T1}, v{T0}"); e(f"v_max_f32 v{T0}, v{T0}, v{T1}")
            for r in (8, 4, 2, 1):
                e(f"v_max_f32_dpp v{T0}, v{T0}, v{T0} row_ror:{r} row_mask:0xf bank_mask:0xf")
            e(f"v_readfirstlane_b32 s71, v{T0}")
            for o in scale_ops(): e(o)
            e(f"s_branch {lb}")
        rare.append(blk)
        return items
    if opt.get("cln", 0):
        SO_ = g["SO"]
        def cl(i):
            def f2():
                lc = newlab("c")
                if opt["cln"] == 1:
                    e(f"s_cmp_lg_u32 s{S_ROLE}, 0"); e(f"s_cbranch_scc1 {lc}")
                e(f"s_movk_i32 s101, {(i>>2)*4096}")
                e(f"buffer_store_dwordx4 {vr(QF+4*i,4)}, v{VL16}, s[{SO2_}:{SO2_+3}], s101 offen offset:{(i&3)*1024} sc1")
                e.label(lc)
            return f2
        SO2_ = 56
        slots[21]["gap"][1].append(lambda: [e(f"s_mov_b32 s{56+i}, s{SO_+i}") for i in range(4)])
        c0 = opt.get("cln0", 129)
        for i in range(8): slots[c0 + i * opt.get("clnsp", 2)]["gap"][0].append(cl(i))
    def send(tn):
        for it in send_items(tn):
            if callable(it): it()
            else: e(it)
    for tn in range(4):
        its = send_items(tn)
        g0 = 2 * (120 + 8 * (tn + 1)) + 2
        for i, it in enumerate(its): put(g0 + i * 14 // len(its), it)
    def issue_reads(upto):
        while st["rd"] <= upto and st["rd"] < N:
            s = slots[st["rd"]]
            if s["unit"] != st["cur"]:
                st["cur"] = s["unit"]
                if st["cur"] == 4 and not opt.get("onebar", 0) and not BAR20:
                    e("s_barrier")
                if st["cur"] == (4 if opt.get("onebar", 0) else 6) and not BAR20:
                    wait_vm([("W", 6), ("W", 7)])
                    e("s_barrier")
            for r in s["reads"]:
                if pend is not None and r is s["reads"][1]: pend.append((r, st["rd"]))
                else:
                    e(r); lg.append(st["rd"])
            st["rd"] += 1
    pend = None
    issue_reads(LA - 1)
    for k in range(N):
        if k in pre_slot: pre_slot[k]()
        if slots[k]["tn"] == 0 and k >= (60 if SPEC else 20):
            wait_vm([("O", slots[k]["c"] // 4, slots[k]["c"] & 3)])
            if k % 20 == 0 and k <= 120 and (opt.get("diag", 0) == 3 or (opt.get("diag", 0) == 4 and k <= 60)): stamp()
        if k > st["waited"]:
            kk = k + 1 if (k + 1 < st["rd"]) else k
            idx = max(i for i, t in enumerate(lg) if t == kk)
            e(f"s_waitcnt lgkmcnt({min(15, len(lg)-1-idx)})")
            st["waited"] = kk
        e(slots[k]["mf"][0])
        pend = []
        issue_reads(k + LA)
        for fn in slots[k]["gap"][0]: fn()
        e(slots[k]["mf"][1])
        for r, t in pend:
            e(r); lg.append(t)
        for fn in slots[k]["gap"][1]: fn()
    stamp()
    send(4)
    def wbl2():
        lw = newlab("wb")
        e("s_lshr_b32 s100, s2, 3"); e(f"s_or_b32 s100, s100, s{S_W}"); e(f"s_cmp_eq_u32 s100, {opt.get('wbr', 0)}"); e(f"s_cbranch_scc0 {lw}")
        e("buffer_wbl2 sc1")
        e.label(lw)
    if opt.get("wb", 0) == 1: wbl2()
    stamp()
    l1, l2 = newlab("q"), newlab("q")
    e.label(l1)
    for i in range(3):
        ls = newlab("q")
        e(f"s_bitcmp1_b32 s26, {i}")
        e(f"s_cbranch_scc1 {ls}")
        e(f"buffer_load_dwordx4 {vr(32+8*i,4)}, v{VL16}, s[{SP}:{SP+3}], s{13+i} offen sc1")
        e(f"s_cmp_lg_u32 s{S_W}, s{S_HG}"); e(f"s_cbranch_scc1 {ls}")
        e(f"buffer_load_dwordx4 {vr(36+8*i,4)}, v{VL16}, s[{SP}:{SP+3}], s{17+i} offen sc1")
        e.label(ls)
    e("s_add_u32 s37, s37, 1")
    lfirst = newlab("q")
    e("s_cmp_lg_u32 s37, 1")
    e(f"s_cbranch_scc1 {lfirst}")
    e("s_waitcnt lgkmcnt(0)")
    e("s_barrier")
    e(f"ds_read_b128 v[64:67], v3")
    e(f"ds_read_b128 v[68:71], v3 offset:5120")
    e.label(lfirst)
    e("s_waitcnt vmcnt(0)")
    for i in range(3):
        ls, lt = newlab("q"), newlab("q")
        b = 32 + 8 * i
        e(f"s_bitcmp1_b32 s26, {i}")
        e(f"s_cbranch_scc1 {ls}")
        e(f"v_xor_b32 v4, s80, v{b}")
        for jj in range(1, 4): e(f"v_bitop3_b32 v4, v4, v{b+jj}, s{80+jj} bitop3:0xf6")
        e(f"s_cmp_lg_u32 s{S_W}, s{S_HG}"); e(f"s_cbranch_scc1 {lt}")
        for jj in range(4): e(f"v_bitop3_b32 v4, v4, v{b+4+jj}, s{80+jj} bitop3:0xf6")
        e.label(lt)
        e("v_and_b32 v4, 3, v4")
        e("v_cmp_ne_u32 vcc, 0, v4")
        e("s_cmp_lg_u64 vcc, 0")
        e(f"s_cbranch_scc1 {ls}")
        e(f"s_bitset1_b32 s26, {i}")
        e.label(ls)
    if opt.get("nox", 0): e("s_mov_b32 s26, 7")
    e("s_cmp_eq_u32 s26, 7")
    e(f"s_cbranch_scc1 {l2}")
    e(f"s_cmp_lt_u32 s37, {SPIN}")
    e(f"s_cbranch_scc1 {l1}")
    e.label(l2)
    stamp()
    def decode(off, acc, so0, so1, imm):
        for i in range(3):
            b = 32 + 8 * i + off
            for jj in range(4): e(f"v_readfirstlane_b32 s{64+4*i+jj}, v{b+jj}")
        for i in range(3):
            b = 32 + 8 * i + off
            for jj in range(4): e(f"v_and_or_b32 v{b+jj}, v{b+jj}, v5, s36")
            for jj in range(4): e(f"s_bfe_u32 s{64+4*i+jj}, s{64+4*i+jj}, 0x20010")
            e(f"s_lshl2_add_u32 s{64+4*i+2}, s{64+4*i+3}, s{64+4*i+2}")
            e(f"s_lshl2_add_u32 s{64+4*i+1}, s{64+4*i+2}, s{64+4*i+1}")
            e(f"s_lshl2_add_u32 s{64+4*i}, s{64+4*i+1}, s{64+4*i}")
            e(f"s_lshl_b32 s{64+4*i}, s{64+4*i}, 23")
        e("s_waitcnt lgkmcnt(0)")
        for i in range(3):
            b = 32 + 8 * i + off
            for v_ in range(8):
                e(f"v_fma_mix_f32 v{acc[v_]}, v{b+v_//2}, s{64+4*i}, v{acc[v_]} op_sel:[{v_&1},0,0] op_sel_hi:[1,0,0]")
        for z in range(2):
            e(f"v_cvt_pk_bf16_f32 v{80+off+2*z}, v{acc[4*z]}, v{acc[4*z+1]}")
            e(f"v_cvt_pk_bf16_f32 v{81+off+2*z}, v{acc[4*z+2]}, v{acc[4*z+3]}")
            e(f"buffer_store_dwordx2 {vr(80+off+2*z,2)}, v2, s[{SOUT}:{SOUT+3}], {[so0, so1][z]} offen offset:{imm}{opt.get('outflag', '')}")
    ldone = newlab("r")
    decode(0, list(range(64, 72)), "s12", "s16", 0)
    e(f"s_cmp_lg_u32 s{S_W}, s{S_HG}"); e(f"s_cbranch_scc1 {ldone}")
    decode(4, [ACC + 16 + i for i in range(4)] + [ACC + 36 + i for i in range(4)], "0", "s20", 128)
    e.label(ldone)
    if opt.get("wb", 0) == 2: wbl2()

if __name__ == "__main__":
    out = sys.argv[1]
    opt = {}
    for a in sys.argv[2:]:
        k, v = a.split("=")
        if k not in ("kmix", "wpl", "wsp", "wspa", "wspb", "wafter", "pfu", "pfa", "kmixb", "pairb", "dla", "dlb"):
            try: v = int(v)
            except:
                try: v = float(v)
                except: pass
        if k.endswith("flag"): v = (" " + v.replace("+", " ")) if v not in ("none", 0) else ""
        opt[k] = v
    open(out, "w").write(gen(opt))
```

```python
import sys, math
sys.path.insert(0, "gen")
from asmlib import *
NAME = "standalone__gqa_block_cached__near_ridge"
WS_O = 0
WS_P = 16 << 20
WS_F = 28 << 20
WS_DIAG = 32 << 20
SCALE = math.log2(math.e) / math.sqrt(128.0)
SPIN = 0x40000
NONCE_OFF = 256 * 1024

def cost(s):
    if not isinstance(s, str): return s.cost
    op = s.split()[0]
    if op in ("v_exp_f32", "v_rcp_f32"): return 8
    if op.startswith("v_mfma"): return 8
    return 4

class Act:
    def __init__(self, fn, cost): self.fn = fn; self.cost = cost

def gen(opt):
    e = Asm()
    kname = NAME + "_kernel"
    TICK = opt.get("tick", 0)
    if TICK:
        e.raw("; @launch kernel=tick0_kernel grid=(1,1,1) block=(64,1,1) lds=0")
        e.raw(f"; @launch kernel={kname} grid=(256,1,1) block=(256,1,1) lds=163840")
        e.raw("; @launch kernel=tick1_kernel grid=(1,1,1) block=(64,1,1) lds=0")
    else:
        e.raw("; @launch grid=(256,1,1) block=(256,1,1) lds=163840")
    e.raw('.amdgcn_target "amdgcn-amd-amdhsa--gfx950"')
    e.raw(".text")
    kernel_header(e, kname)
    LA = opt.get("LA", 6)
    D = opt.get("d", 3)
    KVF = opt.get("kvflag", " nt")
    XWF = opt.get("xwflag", "")
    WOF = opt.get("woflag", "")
    diag = opt.get("diag", 0)
    FORCE_SLOW = opt.get("slow", 0)
    STOP = opt.get("stop", 0)
    PAIRW = opt.get("pairw", 1)
    ROLES = opt.get("roles", 1)
    NST = opt.get("nst", 0) if ROLES else 0
    S_ROLE = 62
    AKV = 68
    lab = [0]
    def newlab(p):
        lab[0] += 1
        return f"L_{p}{lab[0]}"
    nstamp = [0]
    def stamp():
        if not diag or diag == 9: return
        if diag == 7:
            k = nstamp[0]; nstamp[0] += 1
            if k in (2, 3, 11, 14, 15, 18):
                e("s_memrealtime s[92:93]"); e("s_waitcnt lgkmcnt(0)"); e(f"s_sub_u32 s{40+k}, s92, s94")
            return
        k = nstamp[0]; nstamp[0] += 1
        assert k < 21
        e("s_memtime s[92:93]")
        e("s_waitcnt lgkmcnt(0)")
        e(f"s_mov_b32 s{40+k}, s92")
    S_W, S_B, S_HG, S_HI, S_H = 3, 4, 5, 6, 7
    SX, SW, SK, SV, SO = 8, 12, 16, 20, 24
    S_W4K, S_T0, S_T1, S_SO, S_C = 28, 29, 30, 31, 32
    S_PO, S_KT, S_FAST, S_SX, S_SW2 = 33, 34, 35, 36, 37
    S_WL, S_WG = 38, 39
    SWO, SOG, SF, SP = 80, 84, 88, 96
    SD = SOG
    VK, VV, VAX, VBW, VAK = 2, 6, 7, 8, 9
    VL16, VDB = 10, 11
    RA = 12
    VM, VMC, VAL = 20, 21, 22
    VWO = [0, 1, 23, 7, 29]
    V_L, T0, T1, T2, T3 = 24, 25, 26, 27, 28
    T4 = 29
    VZ, VPO = 30, 31
    S_TAG = 63
    QF = 32
    Oacc, Sreg = 64, 128
    VX, VW = 128, 132
    R = LA + 2
    AF = 0; XF = 4 * R; XR = 3
    ONES = 116; LACC = 120
    LM = opt.get('lm', 1)
    PA = opt.get('pa', 1)
    RK, RV = 12, 52
    assert XF + 4 * XR <= 44
    AWO = 64
    SPEC = opt.get('spec', 0)
    SO2 = 56
    assert not (SPEC and diag and diag != 9) or opt.get('fewstamps', 0)
    KOFF = opt.get('koff', 0)
    AQ = 32; NEGM = 32; LS = 48; S_RS = 61
    THR = opt.get('thr', 8.0)
    rare = []
    assert R == 8

    e("s_cmp_ge_u32 s2, 256")
    e("s_cbranch_scc1 L_done")
    if diag or opt.get("pad", 0): e("s_memrealtime s[94:95]")
    if diag: e("s_mov_b32 s60, 0")
    e("s_load_dwordx16 s[64:79], s[0:1], 0")
    if opt.get("pf", 1):
        e("s_getpc_b64 s[100:101]")
        e("s_and_b32 s100, s100, 0xffffff00")
        e("s_lshr_b32 s99, s2, 3")
        e("s_lshl_b32 s99, s99, 10")
        e("v_and_b32 v3, 63, v0")
        e("v_lshlrev_b32 v3, 4, v3")
        e("v_lshrrev_b32 v4, 6, v0")
        e("v_lshl_add_u32 v3, v4, 15, v3")
        e("v_add_u32 v3, s99, v3")
        e(f"v_min_u32 v3, (L_done-{kname}-16)&0xfffffff0, v3")
        e("v_mov_b32 v5, s101")
        e("v_add_co_u32 v4, vcc, s100, v3")
        e("v_addc_co_u32 v5, vcc, 0, v5, vcc")
        e("global_load_dwordx4 a[252:255], v[4:5], off")
    e("v_lshrrev_b32 v1, 6, v0")
    e(f"v_and_b32 v{V_L}, 63, v0")
    e(f"v_readfirstlane_b32 s{S_W}, v1")
    e("s_and_b32 s100, s2, 1")
    e("s_lshl_b32 s100, s100, 2")
    e("s_bfe_u32 s101, s2, 0x20003")
    e(f"s_add_u32 s{S_B}, s100, s101")
    e(f"s_bfe_u32 s{S_HG}, s2, 0x20001")
    e(f"s_lshr_b32 s{S_HI}, s2, 5")
    e(f"s_lshl_b32 s{S_H}, s{S_HG}, 3")
    e(f"s_add_u32 s{S_H}, s{S_H}, s{S_HI}")
    if opt.get("homo", 1): e(f"s_mov_b32 s{S_ROLE}, s101")
    else: e(f"s_add_u32 s{S_ROLE}, s101, s{S_HI}")
    e(f"s_and_b32 s{S_ROLE}, s{S_ROLE}, {1 if ROLES else 0}")
    e("s_lshl_b32 s100, s101, 2")
    e(f"s_lshr_b32 s{S_KT}, 0x8530, s100")
    e(f"s_and_b32 s{S_KT}, s{S_KT}, 15")
    e(f"s_add_u32 s{S_KT}, s{S_KT}, s{S_HI}")
    e(f"s_cmp_ge_u32 s{S_KT}, 10")
    e("s_cselect_b32 s100, 10, 0")
    e(f"s_sub_u32 s{S_KT}, s{S_KT}, s100")
    XPF = opt.get("xpf", 1) and ROLES
    NBL = opt.get("nbl", 3)
    if XPF and not opt.get("arot", 0): e(f"s_mov_b32 s{S_KT}, 0")
    e(f"s_lshl_b32 s{S_W4K}, s{S_W}, 12")
    e(f"v_lshrrev_b32 v{T0}, 4, v{V_L}")
    e(f"v_and_b32 v{T1}, 15, v{V_L}")
    e(f"v_lshrrev_b32 v{T2}, 3, v{V_L}")
    e(f"s_lshl_b32 s{S_T0}, s{S_W}, 5")
    e(f"v_add_u32 v{T2}, s{S_T0}, v{T2}")
    e(f"v_mul_u32_u24 v{T2}, 1280, v{T2}")
    e(f"v_and_b32 v{T3}, 7, v{V_L}")
    e(f"v_xor_b32 v{T4}, v{T0}, v{T3}")
    e(f"v_lshl_add_u32 v{VX}, v{T4}, 4, v{T2}")
    e(f"v_add_u32 v{VX+2}, {2*9216}, v{VX}")
    e(f"v_xor_b32 v{T4}, 64, v{VX}")
    e(f"v_add_u32 v{VX+1}, 9216, v{T4}")
    e(f"v_add_u32 v{VX+3}, {3*9216}, v{T4}")
    e(f"v_lshlrev_b32 v{T2}, 2, v{T0}")
    e(f"v_xor_b32 v{T2}, v{T2}, v{T1}")
    e(f"v_lshlrev_b32 v{T2}, 4, v{T2}")
    e(f"s_lshl_b32 s{S_T0}, s{S_W}, 17")
    e(f"v_lshl_add_u32 v{VW}, v{T0}, 13, s{S_T0}")
    e(f"v_add_u32 v{VW}, v{VW}, v{T2}")
    for jj in range(1, 4):
        e(f"v_add_u32 v{VW+jj}, {jj*(32768-1024)}, v{VW}")
    e(f"v_lshl_add_u32 v{T3}, v{T0}, 8, s{S_W4K}")
    e(f"v_add_u32 v{VV}, v{T2}, v{T3}")
    e("s_waitcnt lgkmcnt(0)")
    e(f"s_mul_i32 s{S_T0}, s{S_B}, 163840")
    srd(e, SX, 64, 65, S_T0, 163840)
    e(f"s_lshl_b32 s{S_T0}, s{S_H}, 8")
    e(f"s_sub_u32 s{S_T1}, {640*8192}, s{S_T0}")
    srd(e, SW, 70, 71, S_T0, f"s{S_T1}")
    stamp()
    vmbox = [[]]
    def vm_add(tag, roles=None): vmbox[0].append(tag)
    def wait_vm(tags):
        vm = vmbox[0]
        idx = max(i for i, t in enumerate(vm) if t in tags)
        e(f"s_waitcnt vmcnt({min(63, len(vm) - 1 - idx)})")
    slot_of = {}
    for j in range(10):
        slot_of[("x", j)] = j % 3
        slot_of[("w", j)] = [3, 4, 8][j % 3]
    kvt = [("k",0),("k",1),("k",2),("k",3),("v",0),("v",1),("k",4),("k",5),("v",2),("v",3),("k",6),("k",7),("v",4),("v",5),("v",6),("v",7)]
    for i, t in enumerate(kvt): slot_of[t] = 5 + (i + 4) % 5
    assert D == 3 and NST <= 3
    def dma_ops(t):
        kind, j = t
        so = slot_of[t] * 16384
        out = []
        for jj in range(4):
            g = []
            if jj == 0:
                g.append(f"s_add_u32 m0, s{S_W4K}, {so}")
                if kind == "x":
                    g += [f"s_lshl_b32 s{S_SX}, s{S_KT}, 7", f"s_lshl_b32 s{S_SW2}, s{S_KT}, 19", f"s_add_u32 s{S_KT}, s{S_KT}, 1",
                          f"s_cmp_ge_u32 s{S_KT}, 10", f"s_cselect_b32 s{S_KT}, 0, s{S_KT}"]
                elif kind in "kv":
                    g.append(f"s_mov_b32 s{S_SO}, {16384*j}")
            elif kind in "kv" and (t in kvt[:4] or opt.get("dla") or opt.get("dlb")):
                g.append(f"s_add_u32 m0, s{S_W4K}, {so}")
            if kind == "x":
                g.append(f"buffer_load_dwordx4 v{VX+jj}, s[{SX}:{SX+3}], s{S_SX} offen offset:{1024*jj}{XWF} lds")
            elif kind == "w":
                g.append(f"buffer_load_dwordx4 v{VW+jj}, s[{SW}:{SW+3}], s{S_SW2} offen offset:{1024*jj}{XWF} lds")
            elif kind == "k":
                g.append(f"buffer_load_dwordx4 v{VK+jj}, s[{SK}:{SK+3}], s{S_SO} offen offset:{1024*jj}{KVF} lds")
            else:
                g.append(f"buffer_load_dwordx4 v{VV}, s[{SV}:{SV+3}], s{S_SO} offen offset:{1024*jj}{KVF} lds")
            out.append(g)
        return out
    def emit_group(g, tag, roles="AB"):
        for s in g: e(s)
        vm_add(tag, roles)
    def kv_setup():
        for jj in range(4):
            e(f"v_add_u32 v{T2}, {4*jj}, v{T0}")
            e(f"v_xor_b32 v{T2}, v{T2}, v{T1}")
            e(f"v_lshl_add_u32 v{VK+jj}, v{T2}, 4, v{T3}")
        e(f"s_lshl_b32 s{S_T1}, s{S_B}, 5")
        e(f"s_add_u32 s{S_T1}, s{S_T1}, s{S_H}")
        e(f"s_lshl_b32 s{S_T0}, s{S_T1}, 17")
        srd(e, SK, 66, 67, S_T0, 131072)
        srd(e, SV, 68, 69, S_T0, 131072)
    def burst():
        for n in range(NBL):
            for g in dma_ops(kvt[n]): emit_group(g, kvt[n])
        for n in range(4, 4 + NST):
            kind, j = kvt[n]
            e(f"s_mov_b32 s{S_SO}, {16384*j}")
            for jj in range(4):
                vo, sr_ = (VK + jj, SK) if kind == "k" else (VV, SV)
                e(f"buffer_load_dwordx4 {ar(AKV+16*(n-4)+4*jj,4)}, v{vo}, s[{sr_}:{sr_+3}], s{S_SO} offen offset:{1024*jj}{KVF}"); vm_add(kvt[n])
    vmB_pre = []
    if XPF:
        e(f"s_cmp_eq_u32 s{S_ROLE}, 0")
        e("s_cbranch_scc1 L_noxpf")
        e(f"s_lshl_b32 s100, s{S_HI}, 1"); e("s_bfe_u32 s101, s2, 0x10004"); e("s_add_u32 s100, s100, s101")
        e(f"s_lshl_b32 s100, s100, 2"); e(f"s_add_u32 s100, s100, s{S_W}")
        e(f"s_lshl_b32 s101, s100, 13")
        e(f"v_lshl_add_u32 v140, v{V_L}, 4, s101")
        e("s_mul_i32 s101, s100, 10240")
        e(f"v_lshrrev_b32 v141, 3, v{V_L}"); e("v_mul_u32_u24 v141, 1280, v141")
        e(f"v_and_b32 v142, 7, v{V_L}"); e("v_lshl_add_u32 v141, v142, 4, v141"); e("v_add_u32 v141, s101, v141")
        e("s_and_b32 s100, s2, 1"); e(f"s_mul_i32 s100, s100, {4*163840}")
        srd(e, SK, 64, 65, 100, 4 * 163840)
        e(f"s_lshl_b32 s100, s{S_HG}, 11"); e(f"s_sub_u32 s101, {640*8192}, s100")
        srd(e, SV, 70, 71, 100, "s101")
        for j in range(opt.get("nxpf", 10)):
            e(f"s_movk_i32 s100, {128*j}"); e(f"s_mov_b32 s101, {524288*j}")
            e(f"buffer_load_dwordx4 a[248:251], v140, s[{SV}:{SV+3}], s101 offen{XWF}")
            e(f"buffer_load_dwordx4 a[248:251], v141, s[{SK}:{SK+3}], s100 offen{XWF}")
            e(f"buffer_load_dwordx4 a[248:251], v140, s[{SV}:{SV+3}], s101 offen offset:1024{XWF}")
        if opt.get("bpos", -1) < 0:
            kv_setup()
            burst()
        vmB_pre = list(vmbox[0]); vmbox[0] = []
        e.label("L_noxpf")
    ini = [dma_ops(("x", 0)), dma_ops(("w", 0)), dma_ops(("x", 1)), dma_ops(("w", 1))]
    for i, t in enumerate((("x", 0), ("w", 0), ("x", 1))):
        for g in ini[i]: emit_group(g, t)
    stamp()
    kv_setup()
    e(f"s_mul_i32 s{S_T0}, s{S_HG}, {1024*1280}")
    if opt.get("pfb", 4) == 5:
        e("s_lshr_b32 s100, s2, 3"); e(f"s_lshl_b32 s100, s100, 2"); e(f"s_add_u32 s100, s100, s{S_W}"); e("s_mul_i32 s100, s100, 10240")
    else:
        e(f"s_lshl_b32 s100, s{S_HI}, 1"); e("s_bfe_u32 s101, s2, 0x10004"); e("s_add_u32 s100, s100, s101")
        e(f"s_lshl_b32 s100, s100, 2"); e(f"s_add_u32 s100, s100, s{S_W}"); e("s_mul_i32 s100, s100, 20480")
    e(f"s_add_u32 s{S_T0}, s{S_T0}, s100")
    srd(e, SO, 72, 73, S_T0, 20480)
    srd(e, SD, 76, 77, None, 256)
    if SPEC:
        e(f"s_lshl_b32 s100, s{S_B}, 5"); e(f"s_add_u32 s100, s100, s{S_H}"); e("s_lshl_b32 s100, s100, 2"); e(f"s_add_u32 s100, s100, s{S_W}"); e("s_lshl_b32 s100, s100, 13")
        srd(e, SO2, 78, 79, 100, 8192)
    e(f"s_mul_i32 s{S_T0}, s{S_HG}, {1024*1280}")
    e(f"s_mul_i32 s{S_T1}, s{S_HI}, 160")
    e(f"s_add_u32 s{S_T0}, s{S_T0}, s{S_T1}")
    e(f"s_sub_u32 s{S_T1}, {4096*1280}, s{S_T0}")
    srd(e, SWO, 72, 73, S_T0, f"s{S_T1}")
    e(f"s_mov_b32 s{S_T0}, {WS_F}")
    srd(e, SF, 78, 79, S_T0, 256 * 1024 + 128)
    e(f"s_lshl_b32 s{S_T0}, s{S_B}, 3"); e(f"s_add_u32 s{S_T0}, s{S_T0}, s{S_HI}")
    e(f"s_mul_i32 s{S_T0}, s{S_T0}, 81920"); e(f"s_add_u32 s{S_T0}, s{S_T0}, {WS_P}")
    srd(e, SP, 78, 79, S_T0, 81920)
    e(f"s_lshl_b32 s{S_PO}, s{S_HG}, 2"); e(f"s_add_u32 s{S_PO}, s{S_PO}, s{S_W}"); e(f"s_mul_i32 s{S_PO}, s{S_PO}, 5120")

    e(f"v_and_b32 v{T0}, 31, v{V_L}")
    e(f"v_lshrrev_b32 v{T1}, 5, v{V_L}")
    e(f"v_bfe_u32 v{T2}, v{V_L}, 1, 3")
    e(f"v_xor_b32 v{T2}, v{T2}, v{T1}")
    e(f"v_lshlrev_b32 v{T2}, 4, v{T2}")
    e(f"v_lshl_add_u32 v{T3}, v{T0}, 7, s{S_W4K}")
    e(f"v_add_u32 v{VAX}, v{T2}, v{T3}")
    e(f"v_and_b32 v{T2}, 19, v{T0}")
    e(f"v_bfe_u32 v{T3}, v{T0}, 2, 1")
    e(f"v_lshl_or_b32 v{T2}, v{T3}, 3, v{T2}")
    e(f"v_bfe_u32 v{T3}, v{T0}, 3, 1")
    e(f"v_lshl_or_b32 v{T2}, v{T3}, 2, v{T2}")
    e(f"v_and_b32 v{T3}, 15, v{T2}")
    e(f"v_xor_b32 v{T3}, v{T3}, v{T1}")
    e(f"v_lshlrev_b32 v{T3}, 4, v{T3}")
    e(f"v_lshl_add_u32 v{VAK}, v{T2}, 8, v{T3}")
    e(f"v_bfe_u32 v{T2}, v{V_L}, 2, 2")
    e(f"v_mul_u32_u24 v{T2}, 320, v{T2}")
    e(f"v_lshl_add_u32 v{T2}, v{T1}, 11, v{T2}")
    e(f"v_bfe_u32 v{T3}, v{V_L}, 4, 1")
    e(f"v_lshl_add_u32 v{T2}, v{T3}, 5, v{T2}")
    e(f"v_and_b32 v{T3}, 1, v{V_L}")
    e(f"v_lshl_add_u32 v{T2}, v{T3}, 4, v{T2}")
    e(f"v_bfe_u32 v{T3}, v{V_L}, 1, 1")
    e(f"v_lshl_add_u32 v{VBW}, v{T3}, 3, v{T2}")
    e(f"v_lshlrev_b32 v{VL16}, 4, v{V_L}")
    e(f"s_mov_b32 s{S_C}, {f32bits(SCALE)}")
    for g in ini[3]: emit_group(g, ("w", 1))
    e(f"s_mov_b32 s100, {NONCE_OFF}")
    e(f"buffer_load_dword v{VDB}, off, s[{SF}:{SF+3}], s100 sc1"); vm_add("oldn")
    e("v_or_b32 v1, s2, v0")
    e(f"v_mov_b32 v{T0}, 0x7fffffff")
    e("v_cmp_eq_u32 vcc, 0, v1")
    e(f"v_cndmask_b32 v{VZ}, v{T0}, 0, vcc")
    e(f"v_and_b32 v{T0}, 7, v{V_L}")
    e("s_and_b32 s100, s2, 31"); e("s_lshl_b32 s100, s100, 10")
    e(f"v_lshl_add_u32 v{VPO}, v{T0}, 15, s100")
    for ee in range(5):
        e(f"v_add_u32 v{T0}, {64*ee}, v{V_L}")
        e(f"v_mul_u32_u24 v{T1}, 6554, v{T0}")
        e(f"v_lshrrev_b32 v{T1}, 16, v{T1}")
        e(f"v_mul_u32_u24 v{T2}, 10, v{T1}")
        e(f"v_sub_u32 v{T2}, v{T0}, v{T2}")
        e(f"v_mul_u32_u24 v{T1}, 1280, v{T1}")
        if ee == 3:
            e(f"v_lshl_add_u32 v{T1}, v{T2}, 4, v{T1}")
            e(f"v_subrev_u32 v{T1}, {1024*ee}, v{T1}")
            e(f"v_accvgpr_write_b32 a{AWO}, v{T1}")
        elif 0 < ee < 4:
            e(f"v_lshl_add_u32 v{T1}, v{T2}, 4, v{T1}")
            e(f"v_subrev_u32 v{VWO[ee]}, {1024*ee}, v{T1}")
        else:
            e(f"v_lshl_add_u32 v{VWO[ee]}, v{T2}, 4, v{T1}")

    def attention(role):
        slots = []
        def add_slot(unit, reads, mf, tag=None):
            slots.append(dict(unit=unit, reads=reads, mf=mf, fill=[], fill2=[], dma=[], post=[], tag=tag))
        ring = [0]
        def newbuf():
            b = AF + 4 * (ring[0] % R); ring[0] += 1
            return b
        for j in range(10):
            for s in range(4):
                xi = (j * 4 + s) % XR
                for t in range(4):
                    ab = newbuf()
                    rd = []
                    if t == 0: rd.append(f"ds_read_b128 {ar(XF+4*xi,4)}, v{RA+4+s}")
                    rd.append(f"ds_read_b64_tr_b16 {ar(ab,2)}, v{RA+t} offset:{s*4096}")
                    rd.append(f"ds_read_b64_tr_b16 {ar(ab+2,2)}, v{RA+t} offset:{s*4096+1024}")
                    c = "0" if (j == 0 and s == 0) else vr(Oacc+16*t, 16)
                    add_slot(("s", j), rd, f"v_mfma_f32_32x32x16_bf16 {vr(Oacc+16*t,16)}, {ar(ab,4)}, {ar(XF+4*xi,4)}, {c}")
        def sbuf(q): return Sreg + 64 * (q & 1)
        def frag_ops(q, f):
            b = sbuf(q) + 8 * f
            ops = [f"v_add_f32 v{b+i}, v{b+i}, v{NEGM}" for i in range(8)] if q == 0 else []
            ops += [f"v_exp_f32 v{b+i}, v{b+i}" for i in range(8)]
            if LM: pass
            elif q == 0 and f == 0:
                ops += [f"v_add_f32 v{LS+i}, v{b+i}, v{b+4+i}" for i in range(4)]
            else:
                ops += [f"v_add_f32 v{LS+(i&3)}, v{LS+(i&3)}, v{b+i}" for i in range(8)]
            ops += [f"v_cvt_pk_bf16_f32 v{b+i}, v{b+2*i}, v{b+2*i+1}" for i in range(4)]
            return ops
        def max_ops(q, sg):
            b = sbuf(q) + 16 * sg
            ops = []
            for i in range(8):
                if sg == 0 and i == 0:
                    ops.append(f"v_max_f32 v{VM}, v{b}, v{b+1}")
                else:
                    ops.append(f"v_max3_f32 v{VM}, v{VM}, v{b+2*i}, v{b+2*i+1}")
            return ops
        def check1(q):
            def f():
                lr, lb = newlab("rr"), newlab("rb")
                e(f"v_cmp_lt_f32 vcc, {f32bits(float(THR))}, v{VM}")
                e("s_cmp_lg_u64 vcc, 0")
                e(f"s_cbranch_scc1 {lr}")
                e.label(lb)
                def blk():
                    e.label(lr)
                    e(f"v_mov_b32 v{T0}, v{VM}")
                    e("s_nop 1")
                    e(f"v_permlane32_swap_b32 v{T0}, v{VM}")
                    e(f"v_max3_f32 v{VM}, v{T0}, v{VM}, 0")
                    e(f"v_exp_f32 v{VAL}, -v{VM}")
                    for i in range(64): e(f"v_sub_f32 v{sbuf(q)+i}, v{sbuf(q)+i}, v{VM}")
                    if not LM:
                        for i in range(4): e(f"v_mul_f32 v{LS+i}, v{LS+i}, v{VAL}")
                    for i in range(16): e(f"v_sub_f32 v{NEGM+i}, v{NEGM+i}, v{VM}")
                    e(f"s_mov_b32 s{S_RS}, 1")
                    e("s_nop 1")
                    e(f"s_branch {lb}")
                rare.append(blk)
            return Act(f, 12)
        def check2():
            def f():
                lr, lb = newlab("rr"), newlab("rb")
                e(f"s_cmp_lg_u32 s{S_RS}, 0")
                e(f"s_cbranch_scc1 {lr}")
                e.label(lb)
                def blk():
                    e.label(lr)
                    e("s_nop 15")
                    for i in range(64): e(f"v_mul_f32 v{Oacc+i}, v{Oacc+i}, v{VAL}")
                    if LM:
                        e(f"v_accvgpr_read_b32 v{T0}, a{LACC}"); e(f"v_mul_f32 v{T0}, v{T0}, v{VAL}"); e(f"v_accvgpr_write_b32 a{LACC}, v{T0}")
                    e(f"s_mov_b32 s{S_RS}, 0")
                    e("s_nop 1")
                    e(f"s_branch {lb}")
                rare.append(blk)
            return Act(f, 8)
        seg = {}
        def add_qk(q):
            a = len(slots)
            for jl in range(2):
                unit = ("k", 2*q + jl)
                for u in range(2):
                    sg = 2 * jl + u
                    sb = sbuf(q) + 16 * sg
                    for m in range(8):
                        ab = newbuf()
                        c = ("0" if q == 0 else vr(NEGM, 16)) if m == 0 else vr(sb, 16)
                        so_ = (slot_of[unit] - 5) % 4 * 16384 if PA else 0
                        add_slot(unit, [f"ds_read_b128 {ar(ab,4)}, v{RA+m} offset:{so_+u*8192}"],
                                 f"v_mfma_f32_32x32x16_bf16 {vr(sb,16)}, {ar(ab,4)}, {ar(AQ+4*m,4)}, {c}")
            seg[("qk", q)] = (a, len(slots))
        def add_pv(q):
            a = len(slots)
            def lslot(unit, f):
                first = (q == 0 and f == 0)
                add_slot(unit, [], f"v_mfma_f32_32x32x16_bf16 {ar(LACC,16)}, {ar(ONES,4)}, {vr(sbuf(q)+8*f,4)}, {'0' if first else ar(LACC,16)}")
            def oslot(unit, f, t):
                first = (q == 0 and f == 0); m = f & 3
                ab = newbuf()
                so_ = (slot_of[unit] - 5) % 4 * 16384 if PA else 0
                rb = (RV + (4 if slot_of[unit] == 9 else 0) + t) if PA else RA + t
                rd = [f"ds_read_b64_tr_b16 {ar(ab,2)}, v{rb} offset:{so_+m*4096}",
                      f"ds_read_b64_tr_b16 {ar(ab+2,2)}, v{rb} offset:{so_+m*4096+1024}"]
                add_slot(unit, rd, f"v_mfma_f32_32x32x16_bf16 {vr(Oacc+16*t,16)}, {ar(ab,4)}, {vr(sbuf(q)+8*f,4)}, {'0' if first else vr(Oacc+16*t,16)}")
            for jl in range(2):
                unit = ("v", 2*q + jl)
                if q == 3 and jl == 1:
                    for t in range(4):
                        for m in range(4): oslot(unit, 4 + m, t)
                    continue
                for m in range(4):
                    f = 4 * jl + m
                    if LM: lslot(unit, f)
                    for t in range(4): oslot(unit, f, t)
                if q == 3 and LM:
                    for f in range(4, 8): lslot(unit, f)
            seg[("pv", q)] = (a, len(slots))
        add_qk(0); add_qk(1); add_pv(0); add_qk(2); add_pv(1); add_qk(3); add_pv(2); add_pv(3)
        N = len(slots)
        unit_first = {}
        for k, s in enumerate(slots): unit_first.setdefault(s["unit"], k)
        def unit_range(u):
            ks = [k for k, s in enumerate(slots) if s["unit"] == u]
            return ks[0], ks[-1] + 1
        for j in range(8):
            k0 = unit_first[("s", j)]
            if j >= 1 and not opt.get("nob2", 0): slots[k0]["post"].append("barrier2")
            ops = [(g, ("x", j+2)) for g in dma_ops(("x", j+2))] + [(g, ("w", j+2)) for g in dma_ops(("w", j+2))]
            for i, (g, t) in enumerate(ops):
                slots[k0 + 2 * i]["dma"].append((g, t))
        def b_prefetch():
            for n in range(4):
                for g in dma_ops(kvt[n]): emit_group(g, kvt[n])
            for n in range(4, 4 + NST):
                kind, j = kvt[n]
                e(f"s_mov_b32 s{S_SO}, {16384*j}")
                for jj in range(4):
                    vo, sr_ = (VK + jj, SK) if kind == "k" else (VV, SV)
                    e(f"buffer_load_dwordx4 {ar(AKV+16*(n-4)+4*jj,4)}, v{vo}, s[{sr_}:{sr_+3}], s{S_SO} offen offset:{1024*jj}{KVF}"); vm_add(kvt[n])
        PFB = opt.get("pfb", 4)
        def pf_ops(n):
            return [([f"s_movk_i32 s{S_T0}, {(i>>2)*4096}"] if i % 4 == 0 else []) + [f"buffer_load_dwordx4 a[252:255], v{VL16}, s[{SO}:{SO+3}], s{S_T0} offen offset:{(i&3)*1024}{WOF}"] for i in range(n)]
        def b_all():
            if PFB == 1:
                for gg in pf_ops(20): emit_group(gg, "pf")
            b_prefetch()
            if PFB == 2:
                for gg in pf_ops(20): emit_group(gg, "pf")
        if role == "B" and not XPF:
            slots[unit_first[("s", opt.get("bst", 1))] + 15]["fill"].append(Act(b_all, 0))
        if role == "B" and XPF and opt.get("bpos", -1) >= 0:
            slots[unit_first[("s", opt["bpos"])] + opt.get("bsl", 15)]["fill"].append(Act(burst, 0))
        if role == "B" and XPF and "kmixb" in opt:
            kops = [(g, kvt[n]) for n in range(NBL, 4) for g in dma_ops(kvt[n])]
            km = str(opt["kmixb"]).zfill(10)
            assert sum(int(c, 16) for c in km) == len(kops)
            for j in range(10):
                c = int(km[j], 16); k0 = unit_first[("s", j)]
                for i in range(c):
                    if j < 8: pos = 7 if i < c // 2 else 15
                    else: pos = (2 * i + 1) * 16 // (2 * c)
                    slots[k0 + pos]["dma"].append(kops.pop(0))
        elif role == "B" and XPF and NBL < 4:
            kops = [(g, kvt[n]) for n in range(NBL, 4) for g in dma_ops(kvt[n])]
            k0 = unit_first[("s", 8)]
            for i, it in enumerate(kops): slots[k0 + (2 * i + 1) * 32 // (2 * len(kops))]["dma"].append(it)
        if SPEC and not STOP:
            a, b = unit_range(kvt[opt.get("pfillu", 2)])
            for i in range(8):
                gg = ([f"s_movk_i32 s{S_T1}, {(i>>2)*4096}"] if i % 4 == 0 else []) + [f"buffer_store_dwordx4 v[52:55], v{VL16}, s[{SO2}:{SO2+3}], s{S_T1} offen offset:{(i&3)*1024}{opt.get('pfillflag', '')}"]
                if opt.get("nopfill", 0): gg = []
                slots[a + 8 + i]["dma"].append((gg, "pfill"))
        if PFB == 5:
            a, b = unit_range(kvt[int(str(opt.get("pfa" if role == "A" else "pfu", "c")), 16)])
            for i, gg in enumerate(pf_ops(10)):
                slots[a + 8 + i * 8 // 10]["dma"].append((gg, "pf"))
        if role == "A" and PFB == 4:
            lo_u, hi_u = [int(c, 16) for c in str(opt.get("pfu", "18"))]
            nu = hi_u - lo_u + 1
            for i, gg in enumerate(pf_ops(20)):
                a, b = unit_range(kvt[lo_u + i * nu // 20])
                j = i - min(ii for ii in range(20) if ii * nu // 20 == i * nu // 20)
                slots[a + 9 + 2 * j]["dma"].append((gg, "pf"))
        if role == "B" and PFB == 3:
            lo_u, hi_u = [int(c, 16) for c in str(opt.get("pfu", "03"))]
            a = unit_range(kvt[lo_u])[0] + 6; b = unit_range(kvt[hi_u])[1]
            for i, gg in enumerate(pf_ops(20)):
                slots[a + i * (b - a) // 20]["dma"].append((gg, "pf"))
        if role != "B":
            kops = [(g, kvt[n]) for n in range(4) for g in dma_ops(kvt[n])]
            npf = opt.get("npf", 20) if role == "A" and not STOP and not PFB else 0
            pfo = [([f"s_movk_i32 s{S_T0}, {(i>>2)*4096}"] if i % 4 == 0 else []) + [f"buffer_load_dwordx4 a[252:255], v{VL16}, s[{SO}:{SO+3}], s{S_T0} offen offset:{(i&3)*1024}{WOF}"] for i in range(npf)]
            pfo = [(g, "pf") for g in pfo]
            if opt.get("pffirst", 1): kops = pfo + kops
            else: kops = kops + pfo
            kmix = str(opt.get("kmix", ("0000000088" if PFB else "00000006ff") if role == "A" else "0002222224")).zfill(10)
            assert sum(int(c, 16) for c in kmix) == len(kops), len(kops)
            for j in range(10):
                c = int(kmix[j], 16); k0 = unit_first[("s", j)]
                for i in range(c):
                    if j < 8: pos = 7 if i < c // 2 else 15
                    else: pos = (2 * i + 1) * 16 // (2 * c)
                    slots[k0 + pos]["dma"].append(kops.pop(0))
        dl = str(opt.get("dla" if role == "A" else "dlb", "000000000000"))
        for n in range(4, 16):
            a, b = unit_range(kvt[n - D])
            a += 2 * int(dl[n - 4], 16)
            L = 16
            for i, g in enumerate(dma_ops(kvt[n])):
                if role == "B" and n < 4 + NST:
                    alt = [f"v_add_u32 v{T3}, s{S_W4K}, v{VL16}", f"v_add_u32 v{T3}, {slot_of[kvt[n]]*16384}, v{T3}"] if i == 0 else []
                    alt.append(f"ds_write_b128 v{T3}, {ar(AKV+16*(n-4)+4*i,4)} offset:{1024*i}")
                    slots[a + (2 * i) * L // 16 + 1 + KOFF]["dma"].append((alt, None))
                else:
                    slots[a + (2 * i) * L // 16 + 1 + KOFF]["dma"].append((g, kvt[n]))
        NS0 = opt.get('ns0', 4)
        AST = 256 - 20 * (8 - NS0)
        WROT = opt.get("wrot", 1)
        def w_grp(g):
            if not WROT or g >= 4: return [f"s_add_u32 s100, s{S_W}, {4*g}"]
            return ["s_bfe_u32 s100, s2, 0x20003", f"s_add_u32 s100, s100, {g & 3}", "s_and_b32 s100, s100, 3", "s_lshl_b32 s100, s100, 2",
                    f"s_add_u32 s100, s100, s{S_W}"] + ([f"s_add_u32 s100, s100, 16"] if g >= 4 else [])
        def w_lds(g, dst):
            return w_grp(g) + [f"s_mul_i32 s{dst}, s100, 5120"]
        def w_ops(g, stage=False):
            glob = [f"s_lshl_b32 s101, s{S_HI}, 2", "s_add_u32 s100, s100, s101", "s_and_b32 s100, s100, 31", f"s_mul_i32 s{S_WG}, s100, {32*1280}"]
            out = []
            if stage:
                pre = w_grp(g) + glob
                for ee in range(5):
                    out.append((pre if ee == 0 else []) + [f"buffer_load_dwordx4 {ar(AST+20*(g-NS0)+4*ee,4)}, v{VWO[ee]}, s[{SWO}:{SWO+3}], s{S_WG} offen offset:{1024*ee if ee<4 else 0}{WOF}"])
                return out
            pre = w_lds(g, S_WL) + [f"s_mov_b32 m0, s{S_WL}"] + glob
            for ee in range(4):
                out.append((pre if ee == 0 else [f"s_mov_b32 m0, s{S_WL}", "s_nop 0"]) + [f"buffer_load_dwordx4 v{VWO[ee]}, s[{SWO}:{SWO+3}], s{S_WG} offen offset:{1024*ee}{WOF} lds"])
            out.append([f"s_add_u32 m0, s{S_WL}, 4096", "s_nop 0", f"buffer_load_dwordx4 v{VWO[4]}, s[{SWO}:{SWO+3}], s{S_WG} offen{WOF} lds"])
            return out
        def pmap(c): return c
        assert NS0 == 4
        def place_w(rng, role):
            lo_u, hi_u = [int(c, 16) for c in rng]
            sp = [(gg, ("W", g)) for g in range(4) for gg in w_ops(g, False)]
            nu = hi_u - lo_u + 1
            byu = {}
            for i, it in enumerate(sp): byu.setdefault(lo_u + i * nu // len(sp), []).append(it)
            for n, ops in byu.items():
                a, b = unit_range(kvt[n]); L = b - a
                nokv = n + D > 15 or n == 0 or (role == "B" and n + D < 4 + NST)
                lo = a + 1 if nokv else a + L // 2 + 1 + KOFF
                if n == 15: b = a + 8
                for i, it in enumerate(ops):
                    slots[lo + i * (b - lo) // len(ops)]["dma"].append(it)
        if not STOP:
            for gi, n in ((4, 14), (5, 15)):
                a, b = unit_range(kvt[n])
                for i, gg in enumerate(w_ops(gi, False)):
                    slots[a + (8 if n == 14 else 0) + i]["dma"].append((gg, ("W", gi)))
            place_w(str(opt.get({"A": "wspa", "B": "wspb", "AB": "wsp"}[role], {"A": "cd", "B": "cd", "AB": "0b"}[role])), role)
        def misc_acts():
            def m0():
                wait_vm(["dbgld"])
                l1, l2 = newlab("dc"), newlab("dc")
                e("s_mov_b32 s101, 0")
                e.label(l1)
                e(f"v_xor_b32 v{T0}, v{T3}, v{VDB}")
                e(f"v_cmp_gt_u32 vcc, 16, v{T0}")
                e("s_cmp_eq_u64 vcc, -1")
                e(f"s_cbranch_scc1 {l2}")
                e("s_add_u32 s101, s101, 1")
                e(f"s_cmp_ge_u32 s101, {SPIN}")
                e(f"s_cbranch_scc1 {l2}")
                e("s_sleep 8")
                e(f"buffer_load_dword v{T3}, v{VPO}, s[{SF}:{SF+3}], 0 offen offset:512 sc1")
                e("s_waitcnt vmcnt(0)")
                e(f"s_branch {l1}")
                e.label(l2)
                e(f"v_cmp_eq_u32 vcc, 0, v{T0}")
                e("s_cmp_eq_u64 vcc, -1")
                e(f"s_cselect_b32 s{S_FAST}, {0 if (FORCE_SLOW or (opt.get('slowa', 0) and role == 'A')) else 1}, 0")
            def m1():
                e(f"s_lshl_b32 s{S_T0}, s{S_B}, 2"); e(f"s_add_u32 s{S_T0}, s{S_T0}, s{S_HG}"); e(f"s_lshl_b32 s{S_T0}, s{S_T0}, 18")
                e(f"s_lshl_b32 s100, s{S_W}, 13")
                e(f"s_add_u32 s{S_T0}, s{S_T0}, s100")
                srd(e, SOG, 78, 79, S_T0, 7 * 32768 + 8192)
            def m2():
                e(f"s_lshl_b32 s100, s{S_HI}, 15")
                e(f"s_add_u32 s{S_T0}, s{S_T0}, s100")
                srd(e, SO, 78, 79, S_T0, 8192)
                e(f"s_lshl_b32 s{S_T0}, s2, 3"); e(f"s_add_u32 s{S_T0}, s{S_T0}, s{S_W}"); e(f"s_lshl_b32 s{S_T0}, s{S_T0}, 7")
            def m3():
                e(f"v_mov_b32 v{VZ}, s{S_T0}")
                e(f"v_mov_b32 v{T0}, 0x7fffffff")
                e(f"v_cmp_eq_u32 vcc, 0, v{V_L}")
                e(f"v_mov_b32 v{T2}, s{S_TAG}")
                e(f"v_add_u32 v{T3}, s{S_HI}, v{V_L}")
                e(f"v_cndmask_b32 v{VZ}, v{T0}, v{VZ}, vcc")
                e(f"v_and_b32 v{T3}, 7, v{T3}")
            def m4():
                e(f"s_and_b32 s{S_T0}, s2, 31"); e(f"s_lshl_b32 s{S_T0}, s{S_T0}, 3"); e(f"s_add_u32 s{S_T0}, s{S_T0}, s{S_W}"); e(f"s_lshl_b32 s{S_T0}, s{S_T0}, 7")
                e(f"v_lshl_add_u32 v{VPO}, v{T3}, 15, s{S_T0}")
            return [Act(m0, 36), Act(m1, 36), Act(m2, 36), Act(m3, 28), Act(m4, 20)]
        def base_cost(k):
            s = slots[k]
            return 8 + 4 * len(slots[min(N-1, k+LA)]["reads"]) + (2 if PAIRW else 4) + sum(4 * len(x[0]) for x in s["dma"]) + sum(cost(x) for x in s["fill"] + s["fill2"])
        def spread(ops, a, b, dead=None):
            tot = sum(cost(o) for o in ops)
            lo, hi = 0, 400
            def place(level, commit):
                i = 0
                for k in range(a, b):
                    c = base_cost(k)
                    while i < len(ops):
                        if c + cost(ops[i]) <= level:
                            c += cost(ops[i])
                            if commit: slots[k]["fill"].append(ops[i])
                            i += 1
                        else: break
                    if dead and any(oi >= i and sl <= k + 1 for oi, sl in dead): return False
                return i == len(ops)
            while lo < hi:
                mid = (lo + hi) // 2
                if place(mid, False): hi = mid
                else: lo = mid + 1
            assert place(lo, True)
            return lo
        for q in range(4):
            a, b = seg[("qk", q)]
            for sg in range(3):
                base = a + 8 * (sg + 1)
                mo = max_ops(q, sg)
                for i in range(4): slots[base + 4 + i]["fill"] += mo[2*i:2*i+2]
        lv = []
        X0 = opt.get("x0", 13)
        for q in range(1, 4):
            a, b = seg[("pv", q - 1)]
            mo = max_ops(q, 3)
            for i in range(4): slots[a + 3 + i]["fill"] += mo[2*i:2*i+2]
            slots[a + (X0 if q == 1 else 7)]["fill2"].append(check1(q))
        for q in (1, 2):
            slots[seg[("qk", q + 1)][0]]["fill"].append(check2())
        def qconv(t):
            ops = []
            for i in range(0, 16, 2):
                r = Oacc + 16 * t + i
                ops.append(f"v_pk_mul_f32 v[{r}:{r+1}], v[{r}:{r+1}], v[{T1}:{T1+1}] op_sel_hi:[1,0]") if t < 2 else ops.extend([f"v_mul_f32 v{r}, v{r}, v{T1}", f"v_mul_f32 v{r+1}, v{r+1}, v{T1}"])
            ops += [f"v_cvt_pk_bf16_f32 v{Oacc+16*t+i}, v{Oacc+16*t+2*i}, v{Oacc+16*t+2*i+1}" for i in range(8)]
            ops += [f"v_accvgpr_write_b32 a{AQ+8*t+i}, v{Oacc+16*t+i}" for i in range(8)]
            return ops
        a, b = seg[("qk", 0)]
        lv.append(spread(qconv(2) + qconv(3), a, a + 6, dead=[(31, a + 4), (63, a + 6)]))
        if PA:
            a, b = seg[("qk", 0)]
            va = [f"v_add_u32 v{RV}, {5*16384}, v{VBW}"] + [f"v_xor_b32 v{RV+t}, {t<<6}, v{RV}" for t in range(1, 4)]
            va += [f"v_add_u32 v{RV+4+t}, {4*16384}, v{RV+t}" for t in range(4)]
            for i, o in enumerate(va): slots[a + 8 + i // 2]["fill"].append(o)
        PS_ = 5 if LM else 4
        a, b = seg[("pv", 2)]
        for i, act in enumerate(misc_acts()):
            slots[a + 18 + 3 * i]["fill"].append(act)
        a, b = seg[("qk", 1)]
        f0 = [frag_ops(0, f) for f in range(8)]
        lv.append(spread([o for x in f0 for o in x], a, b + X0 + 1, dead=[(sum(len(x) for x in f0[:f+1]) - 1, b + PS_ * f) for f in range(4) if PS_ * f <= X0]))
        for q in (1, 2):
            lv.append(spread([o for f in range(8) for o in frag_ops(q, f)], seg[("pv", q-1)][0] + (X0 + 1 if q == 1 else 8), seg[("qk", q+1)][1]))
        a3 = seg[("pv", 3)][0]
        NF = len(frag_ops(3, 0))
        lv.append(spread([o for f in range(8) for o in frag_ops(3, f)], seg[("pv", 2)][0] + 8, a3 + (20 if LM else 16),
                         dead=[(NF * f + NF - 1, a3 + PS_ * f) for f in range(4)]))
        a7 = unit_first[("v", 7)]
        def store_t(t):
            def f():
                d = QF + 8 * t
                l1, l2 = newlab("o"), newlab("o")
                so = f"s{S_SO}" if t >= 2 else "0"
                e(f"s_cmp_eq_u32 s{S_FAST}, 0")
                e(f"s_cbranch_scc1 {l1}")
                for z in range(2):
                    e(f"buffer_store_dwordx4 {vr(d+4*z,4)}, v{VL16}, s[{SO}:{SO+3}], {so} offen offset:{((2*t+z)&3)*1024}{' nt' if (opt.get('ntma' if role == 'A' else 'ntmb', 15) >> t) & 1 else ''}")
                e(f"s_branch {l2}")
                e.label(l1)
                for z in range(2):
                    e(f"buffer_store_dwordx4 {vr(d+4*z,4)}, v{VL16}, s[{SO}:{SO+3}], {so} offen offset:{((2*t+z)&3)*1024} sc1")
                e.label(l2)
                vm_add("Ost"); vm_add("Ost")
            return Act(f, 20)
        def pack_ops(t, pk=False):
            ops = []
            if pk:
                for i in range(0, 16, 2):
                    r = Oacc + 16 * t + i
                    ops.append(f"v_pk_mul_f32 v[{r}:{r+1}], v[{r}:{r+1}], v[{T1}:{T1+1}] op_sel_hi:[1,0]")
            else:
                ops += [f"v_mul_f32 v{Oacc+16*t+i}, v{Oacc+16*t+i}, v{T1}" for i in range(16)]
            d = QF + 8 * t
            for u in range(2):
                b = Oacc + 16 * t + 4 * u
                ops += [f"v_cvt_pk_bf16_f32 v{d+4*u}, v{b}, v{b+1}", f"v_cvt_pk_bf16_f32 v{d+4*u+1}, v{b+2}, v{b+3}",
                        f"v_cvt_pk_bf16_f32 v{d+4*u+2}, v{b+8}, v{b+9}", f"v_cvt_pk_bf16_f32 v{d+4*u+3}, v{b+10}, v{b+11}"]
            ops += [f"v_permlane16_swap_b32 v{d+i}, v{d+4+i}" for i in range(4)]
            ops.append(store_t(t))
            return ops
        if LM:
            slots[a7 + 2]["fill"] += [f"v_accvgpr_read_b32 v{T1}, a{LACC}", f"s_movk_i32 s{S_SO}, 4096"]
        else:
            slots[a7 + 0]["fill"] += [f"v_add_f32 v{LS}, v{LS}, v{LS+1}", f"v_add_f32 v{LS+2}, v{LS+2}, v{LS+3}", f"s_movk_i32 s{S_SO}, 4096"]
            slots[a7 + 1]["fill"] += [f"v_add_f32 v{LS}, v{LS}, v{LS+2}", f"v_mov_b32 v{T1}, v{LS}"]
            slots[a7 + 2]["fill"] += [f"v_permlane32_swap_b32 v{T1}, v{LS}", f"v_add_f32 v{T1}, v{T1}, v{LS}"]
        slots[a7 + 3]["fill"] += [f"v_rcp_f32 v{T1}, v{T1}"]
        p0, p1, p2 = pack_ops(0), pack_ops(1), pack_ops(2)
        PK0 = opt.get("pk0", 6)
        for i in range(4): slots[a7 + PK0 + i]["fill"] += p0[i*29//4:(i+1)*29//4]
        for i in range(4): slots[a7 + PK0 + 4 + i]["fill"] += p1[i*29//4:(i+1)*29//4]
        n2 = 16 - (PK0 + 8)
        for i in range(n2): slots[a7 + PK0 + 8 + i]["fill"] += p2[i*8:(i+1)*8]
        epi_rest = p2[n2*8:] + pack_ops(3, True)
        EARLY = opt.get("early", 0) and not STOP
        S_PM, S_EARLY = 34, 61
        assert not EARLY
        OB = [None, 64, 96, 128, 0, 32, 160, 192]
        def o_ops(h):
            out = []
            pre = [f"s_add_u32 s100, s{S_HI}, {h}", "s_and_b32 s100, s100, 7", f"s_lshl_b32 s{S_T0}, s100, 15", f"s_add_u32 s{S_T1}, s{S_T0}, 4096"]
            for f in range(8):
                so = S_T0 if f < 4 else S_T1
                out.append((pre if f == 0 else []) + [f"buffer_load_dwordx4 {ar(OB[h]+4*f,4)}, v{VL16}, s[{SOG}:{SOG+3}], s{so} offen offset:{(f&3)*1024}{opt.get('olflag', ' sc1')}"])
            return out
        def early_take():
            wait_vm(["poll0"])
            l1 = newlab("e")
            e(f"v_cmp_eq_u32 vcc, v{T2}, v{T3}")
            e(f"s_mov_b32 s{S_PM}, vcc_lo")
            e(f"s_and_b32 s100, s{S_PM}, 14")
            e("s_cmp_eq_u32 s100, 14")
            e(f"s_cselect_b32 s{S_EARLY}, 1, 0")
            e(f"s_cbranch_scc0 {l1}")
            for gg in o_ops(1) + o_ops(2)[:4]:
                for s_ in gg: e(s_)
            e.label(l1)
        if EARLY:
            slots[a7 + opt.get("et", 9)]["fill"].insert(0, Act(early_take, 40))
        sys.stderr.write(f"filler levels {lv}\n")
        def gap_q_post():
            e(f"v_mov_b32 v{T1}, s{S_C}")
            e(f"v_accvgpr_read_b32 v{VWO[3]}, a{AWO}")
            e(f"s_mov_b32 s{S_RS}, 0")
            assert not SPEC
            if LM:
                e(f"v_mov_b32 v{T0}, 0x3f803f80")
                for i in range(4): e(f"v_accvgpr_write_b32 a{ONES+i}, v{T0}")
            for o in qconv(0) + qconv(1): e(o)
        def gap0_pre():
            for o in max_ops(0, 3): e(o)
            e(f"v_mov_b32 v{T0}, v{VM}")
            e(f"v_permlane32_swap_b32 v{T0}, v{VM}")
            e(f"v_max_f32 v{VM}, v{T0}, v{VM}")
            for i in range(16): e(f"v_sub_f32 v{NEGM+i}, 0, v{VM}")
        def gap3_pre():
            check2().fn()
        nop = lambda: None
        gaps = {seg[("qk", 0)][0]: (nop, gap_q_post, True),
                seg[("qk", 1)][0]: (gap0_pre, nop, False),
                seg[("pv", 3)][0]: (gap3_pre, nop, False)}
        def enter_unit(u):
            if u[0] == "s":
                j = u[1]
                wait_vm([("x", j), ("w", j)])
                e("s_barrier")
                if j == 9:
                    e(f"v_add_u32 v{VDB}, 1, v{VDB}")
                    e(f"v_cmp_eq_u32 vcc, 0, v{VDB}")
                    e(f"s_mov_b32 s100, {NONCE_OFF}")
                    e(f"v_cndmask_b32 v{VDB}, v{VDB}, 1, vcc")
                    e(f"buffer_store_dword v{VDB}, v{VZ}, s[{SD}:{SD+3}], 0 offen sc1"); vm_add("nst")
                    e(f"buffer_store_dword v{VDB}, v{VZ}, s[{SF}:{SF+3}], s100 offen sc1"); vm_add("nst")
                e(f"v_add_u32 v{RA}, {slot_of[('w',j)]*16384}, v{VBW}")
                e(f"v_add_u32 v{RA+4}, {slot_of[('x',j)]*16384}, v{VAX}")
                for t in range(1, 4):
                    e(f"v_xor_b32 v{RA+t}, {t<<6}, v{RA}")
                    e(f"v_xor_b32 v{RA+4+t}, {t<<5}, v{RA+4}")
            else:
                n_ = kvt.index(u)
                pm = int(str(opt.get("pairb", "0")), 16)
                if (pm >> (n_ // 2)) & 1:
                    if n_ % 2 == 0:
                        wait_vm([u, kvt[n_ + 1]]); e("s_barrier")
                else:
                    if not opt.get("nomem", 0) or u in kvt[:4]: wait_vm([u])
                    if opt.get("nomem", 0) < 2: e("s_barrier")
                if u == kvt[4]:
                    e(f"buffer_load_dword v{T3}, off, s[{SD}:{SD+3}], 0 sc1"); vm_add("nld")
                if u == kvt[7]:
                    l1, l2 = newlab("nc"), newlab("nc")
                    e("s_mov_b32 s101, 0")
                    e.label(l1)
                    e(f"v_readfirstlane_b32 s{S_TAG}, v{T3}")
                    e("s_add_u32 s101, s101, 1")
                    e(f"s_cmp_lg_u32 s{S_TAG}, 0")
                    e(f"s_cbranch_scc1 {l2}")
                    e(f"s_cmp_ge_u32 s101, {SPIN}")
                    e(f"s_cbranch_scc1 {l2}")
                    e("s_sleep 8")
                    e(f"buffer_load_dword v{T3}, off, s[{SD}:{SD+3}], 0 sc1")
                    e("s_waitcnt vmcnt(0)")
                    e(f"s_branch {l1}")
                    e.label(l2)
                    e("s_getreg_b32 s100, hwreg(HW_REG_XCC_ID)")
                    e("s_and_b32 s100, s100, 15")
                    e(f"s_lshl_b32 s101, s{S_TAG}, 4")
                    e("s_or_b32 s100, s100, s101")
                    e(f"v_mov_b32 v{VDB}, s100")
                    e("s_lshl_b32 s100, s2, 10")
                    e(f"buffer_store_dword v{VDB}, off, s[{SF}:{SF+3}], s100 offset:512 sc1"); vm_add("xst")
                if u == kvt[opt.get("tlbu", 8)] and opt.get("tlbw", 0) and not STOP:
                    e(f"s_lshl_b32 s100, s{S_B}, 2"); e(f"s_add_u32 s100, s100, s{S_HG}"); e("s_lshl_b32 s101, s100, 18")
                    srd(e, 56, 78, 79, None, 16 << 20)
                    e("buffer_load_dword v52, off, s[56:59], s101 sc1"); vm_add("tlb")
                    e(f"buffer_load_dword v53, off, s[{SP}:{SP+3}], s{S_PO} sc1"); vm_add("tlb")
                    e(f"s_mul_i32 s101, s100, {32*1280}")
                    srd(e, 56, 74, 75, None, 1024 * 1280)
                    e("buffer_load_dword v54, off, s[56:59], s101 sc1"); vm_add("tlb")
                if u == kvt[11]:
                    e(f"buffer_load_dword v{T3}, v{VPO}, s[{SF}:{SF+3}], 0 offen offset:512 sc1"); vm_add("dbgld")
                if u == kvt[15] and EARLY:
                    e(f"buffer_load_dword v{T3}, v{VPO}, s[{SF}:{SF+3}], 0 offen sc1"); vm_add("poll0")
                so = slot_of[u] * 16384
                if PA:
                    if u[0] == "k":
                        hi = slot_of[u] == 9
                        if kst[0] is None:
                            e(f"v_add_u32 v{RA}, {(9 if hi else 5)*16384}, v{VAK}")
                            for m in range(1, 8): e(f"v_xor_b32 v{RA+m}, {m<<5}, v{RA}")
                        elif kst[0] != hi:
                            for m in range(8): e(f"v_xor_b32 v{RA+m}, {(9*16384) ^ (5*16384)}, v{RA+m}")
                        kst[0] = hi
                elif u[0] == "k":
                    e(f"v_add_u32 v{RA}, {so}, v{VAK}")
                    for m in range(1, 8): e(f"v_xor_b32 v{RA+m}, {m<<5}, v{RA}")
                else:
                    e(f"v_add_u32 v{RA}, {so}, v{VBW}")
                    for t in range(1, 4): e(f"v_xor_b32 v{RA+t}, {t<<6}, v{RA}")
        kst = [None]
        st = dict(rd=0, cur=None, waited=-1)
        lg = []
        def issue_reads(upto):
            while st["rd"] <= upto and st["rd"] < N:
                s = slots[st["rd"]]
                if s["unit"] != st["cur"]:
                    st["cur"] = s["unit"]
                    enter_unit(st["cur"])
                    if diag == 2 and st["cur"][0] == "s": stamp()
                for r in s["reads"]:
                    e(r); lg.append(st["rd"])
                st["rd"] += 1
        def limit(k):
            c = [g for g in gaps if g > k and gaps[g][2]]
            return (min(c) if c else N) - 1
        segstarts = {v[0] for v in seg.values()}
        for k in range(N):
            s = slots[k]
            if k in segstarts and diag not in (3, 4, 5, 6): stamp()
            if k in gaps:
                gaps[k][0]()
                issue_reads(k + LA - 1)
                gaps[k][1]()
            elif k == 0:
                issue_reads(LA - 1)
                stamp()
            if s["reads"] and k > st["waited"]:
                kk = k
                if PAIRW and k + 1 < st["rd"] and slots[k+1]["reads"] and (k + 1) not in gaps: kk = k + 1
                idx = max(i for i, t in enumerate(lg) if t == kk)
                n_after = len(lg) - 1 - idx
                e(f"s_waitcnt lgkmcnt({min(15, n_after)})")
                st["waited"] = kk
            e(s["mf"])
            for p in s["post"]:
                if p == "barrier2": e("s_barrier")
            issue_reads(min(k + LA, limit(k)))
            for gg, tg in s["dma"]:
                if opt.get("now", 0) and (tg == "pf" or (isinstance(tg, tuple) and tg[0] == "W")): gg = []
                if opt.get("nomem", 0) and s["unit"][0] != "s": gg = []
                for s_ in gg: e(s_)
                if tg is None: lg.append(-1)
                else: vm_add(tg)
            for f in s["fill"] + s["fill2"]:
                if isinstance(f, str): e(f)
                else: f.fn()
        stamp()
        for f in epi_rest:
            if isinstance(f, str): e(f)
            else: f.fn()
        if not STOP:
            assert vmbox[0][-1] == "Ost"
            wait_vm([("W", gi) for gi in range(4)])
        return dict(OB=OB, S_PM=S_PM)
    def flag_raw():
        l1, l2 = newlab("f"), newlab("f")
        e(f"s_cmp_eq_u32 s{S_FAST}, 0")
        e(f"s_cbranch_scc1 {l1}")
        e(f"buffer_store_dword v{T2}, v{VZ}, s[{SF}:{SF+3}], 0 offen")
        e(f"s_branch {l2}")
        e.label(l1)
        e(f"buffer_store_dword v{T2}, v{VZ}, s[{SF}:{SF+3}], 0 offen sc1")
        e.label(l2)
    vm0 = list(vmbox[0]); st0 = nstamp[0]
    if ROLES:
        e(f"s_cmp_eq_u32 s{S_ROLE}, 0")
        e("s_cbranch_scc1 L_roleA")
        vmbox[0] = vmB_pre + vm0
        X = attention("B")
        e("s_branch L_tail")
        e.label("L_roleA")
        vmbox[0] = list(vm0); nstamp[0] = st0
        X = attention("A")
        e.label("L_tail")
    else:
        X = attention("AB")
    vmbox[0] = ["Ost"]
    OB, S_PM = X["OB"], X["S_PM"]
    stamp()
    if not STOP:
        tail(e, opt, locals())
    if diag == 7:
        e("s_waitcnt vmcnt(0)")
        stamp()
        e("s_load_dwordx2 s[64:65], s[0:1], 48"); e("s_waitcnt lgkmcnt(0)")
        srd(e, 8, 64, 65, None, 256)
        e("s_and_b32 s100, s2, 0xf7"); e("s_or_b32 s100, s100, s3"); e("s_cmp_lg_u32 s100, 4"); e("s_cbranch_scc1 L_nd7")
        e("s_lshr_b32 s100, s2, 3"); e("s_mul_i32 s100, s100, 24"); e("s_add_u32 s100, s100, 16")
        for i, k in enumerate((2, 3, 11, 14, 15, 18)):
            e(f"v_mov_b32 v4, s{40+k}"); e(f"buffer_store_dword v4, off, s[8:11], s100 offset:{4*i}")
        e.label("L_nd7")
    elif diag:
        e("s_waitcnt vmcnt(0)")
        stamp()
        e("s_memrealtime s[100:101]")
        e("s_waitcnt lgkmcnt(0)")
        e(f"s_mov_b32 s29, {WS_DIAG}")
        srd(e, 8, 78, 79, 29, 1 << 20)
        e("s_lshl_b32 s29, s2, 2"); e("s_add_u32 s29, s29, s3"); e("s_lshl_b32 s29, s29, 7")
        e("v_mov_b32 v1, s29")
        vals = [f"s{40+k}" for k in range(nstamp[0])] + ["0"] * (24 - nstamp[0])
        if diag == 5:
            vals = vals[:14] + ["s54", "s55", "s56", "s57"] + vals[18:]
        vals = vals + ["s94", "s95", "s100", "s101"]
        e("s_getreg_b32 s30, hwreg(HW_REG_XCC_ID)")
        vals += ["s30", "s62", f"s{S_FAST}", "s37" if not SPEC else "s60"]
        for q in range(8):
            for i in range(4): e(f"v_mov_b32 v{4+i}, {vals[4*q+i]}")
            e(f"buffer_store_dwordx4 v[4:7], v1, s[8:11], 0 offen offset:{16*q}")
    if opt.get("pad", 0):
        e("s_waitcnt vmcnt(0)")
        e.label("L_pad")
        e("s_memrealtime s[92:93]")
        e("s_waitcnt lgkmcnt(0)")
        e("s_sub_u32 s92, s92, s94")
        e(f"s_cmp_lt_u32 s92, {opt['pad']}")
        e("s_cbranch_scc1 L_pad")
    e("s_endpgm")
    for blk in rare: blk()
    e.label("L_done")
    e("s_endpgm")
    if TICK:
        for t in range(2):
            kernel_header(e, f"tick{t}_kernel")
            e("s_memrealtime s[4:5]")
            e("s_load_dwordx2 s[6:7], s[0:1], 56")
            e("s_waitcnt lgkmcnt(0)")
            e(f"s_mov_b32 s12, {WS_DIAG + 0x80000 + 64 * t}")
            srd(e, 8, 6, 7, 12, 64)
            if t == 0:
                for i in range(40): e("s_sleep 127")
                e("s_memrealtime s[4:5]"); e("s_waitcnt lgkmcnt(0)")
            e("v_mov_b32 v2, s4"); e("v_mov_b32 v3, s5")
            e("buffer_store_dwordx2 v[2:3], off, s[8:11], 0")
            e("s_endpgm")
    e.raw('.section .rodata,"a"')
    kernel_desc(e, kname, 512, 256)
    if TICK:
        for t in range(2): kernel_desc(e, f"tick{t}_kernel", 32, 32)
    sys.stderr.write(f"nops inserted: {e.nnop}, instrs: {sum(1 for x in e.L if x[0])}\n")
    return e.text()

def tail(e, opt, g):
    S_W, S_B, S_HG, S_HI, S_T0, S_T1, S_SO, S_FAST, S_PO = [g[k] for k in "S_W S_B S_HG S_HI S_T0 S_T1 S_SO S_FAST S_PO".split()]
    SOG, SF, SP, QF, V_L, VL16, VPO, VZ, T0, T1, T2, T3 = [g[k] for k in "SOG SF SP QF V_L VL16 VPO VZ T0 T1 T2 T3".split()]
    vm_add, wait_vm, emit_group, newlab, stamp, OB, S_PM, flag_raw = [g[k] for k in "vm_add wait_vm emit_group newlab stamp OB S_PM flag_raw".split()]
    S_TAG, SWO, VWO, WOF = g["S_TAG"], g["SWO"], g["VWO"], g["WOF"]
    LA = opt.get("LA4", 6); R = LA + 2
    ACC = 128; FR = 168; VB = 12
    e(f"v_lshrrev_b32 v{T1}, 2, v{V_L}")
    e(f"v_mul_u32_u24 v{T1}, 160, v{T1}")
    e(f"v_and_b32 v{T0}, 3, v{V_L}")
    e(f"v_lshl_add_u32 v{VB}, v{T0}, 3, v{T1}")
    e(f"v_add_u32 v{VB+1}, {12*5120}, v{VB}")
    e(f"v_add_u32 v{VB+2}, {24*5120}, v{VB}")
    SPEC = g["SPEC"]; rare = g["rare"]
    BAR20 = opt.get("bar20", 1)
    def odst(h, f):
        return vr(64 + 32 * (h - 1) + 4 * f, 4) if (SPEC and h <= 2) else ar(OB[h] + 4 * f, 4)
    slots = []
    WF = opt.get("wf", 1)
    order4 = [(c, tn) for c in range(24 if WF else 32) for tn in range(5)]
    if WF: order4 += [(c, tn) for tn in range(5) for c in range(24, 32)]
    for c, tn in order4:
        k = len(slots); fb = FR + 4 * (k % R)
        base = VB + c // 12; off = (c % 12) * 5120 + tn * 32
        rd = [f"ds_read_b64_tr_b16 {vr(fb,2)}, v{base} offset:{off}", f"ds_read_b64_tr_b16 {vr(fb+2,2)}, v{base} offset:{off+2560}"]
        mf = []
        for z in range(2):
            d = ACC + 4 * (z * 5 + tn)
            cc = "0" if c == 0 else vr(d, 4)
            b = vr(QF + 8 * c + 4 * z, 4) if c < 4 else odst(c // 4, (c & 3) * 2 + z)
            mf.append(f"v_mfma_f32_16x16x32_bf16 {vr(d,4)}, {vr(fb,4)}, {b}, {cc}")
        slots.append(dict(unit=min(c // 4, 6), reads=rd, mf=mf, gap=[[], []], c=c, tn=tn))
    N = len(slots)
    def put(gi, fn):
        slots[gi // 2]["gap"][gi & 1].append(fn if callable(fn) else (lambda s_=fn: e(s_)))
    def put_free(ops, g0):
        gi = g0
        for o in ops:
            while slots[gi // 2]["gap"][gi & 1] or (gi & 1 == 1 and (gi // 2) % 2 == 1): gi += 1
            put(gi, o); gi += 1
        return gi
    def check_flag(h):
        if opt.get("nochk", 0): return
        l1, l2 = newlab("p"), newlab("p")
        e(f"s_bitcmp1_b32 s{S_PM}, {h}")
        e(f"s_cbranch_scc1 {l2}")
        e("s_mov_b32 s38, 0")
        e.label(l1)
        e(f"buffer_load_dword v{T3}, v{VPO}, s[{SF}:{SF+3}], 0 offen sc1")
        e("s_add_u32 s38, s38, 1")
        e("s_waitcnt vmcnt(0)")
        e(f"v_cmp_eq_u32 vcc, v{T2}, v{T3}")
        e(f"s_mov_b32 s{S_PM}, vcc_lo")
        e(f"s_cmp_ge_u32 s38, {SPIN}")
        e(f"s_cbranch_scc1 {l2}")
        e(f"s_bitcmp1_b32 s{S_PM}, {h}")
        e(f"s_cbranch_scc0 {l1}")
        e.label(l2)
    ROLES, S_ROLE = g["ROLES"], g["S_ROLE"]
    def flag_store():
        wait_vm(["Ost"])
        flag_raw(); vm_add("flag")
        stamp()
    e("s_barrier")
    FS = opt.get("fs", 6); PS = opt.get("ps", 14)
    SOFF = list(range(64, 74)) + [76, 77, 39, 31]
    pre = [f"s_mul_i32 s8, s{S_W}, 5120", f"s_lshl_b32 s100, s{S_HI}, 2", f"s_add_u32 s100, s100, s{S_W}", f"s_add_u32 s8, s8, {16*5120}"]
    for gi in range(4):
        pre += [f"s_add_u32 s101, s100, {16+4*gi}", "s_and_b32 s101, s101, 31", f"s_mul_i32 s{16+gi}, s101, {32*1280}"]
    for s_ in pre[:7]: e(s_)
    rest = pre[7:]
    for h in range(1, 8):
        rest += [f"s_add_u32 s101, s{S_HI}, {h}", "s_and_b32 s101, s101, 7", f"s_lshl_b32 s{SOFF[2*(h-1)]}, s101, 15", f"s_add_u32 s{SOFF[2*(h-1)+1]}, s{SOFF[2*(h-1)]}, 4096"]
    put(2 * FS + 1, flag_store)
    def wload(gi, ee):
        def f():
            if opt.get("now", 0):
                vm_add(("W", gi)); return
            e(f"s_add_u32 m0, s8, {(gi-4)*20480 + (4096 if ee == 4 else 0)}")
            e(f"buffer_load_dwordx4 v{VWO[ee]}, s[{SWO}:{SWO+3}], s{16+gi-4} offen offset:{1024*ee if ee < 4 else 0}{WOF} lds"); vm_add(("W", gi))
        return f
    def oload(h, f):
        def fn():
            if opt.get("noo", 0):
                vm_add(("O", h, f // 2)); return
            e(f"buffer_load_dwordx4 {odst(h, f)}, v{VL16}, s[{SOG}:{SOG+3}], s{SOFF[2*(h-1)+(f>>2)]} offen offset:{(f&3)*1024}{opt.get('olflag', ' sc1')}"); vm_add(("O", h, f // 2))
        return fn
    wl = [(gi, ee) for gi in range(6, 8) for ee in range(5)]
    def poll_issue():
        e(f"buffer_load_dword v{T3}, v{VPO}, s[{SF}:{SF+3}], 0 offen sc1"); vm_add("poll")
    def poll_use():
        wait_vm(["poll"])
        e(f"v_cmp_eq_u32 vcc, v{T2}, v{T3}")
        e(f"s_mov_b32 s{S_PM}, vcc_lo")
    rest = rest[9:17] + rest[:9] + rest[17:]
    for i, o in enumerate(rest): put(i // 2 if i // 2 < 2 * FS + 1 else i // 2 + 1, o)
    if SPEC:
        SI = opt.get("si", 9)
        for i in range(16): put(2 * SI + i, oload(1 + i // 8, i % 8))
        def spec_check(h):
            def f():
                lr, lb = newlab("sr"), newlab("sb")
                wait_vm([("O", h, 3)])
                b = 64 + 32 * (h - 1)
                e(f"v_max3_u32 v{T0}, v{b}, v{b+4}, v{b+8}")
                e(f"v_max3_u32 v{T1}, v{b+12}, v{b+16}, v{b+20}")
                e(f"v_max3_u32 v{T0}, v{T0}, v{b+24}, v{b+28}")
                e(f"v_max_u32 v{T0}, v{T0}, v{T1}")
                e(f"v_cmp_eq_u32 vcc, -1, v{T0}")
                e(f"s_cmp_eq_u32 s{S_FAST}, 0")
                e(f"s_cbranch_scc1 {lr}")
                e("s_cmp_lg_u64 vcc, 0")
                e(f"s_cbranch_scc1 {lr}")
                e.label(lb)
                def blk():
                    e.label(lr)
                    e("s_waitcnt vmcnt(0)")
                    e(f"s_mov_b32 s{S_PM}, 0")
                    if opt.get("diag", 0): e(f"s_add_u32 s60, s60, 1")
                    check_flag(h)
                    for ff in range(8):
                        e(f"buffer_load_dwordx4 {odst(h, ff)}, v{VL16}, s[{SOG}:{SOG+3}], s{SOFF[2*(h-1)+(ff>>2)]} offen offset:{(ff&3)*1024} sc1")
                    e("s_waitcnt vmcnt(0)")
                    e(f"s_branch {lb}")
                rare.append(blk)
            return f
        pre_slot = {20: spec_check(1), 40: spec_check(2)}
        put(2 * PS, poll_issue)
        PU = opt.get("pu", 24)
        put(2 * PU, poll_use)
        seq = []
        o4 = opt.get("o4", 2 * PU + 4)
        wfirst = opt.get("wfirst", 5)
        for i in range(wfirst): put(2 * (PS + 1 + i) + 1, wload(*wl.pop(0)))
    else:
        nw0 = opt.get("nw0", 5); nw1 = opt.get("nw1", 5)
        for i in range(nw0): put(2 * (FS + 1 + i) + 1, wload(*wl.pop(0)))
        put(2 * PS, poll_issue)
        for i in range(nw1): put(2 * (PS + i) + 1, wload(*wl.pop(0)))
        def poll_take():
            poll_use()
            check_flag(1)
            for f in range(8): oload(1, f)()
            check_flag(2)
            for f in range(4): oload(2, f)()
            if BAR20:
                wait_vm([("W", 6), ("W", 7)])
                e("s_barrier")
            stamp()
        pre_slot = {20: poll_take}
        seq = [("o", 2, f) for f in range(4, 8)]
        o4 = opt.get("o4", 42)
    osp = opt.get("osp", 42)
    wafter = str(opt.get("wafter", "34"))
    for h in range(3, 8):
        seq += [("o", h, f) for f in range(8)]
        for ch in wafter:
            if int(ch) == h:
                for i in range(5):
                    if wl: seq.append(("w",) + wl.pop(0))
    assert not wl
    pos = o4 * 10
    for it in seq:
        gi = (pos // 10) & ~1
        if it[0] == "o":
            if it[2] == 0: put(gi - 2, lambda h=it[1]: check_flag(h))
            put(gi, oload(it[1], it[2])); pos += osp
        else:
            put(gi, wload(it[1], it[2])); pos += opt.get("wsp10", 60)
    lg = []; st = dict(rd=0, cur=-1, waited=-1)
    SOUT = 8
    HR = opt.get("hr", 15); UR = opt.get("ur", 8)
    xs = [f"s_lshl_b32 s100, s{S_B}, 2", f"s_add_u32 s100, s100, s{S_HG}", f"s_mul_i32 s100, s100, {32*1280}",
          f"s_mul_i32 s101, s{S_HI}, 160", "s_add_u32 s100, s100, s101", f"s_sub_u32 s101, {1024*1280}, s100",
          f"v_and_b32 v2, 15, v{V_L}", "v_mul_u32_u24 v2, 1280, v2", f"v_lshrrev_b32 v3, 4, v{V_L}", "v_lshl_add_u32 v2, v3, 3, v2",
          "v_mov_b32 v5, 0xfffcfffc", f"s_add_u32 s{S_T0}, s{S_PO}, 4096",
          "s_mov_b32 s36, 0x00020002", "s_mov_b32 s37, 0", "s_mov_b32 s26, 0", f"s_lshl_b32 s27, s{S_W}, 10", f"v_add_u32 v3, s27, v{VL16}"]
    gend = put_free(xs, 44)
    xs2 = [[f"s_add_u32 s{SOUT}, s74, s100", f"s_addc_u32 s{SOUT+1}, s75, 0"], f"s_mov_b32 s{SOUT+2}, s101", f"s_mov_b32 s{SOUT+3}, 0x20000"]
    xs2 += [f"s_bfe_u32 s{80+j}, s{S_TAG}, {0x20000 + 2*j}" for j in range(4)]
    for i in range(1, 4):
        xs2 += [f"s_add_u32 s100, s{S_HG}, {i}", "s_and_b32 s100, s100, 3", "s_lshl_b32 s100, s100, 2", f"s_add_u32 s100, s100, s{S_HG}",
                "s_mul_i32 s100, s100, 5120", f"s_add_u32 s{12+i}, s100, s27", f"s_add_u32 s{16+i}, s100, 4096"]
    xs2 += [f"s_lshl_b32 s12, s{S_W}, 5", f"s_add_u32 s16, s12, {16*1280}", f"s_movk_i32 s20, {16*1280}"]
    xs2 = [(lambda x=x: [e(s_) for s_ in x]) if isinstance(x, list) else x for x in xs2]
    gw = max([2 * k + hh for k in range(N) for hh in range(2) if any(getattr(f, "__name__", "") == "f" for f in slots[k]["gap"][hh])])
    gend2 = put_free(xs2, max(gend, gw + 1))
    assert gend2 <= 2 * 118, (gend, gend2)
    def scale_ops():
        ops = ["s_lshr_b32 s71, s71, 23", "s_max_u32 s71, s71, 1", "s_min_u32 s71, s71, 239",
               "s_sub_u32 s64, 254, s71", "s_lshl_b32 s64, s64, 23", f"s_add_u32 s65, s71, {HR}", "s_lshl_b32 s65, s65, 23",
               f"s_sub_i32 s66, s71, {UR}", "s_max_i32 s66, s66, 0", "s_lshl_b32 s66, s66, 23"]
        for j in range(4):
            ops += [f"s_bfe_u32 s72, s71, {0x20000 + 2*j}", "s_lshl_b32 s72, s72, 16", f"s_or_b32 s{67+j}, s72, s{80+j}"]
        return ops
    def amax_ops(tn, dst):
        a, b = ACC + 4 * tn, ACC + 20 + 4 * tn
        return [f"v_max3_f32 v{dst}, |v{a}|, |v{a+1}|, |v{a+2}|", f"v_max3_f32 v{dst}, v{dst}, |v{a+3}|, |v{b}|",
                f"v_max3_f32 v{dst}, v{dst}, |v{b+1}|, |v{b+2}|", f"v_max_f32_e64 v{dst}, v{dst}, |v{b+3}|"]
    assert WF
    so = amax_ops(1, T0) + [f"v_readlane_b32 s71, v{T0}, 0", f"v_readlane_b32 s72, v{T0}, 21", f"v_readlane_b32 s73, v{T0}, 42", f"v_readlane_b32 s100, v{T0}, 63",
                            "s_max_u32 s71, s71, s72", "s_max_u32 s73, s73, s100", "s_max_u32 s71, s71, s73"] + scale_ops()
    for i, o in enumerate(so): put(2 * 120 + 1 + i * 16 // len(so), o)
    def send_items(tn):
        lown, ljoin, lr, lb = newlab("x"), newlab("x"), newlab("xr"), newlab("xb")
        d = 200 + 4 * tn
        items = amax_ops(tn, T0)
        items += [f"v_cmp_le_f32 vcc, s65, v{T0}", f"v_cmp_le_f32 s[72:73], s66, v{T0}"]
        def chk():
            e("s_cmp_lg_u64 vcc, 0")
            e(f"s_cbranch_scc1 {lr}")
            e("s_cmp_eq_u64 s[72:73], 0")
            e(f"s_cbranch_scc1 {lr}")
            e.label(lb)
        items.append(chk)
        vals = [ACC + 4 * tn + i for i in range(4)] + [ACC + 20 + 4 * tn + i for i in range(4)]
        items += [f"v_fma_mixlo_f16 v{d+j}, v{vals[2*j]}, s64, 0" for j in range(4)]
        items += [f"v_fma_mixhi_f16 v{d+j}, v{vals[2*j+1]}, s64, 0" for j in range(4)]
        items += [f"v_and_or_b32 v{d+j}, v{d+j}, v5, s{67+j}" for j in range(4)]
        def fin():
            e(f"s_cmp_eq_u32 s{S_W}, s{S_HG}")
            e(f"s_cbranch_scc1 {lown}")
            e(f"buffer_store_dwordx4 {vr(d,4)}, v{VL16}, s[{SP}:{SP+3}], s{S_PO if tn < 4 else S_T0} offen offset:{(tn&3)*1024}{opt.get('psflag', ' sc1')}")
            if tn < 4:
                e(f"s_branch {ljoin}")
                e.label(lown)
                for tau in (tn, 5 + tn):
                    e(f"ds_write_b128 v{VL16}, {vr(ACC+4*tau,4)} offset:{tau*1024}")
                e.label(ljoin)
            else:
                e.label(lown)
        items.append(fin)
        def blk():
            e.label(lr)
            e(f"v_mov_b32 v{T1}, v{T0}"); e("s_nop 1"); e(f"v_permlane32_swap_b32 v{T1}, v{T0}"); e(f"v_max_f32 v{T0}, v{T0}, v{T1}")
            e(f"v_mov_b32 v{T1}, v{T0}"); e("s_nop 1"); e(f"v_permlane16_swap_b32 v{T1}, v{T0}"); e(f"v_max_f32 v{T0}, v{T0}, v{T1}")
            for r in (8, 4, 2, 1):
                e(f"v_max_f32_dpp v{T0}, v{T0}, v{T0} row_ror:{r} row_mask:0xf bank_mask:0xf")
            e(f"v_readfirstlane_b32 s71, v{T0}")
            for o in scale_ops(): e(o)
            e(f"s_branch {lb}")
        rare.append(blk)
        return items
    if opt.get("cln", 0):
        SO_ = g["SO"]
        def cl(i):
            def f2():
                lc = newlab("c")
                if opt["cln"] == 1:
                    e(f"s_cmp_lg_u32 s{S_ROLE}, 0"); e(f"s_cbranch_scc1 {lc}")
                e(f"s_movk_i32 s101, {(i>>2)*4096}")
                e(f"buffer_store_dwordx4 {vr(QF+4*i,4)}, v{VL16}, s[{SO2_}:{SO2_+3}], s101 offen offset:{(i&3)*1024} sc1")
                e.label(lc)
            return f2
        SO2_ = 56
        slots[21]["gap"][1].append(lambda: [e(f"s_mov_b32 s{56+i}, s{SO_+i}") for i in range(4)])
        c0 = opt.get("cln0", 129)
        for i in range(8): slots[c0 + i * opt.get("clnsp", 2)]["gap"][0].append(cl(i))
    def send(tn):
        for it in send_items(tn):
            if callable(it): it()
            else: e(it)
    for tn in range(4):
        its = send_items(tn)
        g0 = 2 * (120 + 8 * (tn + 1)) + 2
        for i, it in enumerate(its): put(g0 + i * 14 // len(its), it)
    def issue_reads(upto):
        while st["rd"] <= upto and st["rd"] < N:
            s = slots[st["rd"]]
            if s["unit"] != st["cur"]:
                st["cur"] = s["unit"]
                if st["cur"] == 4 and not opt.get("onebar", 0) and not BAR20:
                    e("s_barrier")
                if st["cur"] == (4 if opt.get("onebar", 0) else 6) and not BAR20:
                    wait_vm([("W", 6), ("W", 7)])
                    e("s_barrier")
            for r in s["reads"]:
                if pend is not None and r is s["reads"][1]: pend.append((r, st["rd"]))
                else:
                    e(r); lg.append(st["rd"])
            st["rd"] += 1
    pend = None
    issue_reads(LA - 1)
    for k in range(N):
        if k in pre_slot: pre_slot[k]()
        if slots[k]["tn"] == 0 and k >= (60 if SPEC else 20):
            wait_vm([("O", slots[k]["c"] // 4, slots[k]["c"] & 3)])
            if k % 20 == 0 and k <= 120 and (opt.get("diag", 0) == 3 or (opt.get("diag", 0) == 4 and k <= 60)): stamp()
        if k > st["waited"]:
            kk = k + 1 if (k + 1 < st["rd"]) else k
            idx = max(i for i, t in enumerate(lg) if t == kk)
            e(f"s_waitcnt lgkmcnt({min(15, len(lg)-1-idx)})")
            st["waited"] = kk
        e(slots[k]["mf"][0])
        pend = []
        issue_reads(k + LA)
        for fn in slots[k]["gap"][0]: fn()
        e(slots[k]["mf"][1])
        for r, t in pend:
            e(r); lg.append(t)
        for fn in slots[k]["gap"][1]: fn()
    stamp()
    send(4)
    def wbl2():
        lw = newlab("wb")
        e("s_lshr_b32 s100, s2, 3"); e(f"s_or_b32 s100, s100, s{S_W}"); e(f"s_cmp_eq_u32 s100, {opt.get('wbr', 0)}"); e(f"s_cbranch_scc0 {lw}")
        e("buffer_wbl2 sc1")
        e.label(lw)
    if opt.get("wb", 0) == 1: wbl2()
    stamp()
    l1, l2 = newlab("q"), newlab("q")
    e.label(l1)
    for i in range(3):
        ls = newlab("q")
        e(f"s_bitcmp1_b32 s26, {i}")
        e(f"s_cbranch_scc1 {ls}")
        e(f"buffer_load_dwordx4 {vr(32+8*i,4)}, v{VL16}, s[{SP}:{SP+3}], s{13+i} offen sc1")
        e(f"s_cmp_lg_u32 s{S_W}, s{S_HG}"); e(f"s_cbranch_scc1 {ls}")
        e(f"buffer_load_dwordx4 {vr(36+8*i,4)}, v{VL16}, s[{SP}:{SP+3}], s{17+i} offen sc1")
        e.label(ls)
    e("s_add_u32 s37, s37, 1")
    lfirst = newlab("q")
    e("s_cmp_lg_u32 s37, 1")
    e(f"s_cbranch_scc1 {lfirst}")
    e("s_waitcnt lgkmcnt(0)")
    e("s_barrier")
    e(f"ds_read_b128 v[64:67], v3")
    e(f"ds_read_b128 v[68:71], v3 offset:5120")
    e.label(lfirst)
    e("s_waitcnt vmcnt(0)")
    for i in range(3):
        ls, lt = newlab("q"), newlab("q")
        b = 32 + 8 * i
        e(f"s_bitcmp1_b32 s26, {i}")
        e(f"s_cbranch_scc1 {ls}")
        e(f"v_xor_b32 v4, s80, v{b}")
        for jj in range(1, 4): e(f"v_bitop3_b32 v4, v4, v{b+jj}, s{80+jj} bitop3:0xf6")
        e(f"s_cmp_lg_u32 s{S_W}, s{S_HG}"); e(f"s_cbranch_scc1 {lt}")
        for jj in range(4): e(f"v_bitop3_b32 v4, v4, v{b+4+jj}, s{80+jj} bitop3:0xf6")
        e.label(lt)
        e("v_and_b32 v4, 3, v4")
        e("v_cmp_ne_u32 vcc, 0, v4")
        e("s_cmp_lg_u64 vcc, 0")
        e(f"s_cbranch_scc1 {ls}")
        e(f"s_bitset1_b32 s26, {i}")
        e.label(ls)
    if opt.get("nox", 0): e("s_mov_b32 s26, 7")
    e("s_cmp_eq_u32 s26, 7")
    e(f"s_cbranch_scc1 {l2}")
    e(f"s_cmp_lt_u32 s37, {SPIN}")
    e(f"s_cbranch_scc1 {l1}")
    e.label(l2)
    stamp()
    def decode(off, acc, so0, so1, imm):
        for i in range(3):
            b = 32 + 8 * i + off
            for jj in range(4): e(f"v_readfirstlane_b32 s{64+4*i+jj}, v{b+jj}")
        for i in range(3):
            b = 32 + 8 * i + off
            for jj in range(4): e(f"v_and_or_b32 v{b+jj}, v{b+jj}, v5, s36")
            for jj in range(4): e(f"s_bfe_u32 s{64+4*i+jj}, s{64+4*i+jj}, 0x20010")
            e(f"s_lshl2_add_u32 s{64+4*i+2}, s{64+4*i+3}, s{64+4*i+2}")
            e(f"s_lshl2_add_u32 s{64+4*i+1}, s{64+4*i+2}, s{64+4*i+1}")
            e(f"s_lshl2_add_u32 s{64+4*i}, s{64+4*i+1}, s{64+4*i}")
            e(f"s_lshl_b32 s{64+4*i}, s{64+4*i}, 23")
        e("s_waitcnt lgkmcnt(0)")
        for i in range(3):
            b = 32 + 8 * i + off
            for v_ in range(8):
                e(f"v_fma_mix_f32 v{acc[v_]}, v{b+v_//2}, s{64+4*i}, v{acc[v_]} op_sel:[{v_&1},0,0] op_sel_hi:[1,0,0]")
        for z in range(2):
            e(f"v_cvt_pk_bf16_f32 v{80+off+2*z}, v{acc[4*z]}, v{acc[4*z+1]}")
            e(f"v_cvt_pk_bf16_f32 v{81+off+2*z}, v{acc[4*z+2]}, v{acc[4*z+3]}")
            e(f"buffer_store_dwordx2 {vr(80+off+2*z,2)}, v2, s[{SOUT}:{SOUT+3}], {[so0, so1][z]} offen offset:{imm}{opt.get('outflag', '')}")
    ldone = newlab("r")
    decode(0, list(range(64, 72)), "s12", "s16", 0)
    e(f"s_cmp_lg_u32 s{S_W}, s{S_HG}"); e(f"s_cbranch_scc1 {ldone}")
    decode(4, [ACC + 16 + i for i in range(4)] + [ACC + 36 + i for i in range(4)], "0", "s20", 128)
    e.label(ldone)
    if opt.get("wb", 0) == 2: wbl2()

if __name__ == "__main__":
    out = sys.argv[1]
    opt = {}
    for a in sys.argv[2:]:
        k, v = a.split("=")
        if k not in ("kmix", "wpl", "wsp", "wspa", "wspb", "wafter", "pfu", "pfa", "kmixb", "pairb", "dla", "dlb"):
            try: v = int(v)
            except:
                try: v = float(v)
                except: pass
        if k.endswith("flag"): v = (" " + v.replace("+", " ")) if v not in ("none", 0) else ""
        opt[k] = v
    open(out, "w").write(gen(opt))
```

```python
import sys, math
sys.path.insert(0, "gen")
from asmlib import *
NAME = "standalone__gqa_block_cached__near_ridge"
WS_O = 0
WS_P = 16 << 20
WS_F = 28 << 20
WS_DIAG = 32 << 20
SCALE = math.log2(math.e) / math.sqrt(128.0)
SPIN = 0x40000
NONCE_OFF = 256 * 1024

def cost(s):
    if not isinstance(s, str): return s.cost
    op = s.split()[0]
    if op in ("v_exp_f32", "v_rcp_f32"): return 8
    if op.startswith("v_mfma"): return 8
    return 4

class Act:
    def __init__(self, fn, cost): self.fn = fn; self.cost = cost

def gen(opt):
    e = Asm()
    kname = NAME + "_kernel"
    TICK = opt.get("tick", 0)
    if TICK:
        e.raw("; @launch kernel=tick0_kernel grid=(1,1,1) block=(64,1,1) lds=0")
        e.raw(f"; @launch kernel={kname} grid=(256,1,1) block=(256,1,1) lds=163840")
        e.raw("; @launch kernel=tick1_kernel grid=(1,1,1) block=(64,1,1) lds=0")
    else:
        e.raw("; @launch grid=(256,1,1) block=(256,1,1) lds=163840")
    e.raw('.amdgcn_target "amdgcn-amd-amdhsa--gfx950"')
    e.raw(".text")
    kernel_header(e, kname)
    LA = opt.get("LA", 6)
    D = opt.get("d", 3)
    KVF = opt.get("kvflag", " nt")
    XWF = opt.get("xwflag", "")
    WOF = opt.get("woflag", "")
    diag = opt.get("diag", 0)
    FORCE_SLOW = opt.get("slow", 0)
    STOP = opt.get("stop", 0)
    PAIRW = opt.get("pairw", 1)
    ROLES = opt.get("roles", 1)
    NST = opt.get("nst", 0) if ROLES else 0
    S_ROLE = 62
    AKV = 68
    lab = [0]
    def newlab(p):
        lab[0] += 1
        return f"L_{p}{lab[0]}"
    nstamp = [0]
    def stamp():
        if not diag or diag == 9: return
        if diag == 7:
            k = nstamp[0]; nstamp[0] += 1
            if k in (2, 3, 11, 14, 15, 18):
                e("s_memrealtime s[92:93]"); e("s_waitcnt lgkmcnt(0)"); e(f"s_sub_u32 s{40+k}, s92, s94")
            return
        k = nstamp[0]; nstamp[0] += 1
        assert k < 21
        e("s_memtime s[92:93]")
        e("s_waitcnt lgkmcnt(0)")
        e(f"s_mov_b32 s{40+k}, s92")
    S_W, S_B, S_HG, S_HI, S_H = 3, 4, 5, 6, 7
    SX, SW, SK, SV, SO = 8, 12, 16, 20, 24
    S_W4K, S_T0, S_T1, S_SO, S_C = 28, 29, 30, 31, 32
    S_PO, S_KT, S_FAST, S_SX, S_SW2 = 33, 34, 35, 36, 37
    S_WL, S_WG = 38, 39
    SWO, SOG, SF, SP = 80, 84, 88, 96
    SD = SOG
    VK, VV, VAX, VBW, VAK = 2, 6, 7, 8, 9
    VL16, VDB = 10, 11
    RA = 12
    VM, VMC, VAL = 20, 21, 22
    VWO = [0, 1, 23, 7, 29]
    V_L, T0, T1, T2, T3 = 24, 25, 26, 27, 28
    T4 = 29
    VZ, VPO = 30, 31
    S_TAG = 63
    QF = 32
    Oacc, Sreg = 64, 128
    VX, VW = 128, 132
    R = LA + 2
    AF = 0; XF = 4 * R; XR = 3
    ONES = 116; LACC = 120
    LM = opt.get('lm', 1)
    PA = opt.get('pa', 1)
    RK, RV = 12, 52
    assert XF + 4 * XR <= 44
    AWO = 64
    SPEC = opt.get('spec', 0)
    SO2 = 56
    assert not (SPEC and diag and diag != 9) or opt.get('fewstamps', 0)
    KOFF = opt.get('koff', 0)
    AQ = 32; NEGM = 32; LS = 48; S_RS = 61
    THR = opt.get('thr', 8.0)
    rare = []
    assert R == 8

    e("s_cmp_ge_u32 s2, 256")
    e("s_cbranch_scc1 L_done")
    if diag or opt.get("pad", 0): e("s_memrealtime s[94:95]")
    if diag: e("s_mov_b32 s60, 0")
    e("s_load_dwordx16 s[64:79], s[0:1], 0")
    if opt.get("pf", 1):
        e("s_getpc_b64 s[100:101]")
        e("s_and_b32 s100, s100, 0xffffff00")
        e("s_lshr_b32 s99, s2, 3")
        e("s_lshl_b32 s99, s99, 10")
        e("v_and_b32 v3, 63, v0")
        e("v_lshlrev_b32 v3, 4, v3")
        e("v_lshrrev_b32 v4, 6, v0")
        e("v_lshl_add_u32 v3, v4, 15, v3")
        e("v_add_u32 v3, s99, v3")
        e(f"v_min_u32 v3, (L_done-{kname}-16)&0xfffffff0, v3")
        e("v_mov_b32 v5, s101")
        e("v_add_co_u32 v4, vcc, s100, v3")
        e("v_addc_co_u32 v5, vcc, 0, v5, vcc")
        e("global_load_dwordx4 a[252:255], v[4:5], off")
    e("v_lshrrev_b32 v1, 6, v0")
    e(f"v_and_b32 v{V_L}, 63, v0")
    e(f"v_readfirstlane_b32 s{S_W}, v1")
    e("s_and_b32 s100, s2, 1")
    e("s_lshl_b32 s100, s100, 2")
    e("s_bfe_u32 s101, s2, 0x20003")
    e(f"s_add_u32 s{S_B}, s100, s101")
    e(f"s_bfe_u32 s{S_HG}, s2, 0x20001")
    e(f"s_lshr_b32 s{S_HI}, s2, 5")
    e(f"s_lshl_b32 s{S_H}, s{S_HG}, 3")
    e(f"s_add_u32 s{S_H}, s{S_H}, s{S_HI}")
    if opt.get("homo", 1): e(f"s_mov_b32 s{S_ROLE}, s101")
    else: e(f"s_add_u32 s{S_ROLE}, s101, s{S_HI}")
    e(f"s_and_b32 s{S_ROLE}, s{S_ROLE}, {1 if ROLES else 0}")
    e("s_lshl_b32 s100, s101, 2")
    e(f"s_lshr_b32 s{S_KT}, 0x8530, s100")
    e(f"s_and_b32 s{S_KT}, s{S_KT}, 15")
    e(f"s_add_u32 s{S_KT}, s{S_KT}, s{S_HI}")
    e(f"s_cmp_ge_u32 s{S_KT}, 10")
    e("s_cselect_b32 s100, 10, 0")
    e(f"s_sub_u32 s{S_KT}, s{S_KT}, s100")
    XPF = opt.get("xpf", 1) and ROLES
    NBL = opt.get("nbl", 2)
    if XPF and not opt.get("arot", 0): e(f"s_mov_b32 s{S_KT}, 0")
    e(f"s_lshl_b32 s{S_W4K}, s{S_W}, 12")
    e(f"v_lshrrev_b32 v{T0}, 4, v{V_L}")
    e(f"v_and_b32 v{T1}, 15, v{V_L}")
    e(f"v_lshrrev_b32 v{T2}, 3, v{V_L}")
    e(f"s_lshl_b32 s{S_T0}, s{S_W}, 5")
    e(f"v_add_u32 v{T2}, s{S_T0}, v{T2}")
    e(f"v_mul_u32_u24 v{T2}, 1280, v{T2}")
    e(f"v_and_b32 v{T3}, 7, v{V_L}")
    e(f"v_xor_b32 v{T4}, v{T0}, v{T3}")
    e(f"v_lshl_add_u32 v{VX}, v{T4}, 4, v{T2}")
    e(f"v_add_u32 v{VX+2}, {2*9216}, v{VX}")
    e(f"v_xor_b32 v{T4}, 64, v{VX}")
    e(f"v_add_u32 v{VX+1}, 9216, v{T4}")
    e(f"v_add_u32 v{VX+3}, {3*9216}, v{T4}")
    e(f"v_lshlrev_b32 v{T2}, 2, v{T0}")
    e(f"v_xor_b32 v{T2}, v{T2}, v{T1}")
    e(f"v_lshlrev_b32 v{T2}, 4, v{T2}")
    e(f"s_lshl_b32 s{S_T0}, s{S_W}, 17")
    e(f"v_lshl_add_u32 v{VW}, v{T0}, 13, s{S_T0}")
    e(f"v_add_u32 v{VW}, v{VW}, v{T2}")
    for jj in range(1, 4):
        e(f"v_add_u32 v{VW+jj}, {jj*(32768-1024)}, v{VW}")
    e(f"v_lshl_add_u32 v{T3}, v{T0}, 8, s{S_W4K}")
    e(f"v_add_u32 v{VV}, v{T2}, v{T3}")
    e("s_waitcnt lgkmcnt(0)")
    e(f"s_mul_i32 s{S_T0}, s{S_B}, 163840")
    srd(e, SX, 64, 65, S_T0, 163840)
    e(f"s_lshl_b32 s{S_T0}, s{S_H}, 8")
    e(f"s_sub_u32 s{S_T1}, {640*8192}, s{S_T0}")
    srd(e, SW, 70, 71, S_T0, f"s{S_T1}")
    stamp()
    vmbox = [[]]
    def vm_add(tag, roles=None): vmbox[0].append(tag)
    def wait_vm(tags):
        vm = vmbox[0]
        idx = max(i for i, t in enumerate(vm) if t in tags)
        e(f"s_waitcnt vmcnt({min(63, len(vm) - 1 - idx)})")
    slot_of = {}
    for j in range(10):
        slot_of[("x", j)] = j % 3
        slot_of[("w", j)] = [3, 4, 8][j % 3]
    kvt = [("k",0),("k",1),("k",2),("k",3),("v",0),("v",1),("k",4),("k",5),("v",2),("v",3),("k",6),("k",7),("v",4),("v",5),("v",6),("v",7)]
    for i, t in enumerate(kvt): slot_of[t] = 5 + (i + 4) % 5
    assert D == 3 and NST <= 3
    def dma_ops(t):
        kind, j = t
        so = slot_of[t] * 16384
        out = []
        for jj in range(4):
            g = []
            if jj == 0:
                g.append(f"s_add_u32 m0, s{S_W4K}, {so}")
                if kind == "x":
                    g += [f"s_lshl_b32 s{S_SX}, s{S_KT}, 7", f"s_lshl_b32 s{S_SW2}, s{S_KT}, 19", f"s_add_u32 s{S_KT}, s{S_KT}, 1",
                          f"s_cmp_ge_u32 s{S_KT}, 10", f"s_cselect_b32 s{S_KT}, 0, s{S_KT}"]
                elif kind in "kv":
                    g.append(f"s_mov_b32 s{S_SO}, {16384*j}")
            elif kind in "kv" and True:
                g.append(f"s_add_u32 m0, s{S_W4K}, {so}")
            if kind == "x":
                g.append(f"buffer_load_dwordx4 v{VX+jj}, s[{SX}:{SX+3}], s{S_SX} offen offset:{1024*jj}{XWF} lds")
            elif kind == "w":
                g.append(f"buffer_load_dwordx4 v{VW+jj}, s[{SW}:{SW+3}], s{S_SW2} offen offset:{1024*jj}{XWF} lds")
            elif kind == "k":
                g.append(f"buffer_load_dwordx4 v{VK+jj}, s[{SK}:{SK+3}], s{S_SO} offen offset:{1024*jj}{KVF} lds")
            else:
                g.append(f"buffer_load_dwordx4 v{VV}, s[{SV}:{SV+3}], s{S_SO} offen offset:{1024*jj}{opt.get('vflag', KVF)} lds")
            out.append(g)
        return out
    def emit_group(g, tag, roles="AB"):
        for s in g: e(s)
        vm_add(tag, roles)
    def kv_setup():
        for jj in range(4):
            e(f"v_add_u32 v{T2}, {4*jj}, v{T0}")
            e(f"v_xor_b32 v{T2}, v{T2}, v{T1}")
            e(f"v_lshl_add_u32 v{VK+jj}, v{T2}, 4, v{T3}")
        e(f"s_lshl_b32 s{S_T1}, s{S_B}, 5")
        e(f"s_add_u32 s{S_T1}, s{S_T1}, s{S_H}")
        e(f"s_lshl_b32 s{S_T0}, s{S_T1}, 17")
        srd(e, SK, 66, 67, S_T0, 131072)
        srd(e, SV, 68, 69, S_T0, 131072)
    def burst():
        for n in range(NBL):
            for g in dma_ops(kvt[n]): emit_group(g, kvt[n])
        for n in range(4, 4 + NST):
            kind, j = kvt[n]
            e(f"s_mov_b32 s{S_SO}, {16384*j}")
            for jj in range(4):
                vo, sr_ = (VK + jj, SK) if kind == "k" else (VV, SV)
                e(f"buffer_load_dwordx4 {ar(AKV+16*(n-4)+4*jj,4)}, v{vo}, s[{sr_}:{sr_+3}], s{S_SO} offen offset:{1024*jj}{KVF}"); vm_add(kvt[n])
    vmB_pre = []
    if XPF:
        e(f"s_cmp_eq_u32 s{S_ROLE}, 0")
        e("s_cbranch_scc1 L_noxpf")
        e(f"s_lshl_b32 s100, s{S_HI}, 1"); e("s_bfe_u32 s101, s2, 0x10004"); e("s_add_u32 s100, s100, s101")
        e(f"s_lshl_b32 s100, s100, 2"); e(f"s_add_u32 s100, s100, s{S_W}")
        e(f"s_lshl_b32 s101, s100, 13")
        e(f"v_lshl_add_u32 v140, v{V_L}, 4, s101")
        XA = opt.get("xa", 1)
        if XA:
            e("s_lshr_b32 s101, s100, 5"); e(f"s_mul_i32 s101, s101, {2*163840}")
            e("s_and_b32 s100, s100, 31"); e("s_mul_i32 s100, s100, 5120"); e("s_add_u32 s101, s101, s100")
            e(f"v_mul_u32_u24 v141, 1280, v{T0}"); e(f"v_lshl_add_u32 v141, v{T1}, 4, v141"); e("v_add_u32 v141, s101, v141")
            if XA == 1:
                e(f"s_add_u32 s{S_KT}, s{S_HI}, 0");
        else:
            e("s_mul_i32 s101, s100, 10240")
            e(f"v_lshrrev_b32 v141, 3, v{V_L}"); e("v_mul_u32_u24 v141, 1280, v141")
            e(f"v_and_b32 v142, 7, v{V_L}"); e("v_lshl_add_u32 v141, v142, 4, v141"); e("v_add_u32 v141, s101, v141")
        e("s_and_b32 s100, s2, 1"); e(f"s_mul_i32 s100, s100, {4*163840}")
        srd(e, SK, 64, 65, 100, 4 * 163840)
        e(f"s_lshl_b32 s100, s{S_HG}, 11"); e(f"s_sub_u32 s101, {640*8192}, s100")
        srd(e, SV, 70, 71, 100, "s101")
        for j in range(opt.get("xsk", 0), opt.get("nxpf", 10)):
            e(f"s_movk_i32 s100, {128*j}"); e(f"s_mov_b32 s101, {524288*j}")
            e(f"buffer_load_dwordx4 a[248:251], v140, s[{SV}:{SV+3}], s101 offen{XWF}")
            if not XA or j % 2 == 0: e(f"buffer_load_dwordx4 a[248:251], v141, s[{SK}:{SK+3}], s100 offen{XWF}")
            e(f"buffer_load_dwordx4 a[248:251], v140, s[{SV}:{SV+3}], s101 offen offset:1024{XWF}")
        if opt.get("bpos", -1) < 0:
            kv_setup()
            burst()
        vmB_pre = list(vmbox[0]); vmbox[0] = []
        e.label("L_noxpf")
    ini = [dma_ops(("x", 0)), dma_ops(("w", 0)), dma_ops(("x", 1)), dma_ops(("w", 1))]
    for i, t in enumerate((("x", 0), ("w", 0), ("x", 1))):
        for g in ini[i]: emit_group(g, t)
    stamp()
    kv_setup()
    e(f"s_mul_i32 s{S_T0}, s{S_HG}, {1024*1280}")
    if opt.get("pfb", 4) == 5:
        e("s_lshr_b32 s100, s2, 3"); e(f"s_lshl_b32 s100, s100, 2"); e(f"s_add_u32 s100, s100, s{S_W}"); e("s_mul_i32 s100, s100, 10240")
    else:
        e(f"s_lshl_b32 s100, s{S_HI}, 1"); e("s_bfe_u32 s101, s2, 0x10004"); e("s_add_u32 s100, s100, s101")
        e(f"s_lshl_b32 s100, s100, 2"); e(f"s_add_u32 s100, s100, s{S_W}"); e("s_mul_i32 s100, s100, 20480")
    e(f"s_add_u32 s{S_T0}, s{S_T0}, s100")
    srd(e, SO, 72, 73, S_T0, 20480)
    srd(e, SD, 76, 77, None, 256)
    if SPEC or opt.get("ofa", 0) or opt.get("ofb", 0):
        e(f"s_lshl_b32 s100, s{S_B}, 5"); e(f"s_add_u32 s100, s100, s{S_H}"); e("s_lshl_b32 s100, s100, 2"); e(f"s_add_u32 s100, s100, s{S_W}"); e("s_lshl_b32 s100, s100, 13")
        srd(e, SO2, 78, 79, 100, 8192)
    e(f"s_mul_i32 s{S_T0}, s{S_HG}, {1024*1280}")
    e(f"s_mul_i32 s{S_T1}, s{S_HI}, 160")
    e(f"s_add_u32 s{S_T0}, s{S_T0}, s{S_T1}")
    e(f"s_sub_u32 s{S_T1}, {4096*1280}, s{S_T0}")
    srd(e, SWO, 72, 73, S_T0, f"s{S_T1}")
    e(f"s_mov_b32 s{S_T0}, {WS_F}")
    srd(e, SF, 78, 79, S_T0, 256 * 1024 + 128)
    e(f"s_lshl_b32 s{S_T0}, s{S_B}, 3"); e(f"s_add_u32 s{S_T0}, s{S_T0}, s{S_HI}")
    e(f"s_mul_i32 s{S_T0}, s{S_T0}, 81920"); e(f"s_add_u32 s{S_T0}, s{S_T0}, {WS_P}")
    srd(e, SP, 78, 79, S_T0, 81920)
    e(f"s_lshl_b32 s{S_PO}, s{S_HG}, 2"); e(f"s_add_u32 s{S_PO}, s{S_PO}, s{S_W}"); e(f"s_mul_i32 s{S_PO}, s{S_PO}, 5120")

    e(f"v_and_b32 v{T0}, 31, v{V_L}")
    e(f"v_lshrrev_b32 v{T1}, 5, v{V_L}")
    e(f"v_bfe_u32 v{T2}, v{V_L}, 1, 3")
    e(f"v_xor_b32 v{T2}, v{T2}, v{T1}")
    e(f"v_lshlrev_b32 v{T2}, 4, v{T2}")
    e(f"v_lshl_add_u32 v{T3}, v{T0}, 7, s{S_W4K}")
    e(f"v_add_u32 v{VAX}, v{T2}, v{T3}")
    e(f"v_and_b32 v{T2}, 19, v{T0}")
    e(f"v_bfe_u32 v{T3}, v{T0}, 2, 1")
    e(f"v_lshl_or_b32 v{T2}, v{T3}, 3, v{T2}")
    e(f"v_bfe_u32 v{T3}, v{T0}, 3, 1")
    e(f"v_lshl_or_b32 v{T2}, v{T3}, 2, v{T2}")
    e(f"v_and_b32 v{T3}, 15, v{T2}")
    e(f"v_xor_b32 v{T3}, v{T3}, v{T1}")
    e(f"v_lshlrev_b32 v{T3}, 4, v{T3}")
    e(f"v_lshl_add_u32 v{VAK}, v{T2}, 8, v{T3}")
    e(f"v_bfe_u32 v{T2}, v{V_L}, 2, 2")
    e(f"v_mul_u32_u24 v{T2}, 320, v{T2}")
    e(f"v_lshl_add_u32 v{T2}, v{T1}, 11, v{T2}")
    e(f"v_bfe_u32 v{T3}, v{V_L}, 4, 1")
    e(f"v_lshl_add_u32 v{T2}, v{T3}, 5, v{T2}")
    e(f"v_and_b32 v{T3}, 1, v{V_L}")
    e(f"v_lshl_add_u32 v{T2}, v{T3}, 4, v{T2}")
    e(f"v_bfe_u32 v{T3}, v{V_L}, 1, 1")
    e(f"v_lshl_add_u32 v{VBW}, v{T3}, 3, v{T2}")
    e(f"v_lshlrev_b32 v{VL16}, 4, v{V_L}")
    e(f"s_mov_b32 s{S_C}, {f32bits(SCALE)}")
    for g in ini[3]: emit_group(g, ("w", 1))
    e(f"s_mov_b32 s100, {NONCE_OFF}")
    e(f"buffer_load_dword v{VDB}, off, s[{SF}:{SF+3}], s100 sc1"); vm_add("oldn")
    e("v_or_b32 v1, s2, v0")
    e(f"v_mov_b32 v{T0}, 0x7fffffff")
    e("v_cmp_eq_u32 vcc, 0, v1")
    e(f"v_cndmask_b32 v{VZ}, v{T0}, 0, vcc")
    e(f"v_and_b32 v{T0}, 7, v{V_L}")
    e("s_and_b32 s100, s2, 31"); e("s_lshl_b32 s100, s100, 10")
    e(f"v_lshl_add_u32 v{VPO}, v{T0}, 15, s100")
    for ee in range(5):
        e(f"v_add_u32 v{T0}, {64*ee}, v{V_L}")
        e(f"v_mul_u32_u24 v{T1}, 6554, v{T0}")
        e(f"v_lshrrev_b32 v{T1}, 16, v{T1}")
        e(f"v_mul_u32_u24 v{T2}, 10, v{T1}")
        e(f"v_sub_u32 v{T2}, v{T0}, v{T2}")
        e(f"v_mul_u32_u24 v{T1}, 1280, v{T1}")
        if ee == 3:
            e(f"v_lshl_add_u32 v{T1}, v{T2}, 4, v{T1}")
            e(f"v_subrev_u32 v{T1}, {1024*ee}, v{T1}")
            e(f"v_accvgpr_write_b32 a{AWO}, v{T1}")
        elif 0 < ee < 4:
            e(f"v_lshl_add_u32 v{T1}, v{T2}, 4, v{T1}")
            e(f"v_subrev_u32 v{VWO[ee]}, {1024*ee}, v{T1}")
        else:
            e(f"v_lshl_add_u32 v{VWO[ee]}, v{T2}, 4, v{T1}")

    def attention(role):
        slots = []
        def add_slot(unit, reads, mf, tag=None):
            slots.append(dict(unit=unit, reads=reads, mf=mf, fill=[], fill2=[], dma=[], post=[], tag=tag))
        ring = [0]
        def newbuf():
            b = AF + 4 * (ring[0] % R); ring[0] += 1
            return b
        for j in range(10):
            for s in range(4):
                xi = (j * 4 + s) % XR
                for t in range(4):
                    ab = newbuf()
                    rd = []
                    if t == 0: rd.append(f"ds_read_b128 {ar(XF+4*xi,4)}, v{RA+4+s}")
                    rd.append(f"ds_read_b64_tr_b16 {ar(ab,2)}, v{RA+t} offset:{s*4096}")
                    rd.append(f"ds_read_b64_tr_b16 {ar(ab+2,2)}, v{RA+t} offset:{s*4096+1024}")
                    c = "0" if (j == 0 and s == 0) else vr(Oacc+16*t, 16)
                    add_slot(("s", j), rd, f"v_mfma_f32_32x32x16_bf16 {vr(Oacc+16*t,16)}, {ar(ab,4)}, {ar(XF+4*xi,4)}, {c}")
        def sbuf(q): return Sreg + 64 * (q & 1)
        def frag_ops(q, f):
            b = sbuf(q) + 8 * f
            ops = [f"v_add_f32 v{b+i}, v{b+i}, v{NEGM}" for i in range(8)] if q == 0 else []
            ops += [f"v_exp_f32 v{b+i}, v{b+i}" for i in range(8)]
            if LM: pass
            elif q == 0 and f == 0:
                ops += [f"v_add_f32 v{LS+i}, v{b+i}, v{b+4+i}" for i in range(4)]
            else:
                ops += [f"v_add_f32 v{LS+(i&3)}, v{LS+(i&3)}, v{b+i}" for i in range(8)]
            ops += [f"v_cvt_pk_bf16_f32 v{b+i}, v{b+2*i}, v{b+2*i+1}" for i in range(4)]
            return ops
        def max_ops(q, sg):
            b = sbuf(q) + 16 * sg
            ops = []
            for i in range(8):
                if sg == 0 and i == 0:
                    ops.append(f"v_max_f32 v{VM}, v{b}, v{b+1}")
                else:
                    ops.append(f"v_max3_f32 v{VM}, v{VM}, v{b+2*i}, v{b+2*i+1}")
            return ops
        def check1(q):
            def f():
                lr, lb = newlab("rr"), newlab("rb")
                e(f"v_cmp_lt_f32 vcc, {f32bits(float(THR))}, v{VM}")
                e("s_cmp_lg_u64 vcc, 0")
                e(f"s_cbranch_scc1 {lr}")
                e.label(lb)
                def blk():
                    e.label(lr)
                    e(f"v_mov_b32 v{T0}, v{VM}")
                    e("s_nop 1")
                    e(f"v_permlane32_swap_b32 v{T0}, v{VM}")
                    e(f"v_max3_f32 v{VM}, v{T0}, v{VM}, 0")
                    e(f"v_exp_f32 v{VAL}, -v{VM}")
                    for i in range(64): e(f"v_sub_f32 v{sbuf(q)+i}, v{sbuf(q)+i}, v{VM}")
                    if not LM:
                        for i in range(4): e(f"v_mul_f32 v{LS+i}, v{LS+i}, v{VAL}")
                    for i in range(16): e(f"v_sub_f32 v{NEGM+i}, v{NEGM+i}, v{VM}")
                    e(f"s_mov_b32 s{S_RS}, 1")
                    e("s_nop 1")
                    e(f"s_branch {lb}")
                rare.append(blk)
            return Act(f, 12)
        def check2():
            def f():
                lr, lb = newlab("rr"), newlab("rb")
                e(f"s_cmp_lg_u32 s{S_RS}, 0")
                e(f"s_cbranch_scc1 {lr}")
                e.label(lb)
                def blk():
                    e.label(lr)
                    e("s_nop 15")
                    for i in range(64): e(f"v_mul_f32 v{Oacc+i}, v{Oacc+i}, v{VAL}")
                    if LM:
                        e(f"v_accvgpr_read_b32 v{T0}, a{LACC}"); e(f"v_mul_f32 v{T0}, v{T0}, v{VAL}"); e(f"v_accvgpr_write_b32 a{LACC}, v{T0}")
                    e(f"s_mov_b32 s{S_RS}, 0")
                    e("s_nop 1")
                    e(f"s_branch {lb}")
                rare.append(blk)
            return Act(f, 8)
        seg = {}
        def add_qk(q):
            a = len(slots)
            for jl in range(2):
                unit = ("k", 2*q + jl)
                for u in range(2):
                    sg = 2 * jl + u
                    sb = sbuf(q) + 16 * sg
                    for m in range(8):
                        ab = newbuf()
                        c = ("0" if q == 0 else vr(NEGM, 16)) if m == 0 else vr(sb, 16)
                        so_ = (slot_of[unit] - 5) % 4 * 16384 if PA else 0
                        add_slot(unit, [f"ds_read_b128 {ar(ab,4)}, v{RA+m} offset:{so_+u*8192}"],
                                 f"v_mfma_f32_32x32x16_bf16 {vr(sb,16)}, {ar(ab,4)}, {ar(AQ+4*m,4)}, {c}")
            seg[("qk", q)] = (a, len(slots))
        def add_pv(q):
            a = len(slots)
            def lslot(unit, f):
                first = (q == 0 and f == 0)
                add_slot(unit, [], f"v_mfma_f32_32x32x16_bf16 {ar(LACC,16)}, {ar(ONES,4)}, {vr(sbuf(q)+8*f,4)}, {'0' if first else ar(LACC,16)}")
            def oslot(unit, f, t):
                first = (q == 0 and f == 0); m = f & 3
                ab = newbuf()
                so_ = (slot_of[unit] - 5) % 4 * 16384 if PA else 0
                rb = (RV + (4 if slot_of[unit] == 9 else 0) + t) if PA else RA + t
                rd = [f"ds_read_b64_tr_b16 {ar(ab,2)}, v{rb} offset:{so_+m*4096}",
                      f"ds_read_b64_tr_b16 {ar(ab+2,2)}, v{rb} offset:{so_+m*4096+1024}"]
                add_slot(unit, rd, f"v_mfma_f32_32x32x16_bf16 {vr(Oacc+16*t,16)}, {ar(ab,4)}, {vr(sbuf(q)+8*f,4)}, {'0' if first else vr(Oacc+16*t,16)}")
            for jl in range(2):
                unit = ("v", 2*q + jl)
                if q == 3 and jl == 1:
                    for t in range(4):
                        for m in range(4): oslot(unit, 4 + m, t)
                    continue
                for m in range(4):
                    f = 4 * jl + m
                    if LM: lslot(unit, f)
                    for t in range(4): oslot(unit, f, t)
                if q == 3 and LM:
                    for f in range(4, 8): lslot(unit, f)
            seg[("pv", q)] = (a, len(slots))
        add_qk(0); add_qk(1); add_pv(0); add_qk(2); add_pv(1); add_qk(3); add_pv(2); add_pv(3)
        N = len(slots)
        unit_first = {}
        for k, s in enumerate(slots): unit_first.setdefault(s["unit"], k)
        def unit_range(u):
            ks = [k for k, s in enumerate(slots) if s["unit"] == u]
            return ks[0], ks[-1] + 1
        for j in range(8):
            k0 = unit_first[("s", j)]
            if j >= 1 and not opt.get("nob2", 0): slots[k0]["post"].append("barrier2")
            ops = [(g, ("x", j+2)) for g in dma_ops(("x", j+2))] + [(g, ("w", j+2)) for g in dma_ops(("w", j+2))]
            for i, (g, t) in enumerate(ops):
                slots[k0 + 2 * i]["dma"].append((g, t))
        def b_prefetch():
            for n in range(4):
                for g in dma_ops(kvt[n]): emit_group(g, kvt[n])
            for n in range(4, 4 + NST):
                kind, j = kvt[n]
                e(f"s_mov_b32 s{S_SO}, {16384*j}")
                for jj in range(4):
                    vo, sr_ = (VK + jj, SK) if kind == "k" else (VV, SV)
                    e(f"buffer_load_dwordx4 {ar(AKV+16*(n-4)+4*jj,4)}, v{vo}, s[{sr_}:{sr_+3}], s{S_SO} offen offset:{1024*jj}{KVF}"); vm_add(kvt[n])
        PFB = opt.get("pfb", 4)
        def pf_ops(n):
            return [([f"s_movk_i32 s{S_T0}, {(i>>2)*4096}"] if i % 4 == 0 else []) + [f"buffer_load_dwordx4 a[252:255], v{VL16}, s[{SO}:{SO+3}], s{S_T0} offen offset:{(i&3)*1024}{WOF}"] for i in range(n)]
        def b_all():
            if PFB == 1:
                for gg in pf_ops(20): emit_group(gg, "pf")
            b_prefetch()
            if PFB == 2:
                for gg in pf_ops(20): emit_group(gg, "pf")
        if role == "B" and not XPF:
            slots[unit_first[("s", opt.get("bst", 1))] + 15]["fill"].append(Act(b_all, 0))
        if role == "B" and XPF and opt.get("bpos", -1) >= 0:
            slots[unit_first[("s", opt["bpos"])] + opt.get("bsl", 15)]["fill"].append(Act(burst, 0))
        if role == "B" and XPF and "kmixb" in opt:
            kops = [(g, kvt[n]) for n in range(NBL, 4) for g in dma_ops(kvt[n])]
            km = str(opt["kmixb"]).zfill(10)
            assert sum(int(c, 16) for c in km) == len(kops)
            for j in range(10):
                c = int(km[j], 16); k0 = unit_first[("s", j)]
                for i in range(c):
                    if j < 8: pos = 7 if i < c // 2 else 15
                    else: pos = (2 * i + 1) * 16 // (2 * c)
                    slots[k0 + pos]["dma"].append(kops.pop(0))
        elif role == "B" and XPF and NBL < 4:
            kops = [(g, kvt[n]) for n in range(NBL, 4) for g in dma_ops(kvt[n])]
            k0 = unit_first[("s", 8)]
            for i, it in enumerate(kops): slots[k0 + (2 * i + 1) * 32 // (2 * len(kops))]["dma"].append(it)
        if SPEC and not STOP:
            a, b = unit_range(kvt[opt.get("pfillu", 2)])
            for i in range(8):
                gg = ([f"s_movk_i32 s{S_T1}, {(i>>2)*4096}"] if i % 4 == 0 else []) + [f"buffer_store_dwordx4 v[52:55], v{VL16}, s[{SO2}:{SO2+3}], s{S_T1} offen offset:{(i&3)*1024}{opt.get('pfillflag', '')}"]
                if opt.get("nopfill", 0): gg = []
                slots[a + 8 + i]["dma"].append((gg, "pfill"))
        ofu = opt.get("ofa" if role == "A" else "ofb", 0)
        if ofu and not STOP:
            a, b = unit_range(kvt[ofu])
            slots[a + opt.get("ofs", 8)]["dma"].insert(0, ([f"v_lshlrev_b32 v60, 7, v{V_L}", f"buffer_load_dword v61, v60, s[{SO2}:{SO2+3}], 0 offen{opt.get('offlag', '')}"], "of"))
        if PFB == 5:
            a, b = unit_range(kvt[int(str(opt.get("pfa" if role == "A" else "pfu", "c")), 16)])
            for i, gg in enumerate(pf_ops(10)):
                slots[a + 8 + i * 8 // 10]["dma"].append((gg, "pf"))
        if role == "A" and PFB == 4:
            lo_u, hi_u = [int(c, 16) for c in str(opt.get("pfu", "18"))]
            nu = hi_u - lo_u + 1
            for i, gg in enumerate(pf_ops(20)):
                a, b = unit_range(kvt[lo_u + i * nu // 20])
                j = i - min(ii for ii in range(20) if ii * nu // 20 == i * nu // 20)
                slots[a + 9 + 2 * j]["dma"].append((gg, "pf"))
        if role == "B" and PFB == 3:
            lo_u, hi_u = [int(c, 16) for c in str(opt.get("pfu", "03"))]
            a = unit_range(kvt[lo_u])[0] + 6; b = unit_range(kvt[hi_u])[1]
            for i, gg in enumerate(pf_ops(20)):
                slots[a + i * (b - a) // 20]["dma"].append((gg, "pf"))
        if role != "B":
            kops = [(g, kvt[n]) for n in range(4) for g in dma_ops(kvt[n])]
            npf = opt.get("npf", 20) if role == "A" and not STOP and not PFB else 0
            pfo = [([f"s_movk_i32 s{S_T0}, {(i>>2)*4096}"] if i % 4 == 0 else []) + [f"buffer_load_dwordx4 a[252:255], v{VL16}, s[{SO}:{SO+3}], s{S_T0} offen offset:{(i&3)*1024}{WOF}"] for i in range(npf)]
            pfo = [(g, "pf") for g in pfo]
            if opt.get("pffirst", 1): kops = pfo + kops
            else: kops = kops + pfo
            kmix = str(opt.get("kmix", ("0000000088" if PFB else "00000006ff") if role == "A" else "0002222224")).zfill(10)
            assert sum(int(c, 16) for c in kmix) == len(kops), len(kops)
            for j in range(10):
                c = int(kmix[j], 16); k0 = unit_first[("s", j)]
                for i in range(c):
                    if j < 8: pos = 7 if i < c // 2 else 15
                    else: pos = (2 * i + 1) * 16 // (2 * c)
                    slots[k0 + pos]["dma"].append(kops.pop(0))
        dl = str(opt.get("dla" if role == "A" else "dlb", "000888888840" if role == "A" else "000000000000"))
        lastkv = -100
        for n in range(4, 16):
            a, b = unit_range(kvt[n - D])
            a += 2 * int(dl[n - 4], 16)
            assert a >= lastkv + 8, ("KV groups interleave", n)
            lastkv = a
            L = 16
            for i, g in enumerate(dma_ops(kvt[n])):
                if role == "B" and n < 4 + NST:
                    alt = [f"v_add_u32 v{T3}, s{S_W4K}, v{VL16}", f"v_add_u32 v{T3}, {slot_of[kvt[n]]*16384}, v{T3}"] if i == 0 else []
                    alt.append(f"ds_write_b128 v{T3}, {ar(AKV+16*(n-4)+4*i,4)} offset:{1024*i}")
                    slots[a + (2 * i) * L // 16 + 1 + KOFF]["dma"].append((alt, None))
                else:
                    slots[a + (2 * i) * L // 16 + 1 + KOFF]["dma"].append((g, kvt[n]))
        NS0 = opt.get('ns0', 4)
        AST = 256 - 20 * (8 - NS0)
        WROT = opt.get("wrot", 1)
        def w_grp(g):
            if not WROT or g >= 4: return [f"s_add_u32 s100, s{S_W}, {4*g}"]
            return ["s_bfe_u32 s100, s2, 0x20003", f"s_add_u32 s100, s100, {g & 3}", "s_and_b32 s100, s100, 3", "s_lshl_b32 s100, s100, 2",
                    f"s_add_u32 s100, s100, s{S_W}"] + ([f"s_add_u32 s100, s100, 16"] if g >= 4 else [])
        def w_lds(g, dst):
            return w_grp(g) + [f"s_mul_i32 s{dst}, s100, 5120"]
        def w_ops(g, stage=False):
            glob = [f"s_lshl_b32 s101, s{S_HI}, 2", "s_add_u32 s100, s100, s101", "s_and_b32 s100, s100, 31", f"s_mul_i32 s{S_WG}, s100, {32*1280}"]
            out = []
            if stage:
                pre = w_grp(g) + glob
                for ee in range(5):
                    out.append((pre if ee == 0 else []) + [f"buffer_load_dwordx4 {ar(AST+20*(g-NS0)+4*ee,4)}, v{VWO[ee]}, s[{SWO}:{SWO+3}], s{S_WG} offen offset:{1024*ee if ee<4 else 0}{WOF}"])
                return out
            pre = w_lds(g, S_WL) + [f"s_mov_b32 m0, s{S_WL}"] + glob
            for ee in range(4):
                out.append((pre if ee == 0 else [f"s_mov_b32 m0, s{S_WL}", "s_nop 0"]) + [f"buffer_load_dwordx4 v{VWO[ee]}, s[{SWO}:{SWO+3}], s{S_WG} offen offset:{1024*ee}{WOF} lds"])
            out.append([f"s_add_u32 m0, s{S_WL}, 4096", "s_nop 0", f"buffer_load_dwordx4 v{VWO[4]}, s[{SWO}:{SWO+3}], s{S_WG} offen{WOF} lds"])
            return out
        def pmap(c): return c
        assert NS0 == 4
        def place_w(rng, role):
            lo_u, hi_u = [int(c, 16) for c in rng]
            sp = [(gg, ("W", g)) for g in range(4) for gg in w_ops(g, False)]
            nu = hi_u - lo_u + 1
            byu = {}
            for i, it in enumerate(sp): byu.setdefault(lo_u + i * nu // len(sp), []).append(it)
            for n, ops in byu.items():
                a, b = unit_range(kvt[n]); L = b - a
                nokv = n + D > 15 or n == 0 or (role == "B" and n + D < 4 + NST)
                lo = a + 1 if nokv else a + L // 2 + 1 + KOFF
                if n == 15: b = a + 8
                for i, it in enumerate(ops):
                    slots[lo + i * (b - lo) // len(ops)]["dma"].append(it)
        if not STOP:
            for gi, n in ((4, 14), (5, 15)):
                a, b = unit_range(kvt[n])
                for i, gg in enumerate(w_ops(gi, False)):
                    slots[a + (8 if n == 14 else 0) + i]["dma"].append((gg, ("W", gi)))
            place_w(str(opt.get({"A": "wspa", "B": "wspb", "AB": "wsp"}[role], {"A": "cd", "B": "cd", "AB": "0b"}[role])), role)
        def misc_acts():
            def m0():
                wait_vm(["dbgld"])
                l1, l2 = newlab("dc"), newlab("dc")
                e("s_mov_b32 s101, 0")
                e.label(l1)
                e(f"v_xor_b32 v{T0}, v{T3}, v{VDB}")
                e(f"v_cmp_gt_u32 vcc, 16, v{T0}")
                e("s_cmp_eq_u64 vcc, -1")
                e(f"s_cbranch_scc1 {l2}")
                e("s_add_u32 s101, s101, 1")
                e(f"s_cmp_ge_u32 s101, {SPIN}")
                e(f"s_cbranch_scc1 {l2}")
                e("s_sleep 8")
                e(f"buffer_load_dword v{T3}, v{VPO}, s[{SF}:{SF+3}], 0 offen offset:512 sc1")
                e("s_waitcnt vmcnt(0)")
                e(f"s_branch {l1}")
                e.label(l2)
                e(f"v_cmp_eq_u32 vcc, 0, v{T0}")
                e("s_cmp_eq_u64 vcc, -1")
                e(f"s_cselect_b32 s{S_FAST}, {0 if (FORCE_SLOW or (opt.get('slowa', 0) and role == 'A')) else 1}, 0")
            def m1():
                e(f"s_lshl_b32 s{S_T0}, s{S_B}, 2"); e(f"s_add_u32 s{S_T0}, s{S_T0}, s{S_HG}"); e(f"s_lshl_b32 s{S_T0}, s{S_T0}, 18")
                e(f"s_lshl_b32 s100, s{S_W}, 13")
                e(f"s_add_u32 s{S_T0}, s{S_T0}, s100")
                srd(e, SOG, 78, 79, S_T0, 7 * 32768 + 8192)
            def m2():
                e(f"s_lshl_b32 s100, s{S_HI}, 15")
                e(f"s_add_u32 s{S_T0}, s{S_T0}, s100")
                srd(e, SO, 78, 79, S_T0, 8192)
                e(f"s_lshl_b32 s{S_T0}, s2, 3"); e(f"s_add_u32 s{S_T0}, s{S_T0}, s{S_W}"); e(f"s_lshl_b32 s{S_T0}, s{S_T0}, 7")
            def m3():
                e(f"v_mov_b32 v{VZ}, s{S_T0}")
                e(f"v_mov_b32 v{T0}, 0x7fffffff")
                e(f"v_cmp_eq_u32 vcc, 0, v{V_L}")
                e(f"v_mov_b32 v{T2}, s{S_TAG}")
                e(f"v_add_u32 v{T3}, s{S_HI}, v{V_L}")
                e(f"v_cndmask_b32 v{VZ}, v{T0}, v{VZ}, vcc")
                e(f"v_and_b32 v{T3}, 7, v{T3}")
            def m4():
                e(f"s_and_b32 s{S_T0}, s2, 31"); e(f"s_lshl_b32 s{S_T0}, s{S_T0}, 3"); e(f"s_add_u32 s{S_T0}, s{S_T0}, s{S_W}"); e(f"s_lshl_b32 s{S_T0}, s{S_T0}, 7")
                e(f"v_lshl_add_u32 v{VPO}, v{T3}, 15, s{S_T0}")
            return [Act(m0, 36), Act(m1, 36), Act(m2, 36), Act(m3, 28), Act(m4, 20)]
        def base_cost(k):
            s = slots[k]
            return 8 + 4 * len(slots[min(N-1, k+LA)]["reads"]) + (2 if PAIRW else 4) + sum(4 * len(x[0]) for x in s["dma"]) + sum(cost(x) for x in s["fill"] + s["fill2"])
        def spread(ops, a, b, dead=None):
            tot = sum(cost(o) for o in ops)
            lo, hi = 0, 400
            def place(level, commit):
                i = 0
                for k in range(a, b):
                    c = base_cost(k)
                    while i < len(ops):
                        if c + cost(ops[i]) <= level:
                            c += cost(ops[i])
                            if commit: slots[k]["fill"].append(ops[i])
                            i += 1
                        else: break
                    if dead and any(oi >= i and sl <= k + 1 for oi, sl in dead): return False
                return i == len(ops)
            while lo < hi:
                mid = (lo + hi) // 2
                if place(mid, False): hi = mid
                else: lo = mid + 1
            assert place(lo, True)
            return lo
        for q in range(4):
            a, b = seg[("qk", q)]
            for sg in range(3):
                base = a + 8 * (sg + 1)
                mo = max_ops(q, sg)
                for i in range(4): slots[base + 4 + i]["fill"] += mo[2*i:2*i+2]
        lv = []
        X0 = opt.get("x0", 13)
        for q in range(1, 4):
            a, b = seg[("pv", q - 1)]
            mo = max_ops(q, 3)
            for i in range(4): slots[a + 3 + i]["fill"] += mo[2*i:2*i+2]
            slots[a + (X0 if q == 1 else 7)]["fill2"].append(check1(q))
        for q in (1, 2):
            slots[seg[("qk", q + 1)][0]]["fill"].append(check2())
        def qconv(t):
            ops = []
            for i in range(0, 16, 2):
                r = Oacc + 16 * t + i
                ops.append(f"v_pk_mul_f32 v[{r}:{r+1}], v[{r}:{r+1}], v[{T1}:{T1+1}] op_sel_hi:[1,0]") if t < 2 else ops.extend([f"v_mul_f32 v{r}, v{r}, v{T1}", f"v_mul_f32 v{r+1}, v{r+1}, v{T1}"])
            ops += [f"v_cvt_pk_bf16_f32 v{Oacc+16*t+i}, v{Oacc+16*t+2*i}, v{Oacc+16*t+2*i+1}" for i in range(8)]
            ops += [f"v_accvgpr_write_b32 a{AQ+8*t+i}, v{Oacc+16*t+i}" for i in range(8)]
            return ops
        a, b = seg[("qk", 0)]
        lv.append(spread(qconv(2) + qconv(3), a, a + 6, dead=[(31, a + 4), (63, a + 6)]))
        if PA:
            a, b = seg[("qk", 0)]
            va = [f"v_add_u32 v{RV}, {5*16384}, v{VBW}"] + [f"v_xor_b32 v{RV+t}, {t<<6}, v{RV}" for t in range(1, 4)]
            va += [f"v_add_u32 v{RV+4+t}, {4*16384}, v{RV+t}" for t in range(4)]
            for i, o in enumerate(va): slots[a + 8 + i // 2]["fill"].append(o)
        PS_ = 5 if LM else 4
        a, b = seg[("pv", 2)]
        for i, act in enumerate(misc_acts()):
            slots[a + 18 + 3 * i]["fill"].append(act)
        a, b = seg[("qk", 1)]
        f0 = [frag_ops(0, f) for f in range(8)]
        lv.append(spread([o for x in f0 for o in x], a, b + X0 + 1, dead=[(sum(len(x) for x in f0[:f+1]) - 1, b + PS_ * f) for f in range(4) if PS_ * f <= X0]))
        for q in (1, 2):
            lv.append(spread([o for f in range(8) for o in frag_ops(q, f)], seg[("pv", q-1)][0] + (X0 + 1 if q == 1 else 8), seg[("qk", q+1)][1]))
        a3 = seg[("pv", 3)][0]
        NF = len(frag_ops(3, 0))
        lv.append(spread([o for f in range(8) for o in frag_ops(3, f)], seg[("pv", 2)][0] + 8, a3 + (20 if LM else 16),
                         dead=[(NF * f + NF - 1, a3 + PS_ * f) for f in range(4)]))
        a7 = unit_first[("v", 7)]
        def store_t(t):
            def f():
                d = QF + 8 * t
                l1, l2 = newlab("o"), newlab("o")
                so = f"s{S_SO}" if t >= 2 else "0"
                e(f"s_cmp_eq_u32 s{S_FAST}, 0")
                e(f"s_cbranch_scc1 {l1}")
                for z in range(2):
                    e(f"buffer_store_dwordx4 {vr(d+4*z,4)}, v{VL16}, s[{SO}:{SO+3}], {so} offen offset:{((2*t+z)&3)*1024}{' nt' if (opt.get('ntma' if role == 'A' else 'ntmb', 15) >> t) & 1 else ''}")
                e(f"s_branch {l2}")
                e.label(l1)
                for z in range(2):
                    e(f"buffer_store_dwordx4 {vr(d+4*z,4)}, v{VL16}, s[{SO}:{SO+3}], {so} offen offset:{((2*t+z)&3)*1024} sc1")
                e.label(l2)
                vm_add("Ost"); vm_add("Ost")
            return Act(f, 20)
        def pack_ops(t, pk=False):
            ops = []
            if pk:
                for i in range(0, 16, 2):
                    r = Oacc + 16 * t + i
                    ops.append(f"v_pk_mul_f32 v[{r}:{r+1}], v[{r}:{r+1}], v[{T1}:{T1+1}] op_sel_hi:[1,0]")
            else:
                ops += [f"v_mul_f32 v{Oacc+16*t+i}, v{Oacc+16*t+i}, v{T1}" for i in range(16)]
            d = QF + 8 * t
            for u in range(2):
                b = Oacc + 16 * t + 4 * u
                ops += [f"v_cvt_pk_bf16_f32 v{d+4*u}, v{b}, v{b+1}", f"v_cvt_pk_bf16_f32 v{d+4*u+1}, v{b+2}, v{b+3}",
                        f"v_cvt_pk_bf16_f32 v{d+4*u+2}, v{b+8}, v{b+9}", f"v_cvt_pk_bf16_f32 v{d+4*u+3}, v{b+10}, v{b+11}"]
            ops += [f"v_permlane16_swap_b32 v{d+i}, v{d+4+i}" for i in range(4)]
            ops.append(store_t(t))
            return ops
        if LM:
            slots[a7 + 2]["fill"] += [f"v_accvgpr_read_b32 v{T1}, a{LACC}", f"s_movk_i32 s{S_SO}, 4096"]
        else:
            slots[a7 + 0]["fill"] += [f"v_add_f32 v{LS}, v{LS}, v{LS+1}", f"v_add_f32 v{LS+2}, v{LS+2}, v{LS+3}", f"s_movk_i32 s{S_SO}, 4096"]
            slots[a7 + 1]["fill"] += [f"v_add_f32 v{LS}, v{LS}, v{LS+2}", f"v_mov_b32 v{T1}, v{LS}"]
            slots[a7 + 2]["fill"] += [f"v_permlane32_swap_b32 v{T1}, v{LS}", f"v_add_f32 v{T1}, v{T1}, v{LS}"]
        slots[a7 + 3]["fill"] += [f"v_rcp_f32 v{T1}, v{T1}"]
        p0, p1, p2 = pack_ops(0), pack_ops(1), pack_ops(2)
        PK0 = opt.get("pk0", 6)
        for i in range(4): slots[a7 + PK0 + i]["fill"] += p0[i*29//4:(i+1)*29//4]
        for i in range(4): slots[a7 + PK0 + 4 + i]["fill"] += p1[i*29//4:(i+1)*29//4]
        n2 = 16 - (PK0 + 8)
        for i in range(n2): slots[a7 + PK0 + 8 + i]["fill"] += p2[i*8:(i+1)*8]
        epi_rest = p2[n2*8:] + pack_ops(3, True)
        EARLY = opt.get("early", 0) and not STOP
        S_PM, S_EARLY = 34, 61
        assert not EARLY
        OB = [None, 64, 96, 128, 0, 32, 160, 192]
        def o_ops(h):
            out = []
            pre = [f"s_add_u32 s100, s{S_HI}, {h}", "s_and_b32 s100, s100, 7", f"s_lshl_b32 s{S_T0}, s100, 15", f"s_add_u32 s{S_T1}, s{S_T0}, 4096"]
            for f in range(8):
                so = S_T0 if f < 4 else S_T1
                out.append((pre if f == 0 else []) + [f"buffer_load_dwordx4 {ar(OB[h]+4*f,4)}, v{VL16}, s[{SOG}:{SOG+3}], s{so} offen offset:{(f&3)*1024}{opt.get('olflag', ' sc1')}"])
            return out
        def early_take():
            wait_vm(["poll0"])
            l1 = newlab("e")
            e(f"v_cmp_eq_u32 vcc, v{T2}, v{T3}")
            e(f"s_mov_b32 s{S_PM}, vcc_lo")
            e(f"s_and_b32 s100, s{S_PM}, 14")
            e("s_cmp_eq_u32 s100, 14")
            e(f"s_cselect_b32 s{S_EARLY}, 1, 0")
            e(f"s_cbranch_scc0 {l1}")
            for gg in o_ops(1) + o_ops(2)[:4]:
                for s_ in gg: e(s_)
            e.label(l1)
        if EARLY:
            slots[a7 + opt.get("et", 9)]["fill"].insert(0, Act(early_take, 40))
        sys.stderr.write(f"filler levels {lv}\n")
        def gap_q_post():
            e(f"v_mov_b32 v{T1}, s{S_C}")
            e(f"v_accvgpr_read_b32 v{VWO[3]}, a{AWO}")
            e(f"s_mov_b32 s{S_RS}, 0")
            assert not SPEC
            if LM:
                e(f"v_mov_b32 v{T0}, 0x3f803f80")
                for i in range(4): e(f"v_accvgpr_write_b32 a{ONES+i}, v{T0}")
            for o in qconv(0) + qconv(1): e(o)
        def gap0_pre():
            for o in max_ops(0, 3): e(o)
            e(f"v_mov_b32 v{T0}, v{VM}")
            e(f"v_permlane32_swap_b32 v{T0}, v{VM}")
            e(f"v_max_f32 v{VM}, v{T0}, v{VM}")
            for i in range(16): e(f"v_sub_f32 v{NEGM+i}, 0, v{VM}")
        def gap3_pre():
            check2().fn()
        nop = lambda: None
        gaps = {seg[("qk", 0)][0]: (nop, gap_q_post, True),
                seg[("qk", 1)][0]: (gap0_pre, nop, False),
                seg[("pv", 3)][0]: (gap3_pre, nop, False)}
        def enter_unit(u):
            if u[0] == "s":
                j = u[1]
                wait_vm([("x", j), ("w", j)])
                e("s_barrier")
                if j == 9:
                    e(f"v_add_u32 v{VDB}, 1, v{VDB}")
                    e(f"v_cmp_eq_u32 vcc, 0, v{VDB}")
                    e(f"s_mov_b32 s100, {NONCE_OFF}")
                    e(f"v_cndmask_b32 v{VDB}, v{VDB}, 1, vcc")
                    e(f"buffer_store_dword v{VDB}, v{VZ}, s[{SD}:{SD+3}], 0 offen sc1"); vm_add("nst")
                    e(f"buffer_store_dword v{VDB}, v{VZ}, s[{SF}:{SF+3}], s100 offen sc1"); vm_add("nst")
                e(f"v_add_u32 v{RA}, {slot_of[('w',j)]*16384}, v{VBW}")
                e(f"v_add_u32 v{RA+4}, {slot_of[('x',j)]*16384}, v{VAX}")
                for t in range(1, 4):
                    e(f"v_xor_b32 v{RA+t}, {t<<6}, v{RA}")
                    e(f"v_xor_b32 v{RA+4+t}, {t<<5}, v{RA+4}")
            else:
                n_ = kvt.index(u)
                pm = int(str(opt.get("pairb", "0")), 16)
                if (pm >> (n_ // 2)) & 1:
                    if n_ % 2 == 0:
                        wait_vm([u, kvt[n_ + 1]]); e("s_barrier")
                else:
                    if not opt.get("nomem", 0) or u in kvt[:4]: wait_vm([u])
                    if opt.get("nomem", 0) < 2: e("s_barrier")
                if u == kvt[4]:
                    e(f"buffer_load_dword v{T3}, off, s[{SD}:{SD+3}], 0 sc1"); vm_add("nld")
                if u == kvt[7]:
                    l1, l2 = newlab("nc"), newlab("nc")
                    e("s_mov_b32 s101, 0")
                    e.label(l1)
                    e(f"v_readfirstlane_b32 s{S_TAG}, v{T3}")
                    e("s_add_u32 s101, s101, 1")
                    e(f"s_cmp_lg_u32 s{S_TAG}, 0")
                    e(f"s_cbranch_scc1 {l2}")
                    e(f"s_cmp_ge_u32 s101, {SPIN}")
                    e(f"s_cbranch_scc1 {l2}")
                    e("s_sleep 8")
                    e(f"buffer_load_dword v{T3}, off, s[{SD}:{SD+3}], 0 sc1")
                    e("s_waitcnt vmcnt(0)")
                    e(f"s_branch {l1}")
                    e.label(l2)
                    e("s_getreg_b32 s100, hwreg(HW_REG_XCC_ID)")
                    e("s_and_b32 s100, s100, 15")
                    e(f"s_lshl_b32 s101, s{S_TAG}, 4")
                    e("s_or_b32 s100, s100, s101")
                    e(f"v_mov_b32 v{VDB}, s100")
                    e("s_lshl_b32 s100, s2, 10")
                    e(f"buffer_store_dword v{VDB}, off, s[{SF}:{SF+3}], s100 offset:512 sc1"); vm_add("xst")
                if u == kvt[opt.get("tlbu", 8)] and opt.get("tlbw", 0) and not STOP:
                    e(f"s_lshl_b32 s100, s{S_B}, 2"); e(f"s_add_u32 s100, s100, s{S_HG}"); e("s_lshl_b32 s101, s100, 18")
                    srd(e, 56, 78, 79, None, 16 << 20)
                    e("buffer_load_dword v52, off, s[56:59], s101 sc1"); vm_add("tlb")
                    e(f"buffer_load_dword v53, off, s[{SP}:{SP+3}], s{S_PO} sc1"); vm_add("tlb")
                    e(f"s_mul_i32 s101, s100, {32*1280}")
                    srd(e, 56, 74, 75, None, 1024 * 1280)
                    e("buffer_load_dword v54, off, s[56:59], s101 sc1"); vm_add("tlb")
                if u == kvt[11]:
                    e(f"buffer_load_dword v{T3}, v{VPO}, s[{SF}:{SF+3}], 0 offen offset:512 sc1"); vm_add("dbgld")
                if u == kvt[15] and EARLY:
                    e(f"buffer_load_dword v{T3}, v{VPO}, s[{SF}:{SF+3}], 0 offen sc1"); vm_add("poll0")
                so = slot_of[u] * 16384
                if PA:
                    if u[0] == "k":
                        hi = slot_of[u] == 9
                        if kst[0] is None:
                            e(f"v_add_u32 v{RA}, {(9 if hi else 5)*16384}, v{VAK}")
                            for m in range(1, 8): e(f"v_xor_b32 v{RA+m}, {m<<5}, v{RA}")
                        elif kst[0] != hi:
                            for m in range(8): e(f"v_xor_b32 v{RA+m}, {(9*16384) ^ (5*16384)}, v{RA+m}")
                        kst[0] = hi
                elif u[0] == "k":
                    e(f"v_add_u32 v{RA}, {so}, v{VAK}")
                    for m in range(1, 8): e(f"v_xor_b32 v{RA+m}, {m<<5}, v{RA}")
                else:
                    e(f"v_add_u32 v{RA}, {so}, v{VBW}")
                    for t in range(1, 4): e(f"v_xor_b32 v{RA+t}, {t<<6}, v{RA}")
        kst = [None]
        st = dict(rd=0, cur=None, waited=-1)
        lg = []
        def issue_reads(upto):
            while st["rd"] <= upto and st["rd"] < N:
                s = slots[st["rd"]]
                if s["unit"] != st["cur"]:
                    st["cur"] = s["unit"]
                    enter_unit(st["cur"])
                    if diag == 2 and st["cur"][0] == "s": stamp()
                for r in s["reads"]:
                    e(r); lg.append(st["rd"])
                st["rd"] += 1
        def limit(k):
            c = [g for g in gaps if g > k and gaps[g][2]]
            return (min(c) if c else N) - 1
        segstarts = {v[0] for v in seg.values()}
        for k in range(N):
            s = slots[k]
            if k in segstarts and diag not in (3, 4, 5, 6): stamp()
            if k in gaps:
                gaps[k][0]()
                issue_reads(k + LA - 1)
                gaps[k][1]()
            elif k == 0:
                issue_reads(LA - 1)
                stamp()
            if s["reads"] and k > st["waited"]:
                kk = k
                if PAIRW and k + 1 < st["rd"] and slots[k+1]["reads"] and (k + 1) not in gaps: kk = k + 1
                idx = max(i for i, t in enumerate(lg) if t == kk)
                n_after = len(lg) - 1 - idx
                e(f"s_waitcnt lgkmcnt({min(15, n_after)})")
                st["waited"] = kk
            e(s["mf"])
            for p in s["post"]:
                if p == "barrier2": e("s_barrier")
            issue_reads(min(k + LA, limit(k)))
            for gg, tg in s["dma"]:
                if opt.get("now", 0) and ((tg == "pf" and opt["now"] == 1) or (isinstance(tg, tuple) and tg[0] == "W")): gg = []
                if opt.get("nomem", 0) and s["unit"][0] != "s": gg = []
                for s_ in gg: e(s_)
                if tg is None: lg.append(-1)
                else: vm_add(tg)
            for f in s["fill"] + s["fill2"]:
                if isinstance(f, str): e(f)
                else: f.fn()
        stamp()
        for f in epi_rest:
            if isinstance(f, str): e(f)
            else: f.fn()
        if not STOP:
            assert vmbox[0][-1] == "Ost"
            wait_vm([("W", gi) for gi in range(4)])
        return dict(OB=OB, S_PM=S_PM)
    def flag_raw():
        l1, l2 = newlab("f"), newlab("f")
        e(f"s_cmp_eq_u32 s{S_FAST}, 0")
        e(f"s_cbranch_scc1 {l1}")
        e(f"buffer_store_dword v{T2}, v{VZ}, s[{SF}:{SF+3}], 0 offen")
        e(f"s_branch {l2}")
        e.label(l1)
        e(f"buffer_store_dword v{T2}, v{VZ}, s[{SF}:{SF+3}], 0 offen sc1")
        e.label(l2)
    vm0 = list(vmbox[0]); st0 = nstamp[0]
    if ROLES:
        e(f"s_cmp_eq_u32 s{S_ROLE}, 0")
        e("s_cbranch_scc1 L_roleA")
        vmbox[0] = vmB_pre + vm0
        X = attention("B")
        e("s_branch L_tail")
        e.label("L_roleA")
        vmbox[0] = list(vm0); nstamp[0] = st0
        X = attention("A")
        e.label("L_tail")
    else:
        X = attention("AB")
    vmbox[0] = ["Ost"]
    OB, S_PM = X["OB"], X["S_PM"]
    stamp()
    if not STOP:
        tail(e, opt, locals())
    if diag == 7:
        e("s_waitcnt vmcnt(0)")
        stamp()
        e("s_load_dwordx2 s[64:65], s[0:1], 48"); e("s_waitcnt lgkmcnt(0)")
        srd(e, 8, 64, 65, None, 256)
        e("s_and_b32 s100, s2, 0xf7"); e("s_or_b32 s100, s100, s3"); e("s_cmp_lg_u32 s100, 4"); e("s_cbranch_scc1 L_nd7")
        e("s_lshr_b32 s100, s2, 3"); e("s_mul_i32 s100, s100, 24"); e("s_add_u32 s100, s100, 16")
        for i, k in enumerate((2, 3, 11, 14, 15, 18)):
            e(f"v_mov_b32 v4, s{40+k}"); e(f"buffer_store_dword v4, off, s[8:11], s100 offset:{4*i}")
        e.label("L_nd7")
    elif diag:
        e("s_waitcnt vmcnt(0)")
        stamp()
        e("s_memrealtime s[100:101]")
        e("s_waitcnt lgkmcnt(0)")
        e(f"s_mov_b32 s29, {WS_DIAG}")
        srd(e, 8, 78, 79, 29, 1 << 20)
        e("s_lshl_b32 s29, s2, 2"); e("s_add_u32 s29, s29, s3"); e("s_lshl_b32 s29, s29, 7")
        e("v_mov_b32 v1, s29")
        vals = [f"s{40+k}" for k in range(nstamp[0])] + ["0"] * (24 - nstamp[0])
        if diag == 5:
            vals = vals[:14] + ["s54", "s55", "s56", "s57"] + vals[18:]
        vals = vals + ["s94", "s95", "s100", "s101"]
        e("s_getreg_b32 s30, hwreg(HW_REG_XCC_ID)")
        vals += ["s30", "s62", f"s{S_FAST}", "s37" if not SPEC else "s60"]
        for q in range(8):
            for i in range(4): e(f"v_mov_b32 v{4+i}, {vals[4*q+i]}")
            e(f"buffer_store_dwordx4 v[4:7], v1, s[8:11], 0 offen offset:{16*q}")
    if opt.get("pad", 0):
        e("s_waitcnt vmcnt(0)")
        e.label("L_pad")
        e("s_memrealtime s[92:93]")
        e("s_waitcnt lgkmcnt(0)")
        e("s_sub_u32 s92, s92, s94")
        e(f"s_cmp_lt_u32 s92, {opt['pad']}")
        e("s_cbranch_scc1 L_pad")
    e("s_endpgm")
    for blk in rare: blk()
    e.label("L_done")
    e("s_endpgm")
    if TICK:
        for t in range(2):
            kernel_header(e, f"tick{t}_kernel")
            e("s_memrealtime s[4:5]")
            e("s_load_dwordx2 s[6:7], s[0:1], 56")
            e("s_waitcnt lgkmcnt(0)")
            e(f"s_mov_b32 s12, {WS_DIAG + 0x80000 + 64 * t}")
            srd(e, 8, 6, 7, 12, 64)
            if t == 0:
                for i in range(40): e("s_sleep 127")
                e("s_memrealtime s[4:5]"); e("s_waitcnt lgkmcnt(0)")
            e("v_mov_b32 v2, s4"); e("v_mov_b32 v3, s5")
            e("buffer_store_dwordx2 v[2:3], off, s[8:11], 0")
            e("s_endpgm")
    e.raw('.section .rodata,"a"')
    kernel_desc(e, kname, 512, 256)
    if TICK:
        for t in range(2): kernel_desc(e, f"tick{t}_kernel", 32, 32)
    sys.stderr.write(f"nops inserted: {e.nnop}, instrs: {sum(1 for x in e.L if x[0])}\n")
    return e.text()

def tail(e, opt, g):
    S_W, S_B, S_HG, S_HI, S_T0, S_T1, S_SO, S_FAST, S_PO = [g[k] for k in "S_W S_B S_HG S_HI S_T0 S_T1 S_SO S_FAST S_PO".split()]
    SOG, SF, SP, QF, V_L, VL16, VPO, VZ, T0, T1, T2, T3 = [g[k] for k in "SOG SF SP QF V_L VL16 VPO VZ T0 T1 T2 T3".split()]
    vm_add, wait_vm, emit_group, newlab, stamp, OB, S_PM, flag_raw = [g[k] for k in "vm_add wait_vm emit_group newlab stamp OB S_PM flag_raw".split()]
    S_TAG, SWO, VWO, WOF = g["S_TAG"], g["SWO"], g["VWO"], g["WOF"]
    LA = opt.get("LA4", 6); R = LA + 2
    ACC = 128; FR = 168; VB = 12
    if opt.get("rb", 0):
        e(f"v_lshlrev_b32 v64, 7, v{V_L}")
        e(f"buffer_load_dword v65, v64, s[{g['SO']}:{g['SO']+3}], 0 offen{opt.get('rbflag', ' sc1')}"); vm_add("rb")
    e(f"v_lshrrev_b32 v{T1}, 2, v{V_L}")
    e(f"v_mul_u32_u24 v{T1}, 160, v{T1}")
    e(f"v_and_b32 v{T0}, 3, v{V_L}")
    e(f"v_lshl_add_u32 v{VB}, v{T0}, 3, v{T1}")
    e(f"v_add_u32 v{VB+1}, {12*5120}, v{VB}")
    e(f"v_add_u32 v{VB+2}, {24*5120}, v{VB}")
    SPEC = g["SPEC"]; rare = g["rare"]
    BAR20 = opt.get("bar20", 1)
    def odst(h, f):
        return vr(64 + 32 * (h - 1) + 4 * f, 4) if (SPEC and h <= 2) else ar(OB[h] + 4 * f, 4)
    slots = []
    WF = opt.get("wf", 1)
    order4 = [(c, tn) for c in range(24 if WF else 32) for tn in range(5)]
    if WF: order4 += [(c, tn) for tn in range(5) for c in range(24, 32)]
    for c, tn in order4:
        k = len(slots); fb = FR + 4 * (k % R)
        base = VB + c // 12; off = (c % 12) * 5120 + tn * 32
        rd = [f"ds_read_b64_tr_b16 {vr(fb,2)}, v{base} offset:{off}", f"ds_read_b64_tr_b16 {vr(fb+2,2)}, v{base} offset:{off+2560}"]
        mf = []
        for z in range(2):
            d = ACC + 4 * (z * 5 + tn)
            cc = "0" if c == 0 else vr(d, 4)
            b = vr(QF + 8 * c + 4 * z, 4) if c < 4 else odst(c // 4, (c & 3) * 2 + z)
            mf.append(f"v_mfma_f32_16x16x32_bf16 {vr(d,4)}, {vr(fb,4)}, {b}, {cc}")
        slots.append(dict(unit=min(c // 4, 6), reads=rd, mf=mf, gap=[[], []], c=c, tn=tn))
    N = len(slots)
    def put(gi, fn):
        slots[gi // 2]["gap"][gi & 1].append(fn if callable(fn) else (lambda s_=fn: e(s_)))
    def put_free(ops, g0):
        gi = g0
        for o in ops:
            while slots[gi // 2]["gap"][gi & 1] or (gi & 1 == 1 and (gi // 2) % 2 == 1): gi += 1
            put(gi, o); gi += 1
        return gi
    def check_flag(h):
        if opt.get("nochk", 0): return
        l1, l2 = newlab("p"), newlab("p")
        e(f"s_bitcmp1_b32 s{S_PM}, {h}")
        e(f"s_cbranch_scc1 {l2}")
        e("s_mov_b32 s38, 0")
        e.label(l1)
        e(f"buffer_load_dword v{T3}, v{VPO}, s[{SF}:{SF+3}], 0 offen sc1")
        e("s_add_u32 s38, s38, 1")
        e("s_waitcnt vmcnt(0)")
        e(f"v_cmp_eq_u32 vcc, v{T2}, v{T3}")
        e(f"s_mov_b32 s{S_PM}, vcc_lo")
        e(f"s_cmp_ge_u32 s38, {SPIN}")
        e(f"s_cbranch_scc1 {l2}")
        e(f"s_bitcmp1_b32 s{S_PM}, {h}")
        e(f"s_cbranch_scc0 {l1}")
        e.label(l2)
    ROLES, S_ROLE = g["ROLES"], g["S_ROLE"]
    def flag_store():
        wait_vm(["Ost"])
        flag_raw(); vm_add("flag")
        stamp()
    e("s_barrier")
    FS = opt.get("fs", 6); PS = opt.get("ps", 14)
    SOFF = list(range(64, 74)) + [76, 77, 39, 31]
    pre = [f"s_mul_i32 s8, s{S_W}, 5120", f"s_lshl_b32 s100, s{S_HI}, 2", f"s_add_u32 s100, s100, s{S_W}", f"s_add_u32 s8, s8, {16*5120}"]
    for gi in range(4):
        pre += [f"s_add_u32 s101, s100, {16+4*gi}", "s_and_b32 s101, s101, 31", f"s_mul_i32 s{16+gi}, s101, {32*1280}"]
    for s_ in pre[:7]: e(s_)
    rest = pre[7:]
    for h in range(1, 8):
        rest += [f"s_add_u32 s101, s{S_HI}, {h}", "s_and_b32 s101, s101, 7", f"s_lshl_b32 s{SOFF[2*(h-1)]}, s101, 15", f"s_add_u32 s{SOFF[2*(h-1)+1]}, s{SOFF[2*(h-1)]}, 4096"]
    put(2 * FS + 1, flag_store)
    def wload(gi, ee):
        def f():
            if opt.get("now", 0):
                vm_add(("W", gi)); return
            e(f"s_add_u32 m0, s8, {(gi-4)*20480 + (4096 if ee == 4 else 0)}")
            e(f"buffer_load_dwordx4 v{VWO[ee]}, s[{SWO}:{SWO+3}], s{16+gi-4} offen offset:{1024*ee if ee < 4 else 0}{WOF} lds"); vm_add(("W", gi))
        return f
    def oload(h, f):
        def fn():
            if opt.get("noo", 0):
                vm_add(("O", h, f // 2)); return
            e(f"buffer_load_dwordx4 {odst(h, f)}, v{VL16}, s[{SOG}:{SOG+3}], s{SOFF[2*(h-1)+(f>>2)]} offen offset:{(f&3)*1024}{opt.get('olflag', ' sc1')}"); vm_add(("O", h, f // 2))
        return fn
    wl = [(gi, ee) for gi in range(6, 8) for ee in range(5)]
    def poll_issue():
        e(f"buffer_load_dword v{T3}, v{VPO}, s[{SF}:{SF+3}], 0 offen sc1"); vm_add("poll")
    def poll_use():
        wait_vm(["poll"])
        e(f"v_cmp_eq_u32 vcc, v{T2}, v{T3}")
        e(f"s_mov_b32 s{S_PM}, vcc_lo")
    rest = rest[9:17] + rest[:9] + rest[17:]
    for i, o in enumerate(rest): put(i // 2 if i // 2 < 2 * FS + 1 else i // 2 + 1, o)
    if SPEC:
        SI = opt.get("si", 9)
        for i in range(16): put(2 * SI + i, oload(1 + i // 8, i % 8))
        def spec_check(h):
            def f():
                lr, lb = newlab("sr"), newlab("sb")
                wait_vm([("O", h, 3)])
                b = 64 + 32 * (h - 1)
                e(f"v_max3_u32 v{T0}, v{b}, v{b+4}, v{b+8}")
                e(f"v_max3_u32 v{T1}, v{b+12}, v{b+16}, v{b+20}")
                e(f"v_max3_u32 v{T0}, v{T0}, v{b+24}, v{b+28}")
                e(f"v_max_u32 v{T0}, v{T0}, v{T1}")
                e(f"v_cmp_eq_u32 vcc, -1, v{T0}")
                e(f"s_cmp_eq_u32 s{S_FAST}, 0")
                e(f"s_cbranch_scc1 {lr}")
                e("s_cmp_lg_u64 vcc, 0")
                e(f"s_cbranch_scc1 {lr}")
                e.label(lb)
                def blk():
                    e.label(lr)
                    e("s_waitcnt vmcnt(0)")
                    e(f"s_mov_b32 s{S_PM}, 0")
                    if opt.get("diag", 0): e(f"s_add_u32 s60, s60, 1")
                    check_flag(h)
                    for ff in range(8):
                        e(f"buffer_load_dwordx4 {odst(h, ff)}, v{VL16}, s[{SOG}:{SOG+3}], s{SOFF[2*(h-1)+(ff>>2)]} offen offset:{(ff&3)*1024} sc1")
                    e("s_waitcnt vmcnt(0)")
                    e(f"s_branch {lb}")
                rare.append(blk)
            return f
        pre_slot = {20: spec_check(1), 40: spec_check(2)}
        put(2 * PS, poll_issue)
        PU = opt.get("pu", 24)
        put(2 * PU, poll_use)
        seq = []
        o4 = opt.get("o4", 2 * PU + 4)
        wfirst = opt.get("wfirst", 5)
        for i in range(wfirst): put(2 * (PS + 1 + i) + 1, wload(*wl.pop(0)))
    else:
        nw0 = opt.get("nw0", 5); nw1 = opt.get("nw1", 5)
        for i in range(nw0): put(2 * (FS + 1 + i) + 1, wload(*wl.pop(0)))
        put(2 * PS, poll_issue)
        for i in range(nw1): put(2 * (PS + i) + 1, wload(*wl.pop(0)))
        def poll_take():
            poll_use()
            check_flag(1)
            for f in range(8): oload(1, f)()
            check_flag(2)
            for f in range(4): oload(2, f)()
            if BAR20:
                wait_vm([("W", 6), ("W", 7)])
                e("s_barrier")
            stamp()
        pre_slot = {20: poll_take}
        seq = [("o", 2, f) for f in range(4, 8)]
        o4 = opt.get("o4", 42)
    osp = opt.get("osp", 42)
    wafter = str(opt.get("wafter", "34"))
    for h in range(3, 8):
        seq += [("o", h, f) for f in range(8)]
        for ch in wafter:
            if int(ch) == h:
                for i in range(5):
                    if wl: seq.append(("w",) + wl.pop(0))
    assert not wl
    pos = o4 * 10
    for it in seq:
        gi = (pos // 10) & ~1
        if it[0] == "o":
            if it[2] == 0: put(gi - 2, lambda h=it[1]: check_flag(h))
            put(gi, oload(it[1], it[2])); pos += osp
        else:
            put(gi, wload(it[1], it[2])); pos += opt.get("wsp10", 60)
    lg = []; st = dict(rd=0, cur=-1, waited=-1)
    SOUT = 8
    HR = opt.get("hr", 15); UR = opt.get("ur", 8)
    xs = [f"s_lshl_b32 s100, s{S_B}, 2", f"s_add_u32 s100, s100, s{S_HG}", f"s_mul_i32 s100, s100, {32*1280}",
          f"s_mul_i32 s101, s{S_HI}, 160", "s_add_u32 s100, s100, s101", f"s_sub_u32 s101, {1024*1280}, s100",
          f"v_and_b32 v2, 15, v{V_L}", "v_mul_u32_u24 v2, 1280, v2", f"v_lshrrev_b32 v3, 4, v{V_L}", "v_lshl_add_u32 v2, v3, 3, v2",
          "v_mov_b32 v5, 0xfffcfffc", f"s_add_u32 s{S_T0}, s{S_PO}, 4096",
          "s_mov_b32 s36, 0x00020002", "s_mov_b32 s37, 0", "s_mov_b32 s26, 0", f"s_lshl_b32 s27, s{S_W}, 10", f"v_add_u32 v3, s27, v{VL16}"]
    gend = put_free(xs, 44)
    xs2 = [[f"s_add_u32 s{SOUT}, s74, s100", f"s_addc_u32 s{SOUT+1}, s75, 0"], f"s_mov_b32 s{SOUT+2}, s101", f"s_mov_b32 s{SOUT+3}, 0x20000"]
    xs2 += [f"s_bfe_u32 s{80+j}, s{S_TAG}, {0x20000 + 2*j}" for j in range(4)]
    for i in range(1, 4):
        xs2 += [f"s_add_u32 s100, s{S_HG}, {i}", "s_and_b32 s100, s100, 3", "s_lshl_b32 s100, s100, 2", f"s_add_u32 s100, s100, s{S_HG}",
                "s_mul_i32 s100, s100, 5120", f"s_add_u32 s{12+i}, s100, s27", f"s_add_u32 s{16+i}, s100, 4096"]
    xs2 += [f"s_lshl_b32 s12, s{S_W}, 5", f"s_add_u32 s16, s12, {16*1280}", f"s_movk_i32 s20, {16*1280}"]
    xs2 = [(lambda x=x: [e(s_) for s_ in x]) if isinstance(x, list) else x for x in xs2]
    gw = max([2 * k + hh for k in range(N) for hh in range(2) if any(getattr(f, "__name__", "") == "f" for f in slots[k]["gap"][hh])])
    gend2 = put_free(xs2, max(gend, gw + 1))
    assert gend2 <= 2 * 118, (gend, gend2)
    def scale_ops():
        ops = ["s_lshr_b32 s71, s71, 23", "s_max_u32 s71, s71, 1", "s_min_u32 s71, s71, 239",
               "s_sub_u32 s64, 254, s71", "s_lshl_b32 s64, s64, 23", f"s_add_u32 s65, s71, {HR}", "s_lshl_b32 s65, s65, 23",
               f"s_sub_i32 s66, s71, {UR}", "s_max_i32 s66, s66, 0", "s_lshl_b32 s66, s66, 23"]
        for j in range(4):
            ops += [f"s_bfe_u32 s72, s71, {0x20000 + 2*j}", "s_lshl_b32 s72, s72, 16", f"s_or_b32 s{67+j}, s72, s{80+j}"]
        return ops
    def amax_ops(tn, dst):
        a, b = ACC + 4 * tn, ACC + 20 + 4 * tn
        return [f"v_max3_f32 v{dst}, |v{a}|, |v{a+1}|, |v{a+2}|", f"v_max3_f32 v{dst}, v{dst}, |v{a+3}|, |v{b}|",
                f"v_max3_f32 v{dst}, v{dst}, |v{b+1}|, |v{b+2}|", f"v_max_f32_e64 v{dst}, v{dst}, |v{b+3}|"]
    assert WF
    so = amax_ops(1, T0) + [f"v_readlane_b32 s71, v{T0}, 0", f"v_readlane_b32 s72, v{T0}, 21", f"v_readlane_b32 s73, v{T0}, 42", f"v_readlane_b32 s100, v{T0}, 63",
                            "s_max_u32 s71, s71, s72", "s_max_u32 s73, s73, s100", "s_max_u32 s71, s71, s73"] + scale_ops()
    for i, o in enumerate(so): put(2 * 120 + 1 + i * 16 // len(so), o)
    def send_items(tn):
        lown, ljoin, lr, lb = newlab("x"), newlab("x"), newlab("xr"), newlab("xb")
        d = 200 + 4 * tn
        items = amax_ops(tn, T0)
        items += [f"v_cmp_le_f32 vcc, s65, v{T0}", f"v_cmp_le_f32 s[72:73], s66, v{T0}"]
        def chk():
            e("s_cmp_lg_u64 vcc, 0")
            e(f"s_cbranch_scc1 {lr}")
            e("s_cmp_eq_u64 s[72:73], 0")
            e(f"s_cbranch_scc1 {lr}")
            e.label(lb)
        items.append(chk)
        vals = [ACC + 4 * tn + i for i in range(4)] + [ACC + 20 + 4 * tn + i for i in range(4)]
        items += [f"v_fma_mixlo_f16 v{d+j}, v{vals[2*j]}, s64, 0" for j in range(4)]
        items += [f"v_fma_mixhi_f16 v{d+j}, v{vals[2*j+1]}, s64, 0" for j in range(4)]
        items += [f"v_and_or_b32 v{d+j}, v{d+j}, v5, s{67+j}" for j in range(4)]
        def fin():
            e(f"s_cmp_eq_u32 s{S_W}, s{S_HG}")
            e(f"s_cbranch_scc1 {lown}")
            e(f"buffer_store_dwordx4 {vr(d,4)}, v{VL16}, s[{SP}:{SP+3}], s{S_PO if tn < 4 else S_T0} offen offset:{(tn&3)*1024}{opt.get('psflag', ' sc1')}")
            if tn < 4:
                e(f"s_branch {ljoin}")
                e.label(lown)
                for tau in (tn, 5 + tn):
                    e(f"ds_write_b128 v{VL16}, {vr(ACC+4*tau,4)} offset:{tau*1024}")
                e.label(ljoin)
            else:
                e.label(lown)
        items.append(fin)
        def blk():
            e.label(lr)
            e(f"v_mov_b32 v{T1}, v{T0}"); e("s_nop 1"); e(f"v_permlane32_swap_b32 v{T1}, v{T0}"); e(f"v_max_f32 v{T0}, v{T0}, v{T1}")
            e(f"v_mov_b32 v{T1}, v{T0}"); e("s_nop 1"); e(f"v_permlane16_swap_b32 v{T1}, v{T0}"); e(f"v_max_f32 v{T0}, v{T0}, v{T1}")
            for r in (8, 4, 2, 1):
                e(f"v_max_f32_dpp v{T0}, v{T0}, v{T0} row_ror:{r} row_mask:0xf bank_mask:0xf")
            e(f"v_readfirstlane_b32 s71, v{T0}")
            for o in scale_ops(): e(o)
            e(f"s_branch {lb}")
        rare.append(blk)
        return items
    if opt.get("cln", 0):
        SO_ = g["SO"]
        def cl(i):
            def f2():
                lc = newlab("c")
                if opt["cln"] == 1:
                    e(f"s_cmp_lg_u32 s{S_ROLE}, 0"); e(f"s_cbranch_scc1 {lc}")
                e(f"s_movk_i32 s101, {(i>>2)*4096}")
                e(f"buffer_store_dwordx4 {vr(QF+4*i,4)}, v{VL16}, s[{SO2_}:{SO2_+3}], s101 offen offset:{(i&3)*1024} sc1")
                e.label(lc)
            return f2
        SO2_ = 56
        slots[21]["gap"][1].append(lambda: [e(f"s_mov_b32 s{56+i}, s{SO_+i}") for i in range(4)])
        c0 = opt.get("cln0", 129)
        for i in range(8): slots[c0 + i * opt.get("clnsp", 2)]["gap"][0].append(cl(i))
    def send(tn):
        for it in send_items(tn):
            if callable(it): it()
            else: e(it)
    for tn in range(4):
        its = send_items(tn)
        g0 = 2 * (120 + 8 * (tn + 1)) + 2
        for i, it in enumerate(its): put(g0 + i * 14 // len(its), it)
    def issue_reads(upto):
        while st["rd"] <= upto and st["rd"] < N:
            s = slots[st["rd"]]
            if s["unit"] != st["cur"]:
                st["cur"] = s["unit"]
                if st["cur"] == 4 and not opt.get("onebar", 0) and not BAR20:
                    e("s_barrier")
                if st["cur"] == (4 if opt.get("onebar", 0) else 6) and not BAR20:
                    wait_vm([("W", 6), ("W", 7)])
                    e("s_barrier")
            for r in s["reads"]:
                if pend is not None and r is s["reads"][1]: pend.append((r, st["rd"]))
                else:
                    e(r); lg.append(st["rd"])
            st["rd"] += 1
    pend = None
    issue_reads(LA - 1)
    for k in range(N):
        if k in pre_slot: pre_slot[k]()
        if slots[k]["tn"] == 0 and k >= (60 if SPEC else 20):
            wait_vm([("O", slots[k]["c"] // 4, slots[k]["c"] & 3)])
            if k % 20 == 0 and k <= 120 and (opt.get("diag", 0) == 3 or (opt.get("diag", 0) == 4 and k <= 60)): stamp()
        if k > st["waited"]:
            kk = k + 1 if (k + 1 < st["rd"]) else k
            idx = max(i for i, t in enumerate(lg) if t == kk)
            e(f"s_waitcnt lgkmcnt({min(15, len(lg)-1-idx)})")
            st["waited"] = kk
        e(slots[k]["mf"][0])
        pend = []
        issue_reads(k + LA)
        for fn in slots[k]["gap"][0]: fn()
        e(slots[k]["mf"][1])
        for r, t in pend:
            e(r); lg.append(t)
        for fn in slots[k]["gap"][1]: fn()
    stamp()
    send(4)
    def wbl2():
        lw = newlab("wb")
        e("s_lshr_b32 s100, s2, 3"); e(f"s_or_b32 s100, s100, s{S_W}"); e(f"s_cmp_eq_u32 s100, {opt.get('wbr', 0)}"); e(f"s_cbranch_scc0 {lw}")
        e("buffer_wbl2 sc1")
        e.label(lw)
    if opt.get("wb", 0) == 1: wbl2()
    stamp()
    def decode(off, acc, so0, so1, imm):
        for i in range(3):
            b = 32 + 8 * i + off
            e(f"v_perm_b32 v{84+2*i}, v{b+1}, v{b}, v7")
            e(f"v_perm_b32 v{85+2*i}, v{b+3}, v{b+2}, v7")
        for i in range(3):
            e(f"v_lshl_or_b32 v{84+2*i}, v{85+2*i}, 16, v{84+2*i}")
        for i in range(3):
            e(f"v_readfirstlane_b32 s{64+i}, v{84+2*i}")
        for i in range(3):
            b = 32 + 8 * i + off
            for jj in range(4): e(f"v_and_or_b32 v{b+jj}, v{b+jj}, v5, s36")
            e(f"s_and_b32 s{64+i}, s{64+i}, 0x03030303")
            e(f"s_mul_i32 s{64+i}, s{64+i}, 0x01041040")
            e(f"s_lshr_b32 s{64+i}, s{64+i}, 24")
            e(f"s_lshl_b32 s{64+i}, s{64+i}, 23")
        e("s_waitcnt lgkmcnt(0)")
        for i in range(3):
            b = 32 + 8 * i + off
            for v_ in range(8):
                e(f"v_fma_mix_f32 v{acc[v_]}, v{b+v_//2}, s{64+i}, v{acc[v_]} op_sel:[{v_&1},0,0] op_sel_hi:[1,0,0]")
        for z in range(2):
            e(f"v_cvt_pk_bf16_f32 v{80+2*z}, v{acc[4*z]}, v{acc[4*z+1]}")
            e(f"v_cvt_pk_bf16_f32 v{81+2*z}, v{acc[4*z+2]}, v{acc[4*z+3]}")
            e(f"buffer_store_dwordx2 {vr(80+2*z,2)}, v2, s[{SOUT}:{SOUT+3}], {[so0, so1][z]} offen offset:{imm}{opt.get('outflag', '')}")
    dec0 = lambda: decode(0, list(range(64, 72)), "s12", "s16", 0)
    dec1 = lambda: decode(4, [ACC + 16 + i for i in range(4)] + [ACC + 36 + i for i in range(4)], "0", "s20", 128)
    l1, l2, lnd, lw0, lchk, lend = [newlab("q") for _ in range(6)]
    e(f"s_cmp_lg_u32 s{S_W}, s{S_HG}")
    e("s_cselect_b32 s26, 0x38, 0")
    e("v_mov_b32 v7, 0x0c0c0602")
    first = True
    def issue_all():
        for gI in range(2):
            for i in range(3):
                ls = newlab("q")
                e(f"s_bitcmp1_b32 s26, {3*gI+i}")
                e(f"s_cbranch_scc1 {ls}")
                e(f"buffer_load_dwordx4 {vr(32+8*i+4*gI,4)}, v{VL16}, s[{SP}:{SP+3}], s{13+4*gI+i} offen sc1")
                e.label(ls)
    issue_all()
    e("s_waitcnt lgkmcnt(0)")
    e("s_barrier")
    e(f"ds_read_b128 v[64:67], v3")
    e(f"ds_read_b128 v[68:71], v3 offset:5120")
    e("s_waitcnt vmcnt(0)")
    e(f"s_branch {lchk}")
    e.label(l1)
    issue_all()
    e("s_and_b32 s100, s26, 0x47")
    e("s_cmp_lg_u32 s100, 7")
    e(f"s_cbranch_scc1 {lw0}")
    dec0()
    e("s_bitset1_b32 s26, 6")
    e("s_waitcnt vmcnt(2)")
    e(f"s_branch {lchk}")
    e.label(lw0)
    e("s_waitcnt vmcnt(0)")
    e.label(lchk)
    e("s_add_u32 s37, s37, 1")
    for gI in range(2):
        for i in range(3):
            ls = newlab("q")
            b = 32 + 8 * i + 4 * gI
            e(f"s_bitcmp1_b32 s26, {3*gI+i}")
            e(f"s_cbranch_scc1 {ls}")
            e(f"v_xor_b32 v4, s80, v{b}")
            for jj in range(1, 4): e(f"v_bitop3_b32 v4, v4, v{b+jj}, s{80+jj} bitop3:0xf6")
            e("v_and_b32 v4, 3, v4")
            e("v_cmp_ne_u32 vcc, 0, v4")
            e("s_cmp_lg_u64 vcc, 0")
            e(f"s_cbranch_scc1 {ls}")
            e(f"s_bitset1_b32 s26, {3*gI+i}")
            e.label(ls)
    if opt.get("nox", 0): e("s_mov_b32 s26, 0x3f")
    e("s_and_b32 s100, s26, 0x3f")
    e("s_cmp_eq_u32 s100, 0x3f")
    e(f"s_cbranch_scc1 {l2}")
    e(f"s_cmp_lt_u32 s37, {SPIN}")
    e(f"s_cbranch_scc1 {l1}")
    e.label(l2)
    stamp()
    e("s_bitcmp1_b32 s26, 6")
    e(f"s_cbranch_scc1 {lnd}")
    dec0()
    e.label(lnd)
    e(f"s_cmp_lg_u32 s{S_W}, s{S_HG}"); e(f"s_cbranch_scc1 {lend}")
    e("s_nop 1")
    dec1()
    e.label(lend)

if __name__ == "__main__":
    out = sys.argv[1]
    opt = {}
    for a in sys.argv[2:]:
        k, v = a.split("=")
        if k not in ("kmix", "wpl", "wsp", "wspa", "wspb", "wafter", "pfu", "pfa", "kmixb", "pairb", "dla", "dlb"):
            try: v = int(v)
            except:
                try: v = float(v)
                except: pass
        if k.endswith("flag"): v = (" " + v.replace("+", " ")) if v not in ("none", 0) else ""
        opt[k] = v
    open(out, "w").write(gen(opt))
```
